```python
import torch

def _softmax(x, axis=-1):
    return torch.softmax(x, dim=axis)
def _gelu(x):
    return torch.nn.functional.gelu(x, approximate="tanh")
def _silu(x):
    return torch.nn.functional.silu(x)
def _sigmoid(x):
    return torch.sigmoid(x)
def _layernorm(x, axis=-1, eps=1e-5):
    m = x.mean(dim=axis, keepdim=True)
    v = x.var(dim=axis, keepdim=True, unbiased=False)
    return (x - m) / torch.sqrt(v + eps)
def _scatter_add(tgt, idx, src, axis=0):
    return tgt.clone().index_add_(axis, idx, src)
def _segment_sum(src, seg, n):
    out = torch.zeros((n,) + src.shape[1:], dtype=src.dtype)
    return out.index_add_(0, seg, src)
def _pad(x, pw):
    flat = tuple(v for pair in reversed(pw) for v in pair)
    return torch.nn.functional.pad(x, flat)

kernel_name = 'sequential_preLN__gqa_block_cached__geglu_ffn__decode'

def setup_inputs():

    _w = (lambda a: (lambda t: t.to(torch.bfloat16) if t.is_floating_point() else t)(torch.as_tensor(a)))
    def _A_setup():
        B, Sq, D = 1, 1, 448
        Hq, Hkv, Sk, Dh = 16, 8, 8192, 256
        assert Hq % Hkv == 0, (Hq, Hkv)
        return {
            "x": _w((lambda *s: torch.randn(*s, dtype=torch.bfloat16) * 0.05)(B, Sq, D)),
            "k_cache": _w((lambda *s: torch.randn(*s, dtype=torch.bfloat16) * 3.2)(B, Hkv, Sk, Dh)),
            "v_cache": _w((lambda *s: torch.randn(*s, dtype=torch.bfloat16) * 0.4)(B, Hkv, Sk, Dh)),
            "wq": _w((lambda *s: torch.randn(*s, dtype=torch.bfloat16) * 3.2)(D, Hq * Dh) * (D ** -0.5)),
            "wo": _w((lambda *s: torch.randn(*s, dtype=torch.bfloat16) * 0.4)(Hq * Dh, D) * ((Hq * Dh) ** -0.5)),
        }
    _A_in = _A_setup()

    def _B_setup():
        B, S, D, F = 1, 1, 448, 1792
        return {
            "x": _w((lambda *s: torch.randn(*s, dtype=torch.bfloat16) * 0.05)(B, S, D)),
            "w_gate": _w((lambda *s: torch.randn(*s, dtype=torch.bfloat16) * 0.05)(D, F)),
            "w_up": _w((lambda *s: torch.randn(*s, dtype=torch.bfloat16) * 0.05)(D, F)),
            "w_down": _w((lambda *s: torch.randn(*s, dtype=torch.bfloat16) * 0.05)(F, D)),
        }
    _B_in = _B_setup()

    return {
        "A_x": _A_in["x"],
        "A_k_cache": _A_in["k_cache"],
        "A_v_cache": _A_in["v_cache"],
        "A_wq": _A_in["wq"],
        "A_wo": _A_in["wo"],
        "B_x": _B_in["x"],
        "B_w_gate": _B_in["w_gate"],
        "B_w_up": _B_in["w_up"],
        "B_w_down": _B_in["w_down"],
    }

def reference(A_x, A_k_cache, A_v_cache, A_wq, A_wo, B_x, B_w_gate, B_w_up, B_w_down):
    def _A_ref(x, k_cache, v_cache, wq, wo):
        B, Sq, D = x.shape
        Hq, Dh = 16, 256
        Hkv = k_cache.shape[1]
        rep = Hq // Hkv
        q = (lambda x, *d: x.permute(*d))((x @ wq).reshape(B, Sq, Hq, Dh), 0, 2, 1, 3)
        k = (lambda x, n, axis: torch.repeat_interleave(x, n, dim=axis))(k_cache, rep, axis=1)
        v = (lambda x, n, axis: torch.repeat_interleave(x, n, dim=axis))(v_cache, rep, axis=1)
        scores = torch.einsum("bhqd,bhkd->bhqk", q, k) * (Dh ** -0.5)
        p = _softmax(scores, axis=-1)
        o = torch.einsum("bhqk,bhkd->bhqd", p, v)
        return (lambda x, *d: x.permute(*d))(o, 0, 2, 1, 3).reshape(B, Sq, Hq * Dh) @ wo

    def _B_ref(x, w_gate, w_up, w_down):
        return (_gelu(x @ w_gate) * (x @ w_up)) @ w_down

    x = A_x
    h = x + _A_ref(_layernorm(x, axis=-1), A_k_cache, A_v_cache, A_wq, A_wo)
    h2 = h + _B_ref(_layernorm(h, axis=-1), B_w_gate, B_w_up, B_w_down)
    return h2
```

```python
import re

TRANS = ('v_exp_f32','v_log_f32','v_rcp_f32','v_rsq_f32','v_sqrt_f32','v_sin_f32','v_cos_f32')

def parse_regs(tok):
    tok = tok.strip()
    tok = tok.lstrip('-')
    m = re.match(r'^abs\((.*)\)$', tok)
    if m: tok = m.group(1)
    if tok in ('vcc',): return [('vcc',0)]
    if tok in ('exec',): return [('exec',0)]
    if tok in ('m0',): return [('m0',0)]
    m = re.match(r'^([vas])\[(\d+):(\d+)\]$', tok)
    if m:
        return [(m.group(1), i) for i in range(int(m.group(2)), int(m.group(3))+1)]
    m = re.match(r'^([vas])(\d+)$', tok)
    if m:
        return [(m.group(1), int(m.group(2)))]
    return []

def split_ops(s):
    out=[]; cur=''; depth=0
    for ch in s:
        if ch=='[': depth+=1
        if ch==']': depth-=1
        if ch==',' and depth==0:
            out.append(cur.strip()); cur=''
        else: cur+=ch
    if cur.strip(): out.append(cur.strip())
    return out

class Asm:
    def __init__(self):
        self.lines=[]
        self.hist=[]
        self.pending={}
        self.nvm=0
    def raw(self, t): self.lines.append(t)
    def comment(self, t): self.lines.append('    ; '+t)
    def label(self, name):
        self.lines.append(name+':')
        for snap in self.pending.pop(name, []):
            self.hist = self.hist + [dict(e) for e in snap]
    def _age(self, n):
        for e in self.hist: e['age']+=n
        self.hist=[e for e in self.hist if e['age']<24]
    def nop(self, n):
        while n>0:
            k=min(n,16)
            self.lines.append('    s_nop %d'%(k-1))
            self._age(k); n-=k
    def __call__(self, text):
        text=text.strip()
        mm=re.match(r'^(\S+)\s*(.*)$', text)
        op=mm.group(1); rest=mm.group(2)
        ops=split_ops(rest)
        mods=''
        if ops:
            last=ops[-1].split(None,1)
            ops[-1]=last[0]
            mods=last[1] if len(last)>1 else ''
        kind='other'; w=[]; r=[]
        isdpp = ('quad_perm' in mods) or ('row_' in mods) or ('wave_' in mods)
        srcC=[]
        if op.startswith('v_mfma'):
            kind='mfma'; w=parse_regs(ops[0]); r=parse_regs(ops[1])+parse_regs(ops[2])+parse_regs(ops[3]); srcC=parse_regs(ops[3])
        elif op.startswith('v_permlane'):
            kind='permlane'; w=parse_regs(ops[0])+parse_regs(ops[1]); r=list(w)
        elif op.startswith('v_readlane') or op.startswith('v_readfirstlane'):
            kind='readlane'; w=parse_regs(ops[0]); r=sum([parse_regs(o) for o in ops[1:]],[])
        elif op.startswith('v_cmp'):
            kind='valu'; w=parse_regs(ops[0]); r=sum([parse_regs(o) for o in ops[1:]],[])
        elif op.startswith('v_'):
            kind='trans' if any(op.startswith(t) for t in TRANS) else 'valu'
            w=parse_regs(ops[0]); r=sum([parse_regs(o) for o in ops[1:]],[])
            if op.startswith('v_fmac') or op.startswith('v_pk_fmac') or isdpp: r+=w
            if op.startswith('v_cndmask') and len(ops)==3: r+=[('vcc',0)]
        elif op.startswith('buffer_load') or op.startswith('global_load'):
            kind='vmem_ld'; w=parse_regs(ops[0]); r=sum([parse_regs(o) for o in ops[1:]],[]); self.nvm+=1
        elif op.startswith('buffer_store') or op.startswith('global_store') or op.startswith('buffer_atomic'):
            kind='vmem_st'; r=sum([parse_regs(o) for o in ops],[]); self.nvm+=1
        elif op.startswith('ds_read') or op.startswith('ds_bpermute') or op.startswith('ds_swizzle'):
            kind='ds'; w=parse_regs(ops[0]); r=sum([parse_regs(o) for o in ops[1:]],[])
        elif op.startswith('ds_'):
            kind='ds'; r=sum([parse_regs(o) for o in ops],[])
        elif op.startswith('s_'):
            kind='salu'
            if op in ('s_nop',):
                self.lines.append('    '+text); self._age(int(ops[0])+1); return
            if op.startswith('s_cbranch') or op=='s_branch':
                self.lines.append('    '+text); self._age(1)
                self.pending.setdefault(ops[0],[]).append([dict(e) for e in self.hist])
                return
            if ops and not op.startswith('s_cmp') and not op.startswith('s_waitcnt') and not op.startswith('s_barrier') and not op.startswith('s_sleep') and not op.startswith('s_endpgm') and not op.startswith('s_setprio'):
                w=parse_regs(ops[0]); r=sum([parse_regs(o) for o in ops[1:]],[])
            else:
                r=sum([parse_regs(o) for o in ops],[])
        else:
            raise Exception('unknown op '+op)
        ws=set(w); rs=set(r)
        need=0
        isvalu = kind in ('valu','trans','readlane','permlane')
        for e in self.hist:
            ew=e['w']; a=e['age']; ek=e['kind']
            ev = ek in ('valu','trans','readlane','permlane')
            def req(n):
                nonlocal need
                need=max(need, n-a)
            vw = {x for x in ew if x[0] in ('v','a')}
            sw = {x for x in ew if x[0] in ('s','vcc')}
            if ev:
                if isdpp and (vw & rs): req(2)
                if kind=='permlane' and (vw & rs): req(2)
                if kind=='readlane' and (vw & rs): req(1)
                if kind=='mfma' and (vw & rs): req(2)
                if ek=='trans' and isvalu and kind!='trans' and (vw & (rs|ws)): req(1)
                if sw & rs:
                    if kind in ('vmem_ld','vmem_st'): req(5)
                    elif kind=='readlane': req(4)
                    elif isvalu or kind=='mfma': req(2)
                    elif kind=='salu': req(1)
            if ek=='mfma':
                if kind=='mfma':
                    ab = set(parse_regs(ops[1])+parse_regs(ops[2]))
                    if vw & ab: req(8)
                    sc=set(srcC)
                    if vw & sc and vw!=sc: req(6)
                elif kind in ('valu','trans','readlane','permlane','vmem_ld','vmem_st','ds'):
                    if vw & (rs|ws): req(8)
                if isvalu and (set(e['srcC']) & ws): req(3)
            if ek=='vmem_st' and e['wide']:
                if (e['data'] & ws): req(2)
        if need>0: self.nop(need)
        self.lines.append('    '+text)
        self._age(1)
        ent=dict(kind=kind,w=ws,r=rs,age=0,srcC=srcC,wide=False,data=set())
        if kind=='vmem_st' and ('x4' in op or 'x3' in op):
            ent['wide']=True; ent['data']=set(parse_regs(ops[0]))
        self.hist.append(ent)
    def text(self): return '\n'.join(self.lines)+'\n'
```

```python
import sys
from asmlib import Asm

NAME='sequential_preLN__gqa_block_cached__geglu_ffn__decode'
D = int(sys.argv[2]) if len(sys.argv)>2 else 12

Q_OFF=0x0; S1_OFF=0x2000; O1_OFF=0x4000; P2_OFF=0x84000; P3_OFF=0x8C000; WS_SIZE=0xA4800
OOB=0x80000000
L_XN=0; L_QRED=2048; L_P=4096; L_OW=6144; L_ST=14336; L_OV=14400; L_RED2=15424; L_ST3=19520; L_HN=19584
L_RED3=21376; L_RED4=25472; LDS_SIZE=32768
LOG2E=1.4426950408889634

import struct
def f2u(x): return struct.unpack('<I',struct.pack('<f',x))[0]

A=Asm()
sK='s[4:7]'; sV='s[8:11]'; sWS='s[12:15]'; sDB='s[16:19]'; sX='s[20:23]'; sWQ='s[24:27]'; sWO='s[28:31]'
sWG='s[32:35]'; sWU='s[36:39]'; sWD='s[40:43]'; sOUT='s[44:47]'
sH='s72'; sS='s73'; sW='s74'; sT0='s75'; sT1='s76'; sT2='s77'; sT3='s78'; sKB='s79'; sVB='s80'; sJ='s81'; sN='s82'; sF='s83'
sOOB='s84'; sC0='s85'; sC1='s86'; sC2='s87'; sC3='s88'
sA0=90

def srd(base, p, size):
    A(f's_mov_b32 s{base}, s{p}')
    A(f's_and_b32 s{base+1}, s{p+1}, 0xffff')
    A(f's_mov_b32 s{base+2}, {size}')
    A(f's_mov_b32 s{base+3}, 0x00020000')

def vr(a,n=1): return f'v{a}' if n==1 else f'v[{a}:{a+n-1}]'
def ar(a,n=1): return f'a{a}' if n==1 else f'a[{a}:{a+n-1}]'

def allreduce(op, v, t, lo=True, x16=True, x32=True):
    ins = 'v_add_f32' if op=='add' else 'v_max_f32'
    if lo:
        for m in ('quad_perm:[1,0,3,2]','quad_perm:[2,3,0,1]','row_half_mirror','row_mirror'):
            A(f'{ins}_dpp v{v}, v{v}, v{v} {m} row_mask:0xf bank_mask:0xf')
    if x16:
        A(f'v_mov_b32 v{t}, v{v}')
        A(f'v_permlane16_swap_b32 v{v}, v{t}')
        A(f'{ins} v{v}, v{v}, v{t}')
    if x32:
        A(f'v_mov_b32 v{t}, v{v}')
        A(f'v_permlane32_swap_b32 v{v}, v{t}')
        A(f'{ins} v{v}, v{v}, v{t}')

def bf16round(v, t=None):
    A(f'v_cvt_pk_bf16_f32 v{v}, v{v}, v{v}')
    A(f'v_and_b32 v{v}, 0xffff0000, v{v}')

def unpack(src, dst):
    A(f'v_lshlrev_b32 v{dst}, 16, {src}')
    A(f'v_and_b32 v{dst+1}, 0xffff0000, {src}')

def fdiv(d, num, den, r, t):
    A(f'v_mul_f32 v{d}, v{num}, v{r}')
    A(f'v_fma_f32 v{t}, -v{d}, v{den}, v{num}')
    A(f'v_fma_f32 v{d}, v{t}, v{r}, v{d}')

def sentinel_check(regs, t, fail_label):
    regs=list(regs)
    A(f'v_max_u32 v{t}, v{regs[0]}, v{regs[1]}')
    i=2
    while i<len(regs):
        if i+1<len(regs):
            A(f'v_max3_u32 v{t}, v{t}, v{regs[i]}, v{regs[i+1]}'); i+=2
        else:
            A(f'v_max_u32 v{t}, v{t}, v{regs[i]}'); i+=1
    A(f'v_cmp_eq_u32 vcc, -1, v{t}')
    A('s_nop 1')
    A(f's_cbranch_vccnz {fail_label}')

def layernorm_consts(mean, var, t0):
    bf16round(mean)
    bf16round(var)
    A(f'v_add_f32 v{var}, {hex(f2u(1e-5))}, v{var}')
    bf16round(var)
    A(f'v_sqrt_f32 v{var}, v{var}')
    bf16round(var)
    A(f'v_rcp_f32 v{t0}, v{var}')

SPIN=100000
def guard(go):
    A('s_add_u32 s89, s89, 1')
    A(f's_cmp_gt_u32 s89, {SPIN}')
    A(f's_cbranch_scc1 {go}')

A.raw(f'{NAME}_kernel:')
A('s_cmp_ge_u32 s2, 256')
A('s_cbranch_scc1 L_end')
A('s_load_dwordx16 s[48:63], s[0:1], 0')
A('s_load_dwordx8 s[64:71], s[0:1], 64')
A('v_and_b32 v1, 63, v0')
A('v_lshrrev_b32 v6, 6, v0')
A(f'v_readfirstlane_b32 {sW}, v6')
A(f's_and_b32 {sH}, s2, 7')
A(f's_lshr_b32 {sS}, s2, 3')
A(f's_mov_b32 {sOOB}, {hex(OOB)}')
A('s_mov_b32 s89, 0')
A('v_and_b32 v6, 15, v1')
A('v_lshrrev_b32 v7, 4, v1')
A('v_lshlrev_b32 v2, 9, v6')
A('v_lshl_add_u32 v2, v7, 4, v2')
A('v_lshlrev_b32 v3, 4, v1')
A('v_cmp_gt_u32 vcc, 2, v6')
A(f'v_mov_b32 v8, {sOOB}')
A('v_cndmask_b32 v4, v8, v2, vcc')
A('s_waitcnt lgkmcnt(0)')
srd(4,50,33554432); srd(8,52,33554432); srd(12,70,WS_SIZE); srd(16,68,256); srd(20,48,896)
srd(24,54,3670016); srd(28,56,3670016); srd(32,60,1605632); srd(36,62,1605632); srd(40,64,1605632); srd(44,66,896)
A(f's_lshl_b32 {sKB}, {sH}, 22')
A(f's_lshl_b32 {sT0}, {sS}, 17')
A(f's_add_u32 {sKB}, {sKB}, {sT0}')
A(f's_lshl_b32 {sT0}, {sW}, 15')
A(f's_add_u32 {sKB}, {sKB}, {sT0}')
A(f's_mov_b32 {sVB}, {sKB}')
A(f's_cmp_ge_u32 {sS}, 7')
A(f's_cselect_b32 {sT0}, 1, 0')
A(f's_lshl_b32 {sJ}, {sH}, 1')
A(f's_add_u32 {sJ}, {sJ}, {sT0}')
A(f's_mul_i32 {sT0}, {sT0}, 7')
A(f's_sub_u32 {sN}, {sS}, {sT0}')
A(f's_mul_i32 {sF}, {sH}, 7')
A(f's_add_u32 {sF}, {sF}, {sS}')
A(f's_sub_u32 {sF}, {sF}, 16')

A(f's_cmp_lg_u32 {sW}, 0')
A('s_cbranch_scc1 L_noclear')
for i in range(4): A(f'v_mov_b32 v{12+i}, -1')
A(f's_lshl_b32 {sT0}, {sH}, 6')
A(f's_add_u32 {sT0}, {sT0}, {sS}')
A(f's_lshl_b32 {sT1}, {sT0}, 10')
A(f's_add_u32 {sT1}, {sT1}, {O1_OFF}')
A(f's_add_u32 {sT2}, {sT1}, 32768')
A(f'buffer_store_dwordx4 v[12:15], v3, {sWS}, {sT1} offen sc1')
A(f'buffer_store_dwordx4 v[12:15], v3, {sWS}, {sT2} offen sc1')
A(f's_lshl_b32 {sT1}, {sT0}, 3')
A(f's_add_u32 {sT1}, {sT1}, {S1_OFF}')
A('v_lshlrev_b32 v9, 8, v1')
A('v_cmp_gt_u32 vcc, 2, v1')
A('v_cndmask_b32 v9, v8, v9, vcc')
A(f'buffer_store_dwordx2 v[12:13], v9, {sWS}, {sT1} offen sc1')
A(f's_cmp_ge_u32 {sS}, 14')
A('s_cbranch_scc1 L_noclr2')
A(f's_mul_i32 {sT1}, {sJ}, 1792')
A(f's_lshl_b32 {sT2}, {sN}, 8')
A(f's_add_u32 {sT1}, {sT1}, {sT2}')
A(f's_add_u32 {sT1}, {sT1}, {P2_OFF}')
A('v_cmp_gt_u32 vcc, 16, v1')
A('v_cndmask_b32 v9, v8, v3, vcc')
A(f'buffer_store_dwordx4 v[12:15], v9, {sWS}, {sT1} offen sc1')
A.label('L_noclr2')
A(f's_sub_u32 {sT0}, {sS}, 16')
A(f's_cmp_ge_u32 {sT0}, 7')
A('s_cbranch_scc1 L_noclear')
A(f's_mul_i32 {sT1}, {sF}, 1792')
A(f's_add_u32 {sT1}, {sT1}, {P3_OFF}')
A('v_cmp_gt_u32 vcc, 48, v1')
A('v_cndmask_b32 v9, v8, v3, vcc')
A(f'buffer_store_dwordx4 v[12:15], v3, {sWS}, {sT1} offen sc1')
A(f'buffer_store_dwordx4 v[12:15], v9, {sWS}, {sT1} offen offset:1024 sc1')
A.label('L_noclear')

A(f's_cmp_ge_u32 {sS}, 14')
A('s_cbranch_scc1 L_nowold')
A('v_lshrrev_b32 v9, 3, v1')
A('v_mul_u32_u24 v9, 896, v9')
A('v_and_b32 v10, 7, v1')
A('v_lshl_add_u32 v9, v10, 4, v9')
A(f's_lshl_b32 {sT0}, {sJ}, 8')
A(f's_lshl_b32 {sT1}, {sW}, 6')
A(f's_add_u32 {sT0}, {sT0}, {sT1}')
A(f's_mul_i32 {sT0}, {sT0}, 896')
A(f's_lshl_b32 {sT1}, {sN}, 7')
A(f's_add_u32 {sT0}, {sT0}, {sT1}')
for i in range(8):
    A(f'buffer_load_dwordx4 v[{64+4*i}:{67+4*i}], v9, {sWO}, {sT0} offen nt')
    if i<7: A(f's_add_u32 {sT0}, {sT0}, {8*896}')
A.label('L_nowold')
A(f's_cmp_lt_u32 {sS}, 16')
A('s_cbranch_scc1 L_noqld')
A(f'buffer_load_dwordx4 v[60:63], v3, {sX}, 0 offen')
A('v_lshrrev_b32 v9, 2, v1')
A('v_lshlrev_b32 v9, 13, v9')
A('v_and_b32 v10, 3, v1')
A('v_lshl_add_u32 v9, v10, 4, v9')
A(f's_mul_i32 {sT0}, {sW}, {7*131072}')
A(f's_lshl_b32 {sT1}, {sH}, 10')
A(f's_add_u32 {sT0}, {sT0}, {sT1}')
A(f's_sub_u32 {sT1}, {sS}, 16')
A(f's_lshl_b32 {sT1}, {sT1}, 6')
A(f's_add_u32 {sT0}, {sT0}, {sT1}')
for i in range(7):
    A(f'buffer_load_dwordx4 v[{32+4*i}:{35+4*i}], v9, {sWQ}, {sT0} offen nt')
    if i<6: A(f's_add_u32 {sT0}, {sT0}, 131072')
A.label('L_noqld')

def kload(n):
    blk,c=divmod(n,8)
    if c==0 and blk>0: A(f's_add_u32 {sKB}, {sKB}, 8192')
    A(f'buffer_load_dwordx4 a[{4*n}:{4*n+3}], v2, {sK}, {sKB} offen offset:{c*64} nt')
def vload(n):
    g,c=divmod(n,4)
    if c==0 and g>0: A(f's_add_u32 {sVB}, {sVB}, 4096')
    A(f'buffer_load_dwordx4 v[{128+4*n}:{131+4*n}], v3, {sV}, {sVB} offen offset:{c*1024} nt')
def pace(): A(f's_waitcnt vmcnt({D-1})')

for n in range(8): kload(n)

A(f's_cmp_lt_u32 {sS}, 16')
A('s_cbranch_scc1 L_noq')
A('s_waitcnt vmcnt(8)')
for k in range(4): unpack(f'v{60+k}', 112+2*k)
A('v_add_f32 v9, v112, v113')
for k in range(2,8): A(f'v_add_f32 v9, v9, v{112+k}')
allreduce('add',9,10)
A(f'v_mul_f32 v9, {hex(f2u(1.0/448))}, v9')
A('v_mov_b32 v11, 0')
for k in range(8):
    A(f'v_sub_f32 v10, v{112+k}, v9')
    A(f'v_fmac_f32 v11, v10, v10')
A('v_cmp_gt_u32 vcc, 56, v1')
A('v_cndmask_b32 v11, 0, v11, vcc')
allreduce('add',11,10)
A(f'v_mul_f32 v11, {hex(f2u(1.0/448))}, v11')
layernorm_consts(9,11,10)
for k in range(8):
    A(f'v_sub_f32 v{112+k}, v{112+k}, v9')
    bf16round(112+k)
    fdiv(120+k,112+k,11,10,12)
    bf16round(120+k)
A('v_lshlrev_b32 v12, 5, v1')
A('v_cmp_gt_u32 vcc, 56, v1')
A('s_and_saveexec_b64 s[98:99], vcc')
A(f'ds_write_b128 v12, v[120:123] offset:{L_XN}')
A(f'ds_write_b128 v12, v[124:127] offset:{L_XN+16}')
A('s_mov_b64 exec, s[98:99]')
A('v_lshrrev_b32 v12, 2, v1')
A('v_lshlrev_b32 v12, 2, v12')
A(f's_mul_i32 {sT0}, {sW}, 448')
A(f'v_add_u32 v12, {sT0}, v12')
A('s_waitcnt lgkmcnt(0)')
for i in range(7): A(f'ds_read_b32 v{16+i}, v12 offset:{L_XN+i*64}')
for k in range(8): A(f'v_mov_b32 v{96+k}, 0')
A('s_waitcnt lgkmcnt(0)')
for i in range(7):
    for k in range(4):
        unpack(f'v{32+4*i+k}', 112+2*k)
    for k in range(8):
        A(f'v_fmac_f32 v{96+k}, v{112+k}, v{16+i}')
for m in ('row_ror:8','row_ror:4'):
    for k in range(8):
        A(f'v_add_f32_dpp v{96+k}, v{96+k}, v{96+k} {m} row_mask:0xf bank_mask:0xf')
A('v_and_b32 v12, 3, v1')
A('v_lshlrev_b32 v12, 5, v12')
A('v_lshl_add_u32 v12, v7, 7, v12')
A(f's_lshl_b32 {sT0}, {sW}, 9')
A(f'v_add_u32 v12, {sT0}, v12')
A(f'ds_write_b128 v12, v[96:99] offset:{L_QRED}')
A(f'ds_write_b128 v12, v[100:103] offset:{L_QRED+16}')
A('s_waitcnt lgkmcnt(0)')
A('s_barrier')
A(f's_cmp_lg_u32 {sW}, 0')
A('s_cbranch_scc1 L_noq')
A('v_and_b32 v12, 31, v1')
A('v_lshlrev_b32 v12, 2, v12')
for k in range(16): A(f'ds_read_b32 v{16+k}, v12 offset:{L_QRED+k*128}')
A('s_waitcnt lgkmcnt(0)')
for k in range(1,16): A(f'v_add_f32 v16, v16, v{16+k}')
A('v_mov_b32_dpp v17, v16 quad_perm:[1,0,3,2] row_mask:0xf bank_mask:0xf')
A('v_cvt_pk_bf16_f32 v16, v16, v17')
A('v_and_b32 v12, 33, v1')
A('v_cmp_eq_u32 vcc, 0, v12')
A('v_lshlrev_b32 v12, 1, v1')
A('v_cndmask_b32 v12, v8, v12, vcc')
A(f's_lshl_b32 {sT0}, {sH}, 10')
A(f's_sub_u32 {sT1}, {sS}, 16')
A(f's_lshl_b32 {sT1}, {sT1}, 6')
A(f's_add_u32 {sT0}, {sT0}, {sT1}')
A(f's_add_u32 {sT0}, {sT0}, {Q_OFF}')
A(f'buffer_store_dword v16, v12, {sWS}, {sT0} offen sc1')
A.label('L_noq')

FLAGPOS=8+D+1
assert FLAGPOS<=28
for n in range(8,32):
    pace(); kload(n)
    if n==FLAGPOS:
        A(f's_cmp_lg_u32 {sW}, 0')
        A('s_cbranch_scc1 L_noflag')
        A('v_mov_b32 v12, 1')
        A('v_cmp_eq_u32 vcc, 0, v1')
        A('v_cndmask_b32 v13, v8, v1, vcc')
        A(f's_lshl_b32 {sT0}, {sH}, 5')
        A(f's_add_u32 {sT0}, {sT0}, {sS}')
        A(f'buffer_store_byte v12, v13, {sDB}, {sT0} offen sc1')
        A.nvm-=1
        A.label('L_noflag')
    if n==29:
        A(f's_lshl_b32 {sC0}, {sH}, 5')
        A(f's_add_u32 {sC0}, {sC0}, 16')
        A('v_mov_b32 v5, 0')
        pace()
        A(f'buffer_load_dwordx4 v[12:15], v5, {sDB}, {sC0} offen sc1')
        posF=A.nvm
NV1=D-2
for n in range(NV1):
    pace(); vload(n)
A(f's_waitcnt vmcnt({A.nvm-posF})')
A.label('L_fchk')
A('v_and_b32 v12, v12, v13')
A('v_and_b32 v14, v14, v15')
A('v_and_b32 v12, v12, v14')
A('v_cmp_ne_u32 vcc, 0x01010101, v12')
A('s_nop 1')
A('s_cbranch_vccz L_fok')
guard('L_fok')
A('s_sleep 4')
A(f'buffer_load_dwordx4 v[12:15], v5, {sDB}, {sC0} offen sc1')
A.nvm-=1
A('s_waitcnt vmcnt(0)')
A('s_branch L_fchk')
A.label('L_fok')
A(f's_lshl_b32 {sT0}, {sH}, 10')
A(f's_add_u32 {sT0}, {sT0}, {Q_OFF}')
for c in range(8):
    pace()
    A(f'buffer_load_dwordx4 v[{32+4*c}:{35+4*c}], v4, {sWS}, {sT0} offen offset:{c*64} sc1')
posQ=A.nvm
NV2=min(32,NV1+D)
for n in range(NV1,NV2):
    pace(); vload(n)
A(f's_waitcnt vmcnt({A.nvm-posQ})')
vpos={}
for n in range(NV2,32):
    vload(n)
A('v_lshlrev_b32 v9, 2, v1')
A(f'buffer_load_dword v127, v9, {sDB}, 0 offen sc1')
nvm_end=A.nvm
def younger(n):
    if n>=NV2: return (31-n)+1
    return (32-NV2)+1
for blk in range(4):
    for c in range(8):
        n=blk*8+c
        cin = '0' if c==0 else f'v[{16+4*blk}:{19+4*blk}]'
        A(f'v_mfma_f32_16x16x32_bf16 v[{16+4*blk}:{19+4*blk}], a[{4*n}:{4*n+3}], v[{32+4*c}:{35+4*c}], {cin}')
for k in range(0,16,2):
    A(f'v_cvt_pk_bf16_f32 v{112}, v{16+k}, v{17+k}')
    A(f'v_lshlrev_b32 v{16+k}, 16, v112')
    A(f'v_and_b32 v{17+k}, 0xffff0000, v112')
for k in range(16):
    A(f'v_mul_f32 v{16+k}, {hex(f2u(0.0625*LOG2E))}, v{16+k}')
A('v_max_f32 v9, v16, v17')
for k in range(2,16,2): A(f'v_max3_f32 v9, v9, v{16+k}, v{17+k}')
allreduce('max',9,10,lo=False)
for k in range(16):
    A(f'v_sub_f32 v{16+k}, v{16+k}, v9')
for k in range(16):
    A(f'v_exp_f32 v{16+k}, v{16+k}')
A('v_add_f32 v11, v16, v17')
for k in range(2,16): A(f'v_add_f32 v11, v11, v{16+k}')
allreduce('add',11,10,lo=False)
A('v_and_b32 v12, 15, v1')
A('v_lshlrev_b32 v13, 2, v12')
A('v_lshl_add_u32 v13, v7, 5, v13')
A(f's_lshl_b32 {sT0}, {sW}, 9')
A(f'v_add_u32 v13, {sT0}, v13')
A('v_cmp_gt_u32 vcc, 2, v12')
A('s_and_saveexec_b64 s[98:99], vcc')
for blk in range(4):
    for r in range(4):
        A(f'ds_write_b32 v13, v{16+4*blk+r} offset:{L_P+blk*128+r*8}')
A('v_lshlrev_b32 v12, 2, v12')
A(f's_lshl_b32 {sT0}, {sW}, 4')
A(f'v_add_u32 v12, {sT0}, v12')
A(f'ds_write_b32 v12, v9 offset:{L_ST}')
A(f'ds_write_b32 v12, v11 offset:{L_ST+8}')
A('s_mov_b64 exec, s[98:99]')
A('v_lshrrev_b32 v13, 5, v1')
A('v_lshlrev_b32 v13, 3, v13')
A(f's_lshl_b32 {sT0}, {sW}, 9')
A(f'v_add_u32 v13, {sT0}, v13')
for k in range(16): A(f'v_mov_b32 v{96+k}, 0')
A('s_waitcnt lgkmcnt(0)')
for half in range(2):
    for i in range(16):
        n=half*16+i
        A(f'ds_read_b64 v[{32+2*i}:{33+2*i}], v13 offset:{L_P+n*16}')
    for i in range(16):
        n=half*16+i
        if n>=NV1:
            if n>=NV2: y=(31-n)+1
            else: y=(NV2-1-n)+(32-NV2)+1
            A(f's_waitcnt vmcnt({y}) lgkmcnt({15-i})')
        else:
            A(f's_waitcnt lgkmcnt({15-i})')
        for k in range(4):
            unpack(f'v{128+4*n+k}', 112+2*k)
        for k in range(4):
            A(f'v_pk_fma_f32 v[{96+2*k}:{97+2*k}], v[{112+2*k}:{113+2*k}], v[{32+2*i}:{33+2*i}], v[{96+2*k}:{97+2*k}] op_sel_hi:[1,0,1]')
        for k in range(4):
            A(f'v_pk_fma_f32 v[{104+2*k}:{105+2*k}], v[{112+2*k}:{113+2*k}], v[{32+2*i}:{33+2*i}], v[{104+2*k}:{105+2*k}] op_sel:[0,1,0] op_sel_hi:[1,1,1]')
for e in range(8):
    A(f'v_permlane32_swap_b32 v{96+e}, v{104+e}')
for e in range(8):
    A(f'v_add_f32 v{96+e}, v{96+e}, v{104+e}')
A('v_lshlrev_b32 v12, 5, v1')
A(f's_lshl_b32 {sT0}, {sW}, 11')
A(f'v_add_u32 v12, {sT0}, v12')
A(f'ds_write_b128 v12, v[96:99] offset:{L_OW}')
A(f'ds_write_b128 v12, v[100:103] offset:{L_OW+16}')
A('s_waitcnt lgkmcnt(0)')
A('s_barrier')
A(f's_cmp_ge_u32 {sW}, 2')
A('s_cbranch_scc1 L_nopub')
A(f's_lshl_b32 {sT0}, {sW}, 2')
A(f'v_mov_b32 v12, {sT0}')
for w in range(4):
    A(f'ds_read_b32 v{16+w}, v12 offset:{L_ST+16*w}')
    A(f'ds_read_b32 v{20+w}, v12 offset:{L_ST+16*w+8}')
A(f's_lshl_b32 {sT0}, {sW}, 10')
A(f'v_add_u32 v13, {sT0}, v3')
for w in range(4):
    A(f'ds_read_b128 v[{32+4*w}:{35+4*w}], v13 offset:{L_OW+2048*w}')
A('s_waitcnt lgkmcnt(4)')
A('v_max_f32 v10, v16, v17')
A('v_max3_f32 v10, v10, v18, v19')
for w in range(4): A(f'v_sub_f32 v{16+w}, v{16+w}, v10')
for w in range(4): A(f'v_exp_f32 v{16+w}, v{16+w}')
A('v_mul_f32 v11, v16, v20')
for w in range(1,4): A(f'v_fmac_f32 v11, v{16+w}, v{20+w}')
A('s_waitcnt lgkmcnt(0)')
for e in range(4): A(f'v_mul_f32 v{96+e}, v{32+e}, v16')
for w in range(1,4):
    for e in range(4): A(f'v_fmac_f32 v{96+e}, v{32+4*w+e}, v{16+w}')
for e in range(4): A(f'v_min_u32 v{96+e}, 0xfffffffe, v{96+e}')
A('v_min_u32 v10, 0xfffffffe, v10')
A('v_min_u32 v11, 0xfffffffe, v11')
A(f's_lshl_b32 {sT0}, {sH}, 1')
A(f's_add_u32 {sT0}, {sT0}, {sW}')
A(f's_lshl_b32 {sT0}, {sT0}, 5')
A(f's_add_u32 {sT0}, {sT0}, {sS}')
A(f's_lshl_b32 {sT1}, {sT0}, 10')
A(f's_add_u32 {sT1}, {sT1}, {O1_OFF}')
A(f'buffer_store_dwordx4 v[96:99], v3, {sWS}, {sT1} offen sc1')
A(f's_lshl_b32 {sT1}, {sT0}, 3')
A(f's_add_u32 {sT1}, {sT1}, {S1_OFF}')
A('v_cmp_eq_u32 vcc, 0, v1')
A('v_cndmask_b32 v13, v8, v1, vcc')
A(f'buffer_store_dwordx2 v[10:11], v13, {sWS}, {sT1} offen sc1')
A.label('L_nopub')

A(f's_cmp_lt_u32 {sS}, 14')
A('s_cbranch_scc1 L_wo')
A(f's_sub_u32 {sT0}, {sS}, 16')
A(f's_cmp_lt_u32 {sT0}, 7')
A('s_cbranch_scc1 L_ffn')
A(f's_cmp_lg_u32 {sS}, 14')
A('s_cbranch_scc1 L_end')
A(f's_cmp_ge_u32 {sH}, 7')
A('s_cbranch_scc1 L_end')
A(f's_cmp_lg_u32 {sW}, 0')
A('s_cbranch_scc1 L_end')
A('s_branch L_fin')

def allflags(tag):
    A('s_waitcnt vmcnt(0)')
    A.label(f'L_afchk{tag}')
    A('v_cmp_ne_u32 vcc, 0x01010101, v127')
    A('s_nop 1')
    A(f's_cbranch_vccz L_afok{tag}')
    guard(f'L_afok{tag}')
    A('s_sleep 4')
    A('v_lshlrev_b32 v9, 2, v1')
    A(f'buffer_load_dword v127, v9, {sDB}, 0 offen sc1')
    A('s_waitcnt vmcnt(0)')
    A(f's_branch L_afchk{tag}')
    A.label(f'L_afok{tag}')

A.label('L_wo')
allflags('w')
A('v_lshlrev_b32 v9, 3, v7')
A('v_and_b32 v10, 15, v1')
A('v_lshlrev_b32 v10, 4, v10')
A('v_lshl_add_u32 v10, v7, 10, v10')
A(f's_lshl_b32 {sC0}, {sJ}, 8')
A(f's_add_u32 {sC0}, {sC0}, {S1_OFF}')
A(f's_lshl_b32 {sC1}, {sJ}, 15')
A(f's_lshl_b32 {sT0}, {sW}, 8')
A(f's_add_u32 {sC1}, {sC1}, {sT0}')
A(f's_add_u32 {sC1}, {sC1}, {O1_OFF}')
def wo_poll_issue():
    for i in range(8):
        A(f'buffer_load_dwordx2 v[{192+2*i}:{193+2*i}], v9, {sWS}, {sC0} offen offset:{32*i} sc1')
    A(f's_mov_b32 {sT0}, {sC1}')
    for i in range(8):
        A(f'buffer_load_dwordx4 v[{208+4*i}:{211+4*i}], v10, {sWS}, {sT0} offen sc1')
        if i<7: A(f's_add_u32 {sT0}, {sT0}, 4096')
wo_poll_issue()
for i in range(32): unpack(f'v{64+i}', 128+2*i)
A.label('L_wopoll')
A('s_waitcnt vmcnt(0)')
sentinel_check(range(192,240), 11, 'L_wore')
A('s_branch L_wogo')
A.label('L_wore')
guard('L_wogo')
A('s_sleep 2')
wo_poll_issue()
A('s_branch L_wopoll')
A.label('L_wogo')
A('v_max_f32 v11, v192, v194')
for i in range(2,8,2): A(f'v_max3_f32 v11, v11, v{192+2*i}, v{194+2*i}')
allreduce('max',11,12,lo=False)
for i in range(8): A(f'v_sub_f32 v{192+2*i}, v{192+2*i}, v11')
for i in range(8): A(f'v_exp_f32 v{192+2*i}, v{192+2*i}')
A('v_mul_f32 v11, v192, v193')
for i in range(1,8): A(f'v_fmac_f32 v11, v{192+2*i}, v{193+2*i}')
allreduce('add',11,12,lo=False)
A('v_rcp_f32 v12, v11')
for e in range(4): A(f'v_mul_f32 v{16+e}, v{208+e}, v192')
for i in range(1,8):
    for e in range(4): A(f'v_fmac_f32 v{16+e}, v{208+4*i+e}, v{192+2*i}')
for e in range(4): allreduce('add',16+e,20+e,lo=False)
for e in range(4):
    fdiv(24+e,16+e,11,12,20+e)
    bf16round(24+e)
A('v_and_b32 v13, 15, v1')
A('v_lshlrev_b32 v13, 4, v13')
A(f's_lshl_b32 {sT0}, {sW}, 8')
A(f'v_add_u32 v13, {sT0}, v13')
A(f'ds_write_b128 v13, v[24:27] offset:{L_OV}')
A('v_lshrrev_b32 v13, 3, v1')
A('v_lshlrev_b32 v13, 2, v13')
A(f'v_add_u32 v13, {sT0}, v13')
A('s_waitcnt lgkmcnt(0)')
for i in range(8): A(f'ds_read_b32 v{32+2*i}, v13 offset:{L_OV+32*i}')
for k in range(8): A(f'v_mov_b32 v{96+k}, 0')
for i in range(8):
    A(f's_waitcnt lgkmcnt({7-i})')
    for k in range(4):
        A(f'v_pk_fma_f32 v[{96+2*k}:{97+2*k}], v[{128+8*i+2*k}:{129+8*i+2*k}], v[{32+2*i}:{33+2*i}], v[{96+2*k}:{97+2*k}] op_sel_hi:[1,0,1]')
for k in range(8):
    A(f'v_add_f32_dpp v{96+k}, v{96+k}, v{96+k} row_ror:8 row_mask:0xf bank_mask:0xf')
A('v_and_b32 v13, 7, v1')
A('v_lshlrev_b32 v13, 5, v13')
A('v_lshl_add_u32 v13, v7, 8, v13')
A(f's_lshl_b32 {sT0}, {sW}, 10')
A(f'v_add_u32 v13, {sT0}, v13')
A(f'ds_write_b128 v13, v[96:99] offset:{L_RED2}')
A(f'ds_write_b128 v13, v[100:103] offset:{L_RED2+16}')
A('s_waitcnt lgkmcnt(0)')
A('s_barrier')
A(f's_cmp_lg_u32 {sW}, 0')
A('s_cbranch_scc1 L_end')
A('v_lshlrev_b32 v13, 2, v1')
for k in range(16): A(f'ds_read_b32 v{16+k}, v13 offset:{L_RED2+256*k}')
A('s_waitcnt lgkmcnt(0)')
for st in (8,4,2,1):
    for k in range(st): A(f'v_add_f32 v{16+k}, v{16+k}, v{16+k+st}')
A('v_min_u32 v16, 0xfffffffe, v16')
A(f's_mul_i32 {sT1}, {sJ}, 1792')
A(f's_lshl_b32 {sT2}, {sN}, 8')
A(f's_add_u32 {sT1}, {sT1}, {sT2}')
A(f's_add_u32 {sT1}, {sT1}, {P2_OFF}')
A(f'buffer_store_dword v16, v13, {sWS}, {sT1} offen sc1')
A('s_branch L_end')

A.label('L_ffn')
A('v_lshrrev_b32 v9, 2, v1')
A('v_mul_u32_u24 v9, 3584, v9')
A('v_and_b32 v10, 3, v1')
A('v_lshl_add_u32 v9, v10, 4, v9')
A(f's_mul_i32 {sT0}, {sW}, {112*3584}')
A(f's_lshl_b32 {sT1}, {sF}, 6')
A(f's_add_u32 {sT0}, {sT0}, {sT1}')
for i in range(7):
    A(f'buffer_load_dwordx4 a[{4*i}:{4*i+3}], v9, {sWG}, {sT0} offen nt')
    A(f'buffer_load_dwordx4 a[{28+4*i}:{31+4*i}], v9, {sWU}, {sT0} offen nt')
    if i<6: A(f's_add_u32 {sT0}, {sT0}, {16*3584}')
A('v_cmp_gt_u32 vcc, 56, v1')
A('v_cndmask_b32 v10, v8, v3, vcc')
A(f's_lshl_b32 {sT0}, {sF}, 5')
A(f's_lshl_b32 {sT1}, {sW}, 3')
A(f's_add_u32 {sT0}, {sT0}, {sT1}')
A(f's_mul_i32 {sT0}, {sT0}, 896')
for i in range(8):
    A(f'buffer_load_dwordx4 a[{56+4*i}:{59+4*i}], v10, {sWD}, {sT0} offen nt')
    if i<7: A(f's_add_u32 {sT0}, {sT0}, 896')
A('v_and_b32 v11, 31, v1')
A('v_cmp_gt_u32 vcc, 28, v11')
A('v_lshlrev_b32 v12, 3, v11')
A('v_cndmask_b32 v12, v8, v12, vcc')
A(f's_mul_i32 {sT0}, {sW}, 224')
A(f'buffer_load_dwordx2 v[48:49], v12, {sX}, {sT0} offen')
A('v_lshlrev_b32 v14, 4, v11')
A('v_lshrrev_b32 v12, 5, v1')
A('v_mul_u32_u24 v12, 1792, v12')
A('v_add_u32 v14, v14, v12')
A('v_cndmask_b32 v14, v8, v14, vcc')
allflags('f')
for i in range(28):
    A(f'v_accvgpr_read_b32 v9, a{i}'); unpack('v9',128+2*i)
for i in range(28):
    A(f'v_accvgpr_read_b32 v9, a{28+i}'); unpack('v9',184+2*i)
for i in range(32):
    A(f'v_accvgpr_read_b32 v9, a{56+i}'); unpack('v9',64+2*i)
unpack('v48',50); unpack('v49',52)
A(f's_mul_i32 {sC0}, {sW}, 448')
A(f's_add_u32 {sC0}, {sC0}, {P2_OFF}')
A.label('L_ffpoll')
A(f's_mov_b32 {sT0}, {sC0}')
for i in range(8):
    A(f'buffer_load_dwordx4 v[{16+4*i}:{19+4*i}], v14, {sWS}, {sT0} offen sc1')
    if i<7: A(f's_add_u32 {sT0}, {sT0}, 3584')
A('s_waitcnt vmcnt(0)')
sentinel_check(range(16,48), 9, 'L_ffre')
A('s_branch L_ffgo')
A.label('L_ffre')
guard('L_ffgo')
A('s_sleep 2')
A('s_branch L_ffpoll')
A.label('L_ffgo')
for st in (16,8,4):
    for k in range(st): A(f'v_add_f32 v{16+k}, v{16+k}, v{16+k+st}')
for e in range(4): allreduce('add',16+e,20+e,lo=False,x16=False)
for e in range(4):
    bf16round(16+e)
    A(f'v_add_f32 v{16+e}, v{16+e}, v{50+e}')
    bf16round(16+e)
A('v_add_f32 v9, v16, v17')
A('v_add_f32 v10, v18, v19')
A('v_add_f32 v9, v9, v10')
allreduce('add',9,10)
A(f'v_mul_f32 v9, {hex(f2u(1.0/224))}, v9')
A('v_mov_b32 v11, 0')
for e in range(4):
    A(f'v_sub_f32 v10, v{16+e}, v9')
    A('v_fmac_f32 v11, v10, v10')
A('v_and_b32 v12, 31, v1')
A('v_cmp_gt_u32 vcc, 28, v12')
A('v_cndmask_b32 v11, 0, v11, vcc')
allreduce('add',11,10)
A('v_mul_f32 v11, 0.5, v11')
A('v_mov_b32 v10, v9')
A(f's_lshl_b32 {sT0}, {sW}, 3')
A(f'v_mov_b32 v12, {sT0}')
A(f'ds_write_b64 v12, v[10:11] offset:{L_ST3}')
A('s_waitcnt lgkmcnt(0)')
A('s_barrier')
A('v_mov_b32 v12, 0')
A(f'ds_read_b128 v[20:23], v12 offset:{L_ST3}')
A(f'ds_read_b128 v[24:27], v12 offset:{L_ST3+16}')
A('s_waitcnt lgkmcnt(0)')
A('v_add_f32 v9, v20, v22')
A('v_add_f32 v10, v24, v26')
A('v_add_f32 v9, v9, v10')
A('v_mul_f32 v9, 0.25, v9')
A('v_add_f32 v11, v21, v23')
A('v_add_f32 v10, v25, v27')
A('v_add_f32 v11, v11, v10')
A('v_mov_b32 v13, 0')
for r in (20,22,24,26):
    A(f'v_sub_f32 v10, v{r}, v9')
    A('v_fmac_f32 v13, v10, v10')
A(f'v_mov_b32 v10, {hex(f2u(112.0))}')
A('v_fmac_f32 v11, v13, v10')
A(f'v_mul_f32 v11, {hex(f2u(1.0/448))}, v11')
layernorm_consts(9,11,10)
for e in range(4):
    A(f'v_sub_f32 v{20+e}, v{16+e}, v9')
    bf16round(20+e)
    fdiv(24+e,20+e,11,10,12)
    bf16round(24+e)
A('v_and_b32 v12, 31, v1')
A('v_cmp_gt_u32 vcc, 28, v12')
A('v_lshlrev_b32 v12, 4, v12')
A(f's_mul_i32 {sT0}, {sW}, 448')
A(f'v_add_u32 v12, {sT0}, v12')
A('s_and_saveexec_b64 s[98:99], vcc')
A(f'ds_write_b128 v12, v[24:27] offset:{L_HN}')
A('s_mov_b64 exec, s[98:99]')
A('v_lshrrev_b32 v12, 2, v1')
A('v_lshlrev_b32 v12, 2, v12')
A(f'v_add_u32 v12, {sT0}, v12')
A('s_waitcnt lgkmcnt(0)')
for i in range(7): A(f'ds_read_b32 v{32+2*i}, v12 offset:{L_HN+64*i}')
for k in range(16): A(f'v_mov_b32 v{16+k}, 0')
for i in range(7):
    A(f's_waitcnt lgkmcnt({6-i})')
    for k in range(4):
        A(f'v_pk_fma_f32 v[{16+2*k}:{17+2*k}], v[{128+8*i+2*k}:{129+8*i+2*k}], v[{32+2*i}:{33+2*i}], v[{16+2*k}:{17+2*k}] op_sel_hi:[1,0,1]')
    for k in range(4):
        A(f'v_pk_fma_f32 v[{24+2*k}:{25+2*k}], v[{184+8*i+2*k}:{185+8*i+2*k}], v[{32+2*i}:{33+2*i}], v[{24+2*k}:{25+2*k}] op_sel_hi:[1,0,1]')
for m in ('row_ror:8','row_ror:4'):
    for k in range(16):
        A(f'v_add_f32_dpp v{16+k}, v{16+k}, v{16+k} {m} row_mask:0xf bank_mask:0xf')
A('v_and_b32 v13, 3, v1')
A('v_lshlrev_b32 v13, 5, v13')
A('v_lshl_add_u32 v13, v7, 8, v13')
A(f's_lshl_b32 {sT0}, {sW}, 10')
A(f'v_add_u32 v13, {sT0}, v13')
A(f'ds_write_b128 v13, v[16:19] offset:{L_RED3}')
A(f'ds_write_b128 v13, v[20:23] offset:{L_RED3+16}')
A(f'ds_write_b128 v13, v[24:27] offset:{L_RED3+128}')
A(f'ds_write_b128 v13, v[28:31] offset:{L_RED3+144}')
A('s_waitcnt lgkmcnt(0)')
A('s_barrier')
A('v_lshlrev_b32 v13, 2, v1')
for k in range(16): A(f'ds_read_b32 v{16+k}, v13 offset:{L_RED3+256*k}')
A('s_waitcnt lgkmcnt(0)')
for st in (8,4,2,1):
    for k in range(st): A(f'v_add_f32 v{16+k}, v{16+k}, v{16+k+st}')
bf16round(16)
A('v_mov_b32 v17, v16')
A('v_permlane32_swap_b32 v16, v17')
A('v_mul_f32 v18, v16, v16')
A(f'v_mov_b32 v19, {hex(f2u(0.044715))}')
A('v_fma_f32 v18, v18, v19, 1.0')
A('v_mul_f32 v18, v18, v16')
A(f'v_mul_f32 v18, {hex(f2u(2.0*0.7978845608028654*LOG2E))}, v18')
A('v_exp_f32 v18, v18')
A('v_add_f32 v18, 1.0, v18')
A('v_rcp_f32 v18, v18')
A('v_fma_f32 v18, v18, -2.0, 2.0')
A('v_mul_f32 v18, v18, v16')
A('v_mul_f32 v18, 0.5, v18')
bf16round(18)
A('v_mul_f32 v18, v18, v17')
bf16round(18)
A(f's_lshl_b32 {sT0}, {sW}, 3')
for i in range(8):
    A(f'v_readlane_b32 s{sA0+i}, v18, {sT0}')
    if i<7: A(f's_add_u32 {sT0}, {sT0}, 1')
for i in range(8): A(f'v_mov_b32 v{32+2*i}, s{sA0+i}')
for k in range(8): A(f'v_mov_b32 v{16+k}, 0')
for i in range(8):
    for k in range(4):
        A(f'v_pk_fma_f32 v[{16+2*k}:{17+2*k}], v[{64+8*i+2*k}:{65+8*i+2*k}], v[{32+2*i}:{33+2*i}], v[{16+2*k}:{17+2*k}] op_sel_hi:[1,0,1]')
A('v_lshlrev_b32 v13, 5, v1')
A(f's_mul_i32 {sT0}, {sW}, 1792')
A(f'v_add_u32 v13, {sT0}, v13')
A('v_cmp_gt_u32 vcc, 56, v1')
A('s_and_saveexec_b64 s[98:99], vcc')
A(f'ds_write_b128 v13, v[16:19] offset:{L_RED4}')
A(f'ds_write_b128 v13, v[20:23] offset:{L_RED4+16}')
A('s_mov_b64 exec, s[98:99]')
A('s_waitcnt lgkmcnt(0)')
A('s_barrier')
A(f's_cmp_ge_u32 {sW}, 2')
A('s_cbranch_scc1 L_end')
A(f's_lshl_b32 {sT0}, {sW}, 10')
A(f'v_add_u32 v13, {sT0}, v3')
A('v_cmp_gt_u32 vcc, 1792, v13')
A('v_cndmask_b32 v12, v8, v13, vcc')
A('v_cndmask_b32 v13, 0, v13, vcc')
for w in range(4): A(f'ds_read_b128 v[{16+4*w}:{19+4*w}], v13 offset:{L_RED4+1792*w}')
A('s_waitcnt lgkmcnt(0)')
for e in range(4):
    A(f'v_add_f32 v{16+e}, v{16+e}, v{20+e}')
    A(f'v_add_f32 v{24+e}, v{24+e}, v{28+e}')
for e in range(4):
    A(f'v_add_f32 v{16+e}, v{16+e}, v{24+e}')
    A(f'v_min_u32 v{16+e}, 0xfffffffe, v{16+e}')
A(f's_mul_i32 {sT1}, {sF}, 1792')
A(f's_add_u32 {sT1}, {sT1}, {P3_OFF}')
A(f'buffer_store_dwordx4 v[16:19], v12, {sWS}, {sT1} offen sc1')
A('s_branch L_end')

A.label('L_fin')
A('v_and_b32 v11, 15, v1')
A('v_lshlrev_b32 v12, 3, v11')
A(f's_lshl_b32 {sT0}, {sH}, 7')
A(f'buffer_load_dwordx2 v[48:49], v12, {sX}, {sT0} offen')
A('v_lshlrev_b32 v14, 4, v11')
A('v_mul_u32_u24 v10, 1792, v7')
A('v_add_u32 v14, v14, v10')
allflags('z')
unpack('v48',50); unpack('v49',52)
A(f's_lshl_b32 {sC0}, {sH}, 8')
A(f's_add_u32 {sC1}, {sC0}, {P3_OFF}')
A(f's_add_u32 {sC0}, {sC0}, {P2_OFF}')
A.label('L_f2poll')
A(f's_mov_b32 {sT0}, {sC0}')
for i in range(4):
    A(f'buffer_load_dwordx4 v[{16+4*i}:{19+4*i}], v14, {sWS}, {sT0} offen sc1')
    if i<3: A(f's_add_u32 {sT0}, {sT0}, 7168')
A('s_waitcnt vmcnt(0)')
sentinel_check(range(16,32), 9, 'L_f2re')
A('s_branch L_f2go')
A.label('L_f2re')
guard('L_f2go')
A('s_sleep 2')
A('s_branch L_f2poll')
A.label('L_f2go')
for st in (8,4):
    for k in range(st): A(f'v_add_f32 v{16+k}, v{16+k}, v{16+k+st}')
for e in range(4): allreduce('add',16+e,20+e,lo=False)
for e in range(4):
    bf16round(16+e)
    A(f'v_add_f32 v{16+e}, v{16+e}, v{50+e}')
    bf16round(16+e)
A.label('L_f3poll')
A(f's_mov_b32 {sT0}, {sC1}')
for i in range(14):
    A(f'buffer_load_dwordx4 v[{64+4*i}:{67+4*i}], v14, {sWS}, {sT0} offen sc1')
    if i<13: A(f's_add_u32 {sT0}, {sT0}, 7168')
A('s_waitcnt vmcnt(0)')
sentinel_check(range(64,120), 9, 'L_f3re')
A('s_branch L_f3go')
A.label('L_f3re')
guard('L_f3go')
A('s_sleep 1')
A('s_branch L_f3poll')
A.label('L_f3go')
for i in range(7):
    for e in range(4): A(f'v_add_f32 v{64+4*i+e}, v{64+4*i+e}, v{92+4*i+e}')
for i in range(1,7):
    for e in range(4): A(f'v_add_f32 v{64+e}, v{64+e}, v{64+4*i+e}')
for e in range(4): allreduce('add',64+e,20+e,lo=False)
for e in range(4):
    bf16round(64+e)
    A(f'v_add_f32 v{64+e}, v{64+e}, v{16+e}')
A('v_cvt_pk_bf16_f32 v64, v64, v65')
A('v_cvt_pk_bf16_f32 v65, v66, v67')
A('v_cmp_gt_u32 vcc, 16, v1')
A('v_cndmask_b32 v12, v8, v12, vcc')
A(f's_lshl_b32 {sT0}, {sH}, 7')
A(f'buffer_store_dwordx2 v[64:65], v12, {sOUT}, {sT0} offen')
A.label('L_end')
A('s_endpgm')

hdr=open('cdna_kernels/'+NAME+'.s.ref').read().split('; @launch')[0]
out=hdr+f'; @launch grid=(256,1,1) block=(256,1,1) lds={LDS_SIZE}\n'
out+='.amdgcn_target "amdgcn-amd-amdhsa--gfx950"\n.text\n'
out+=f'.globl {NAME}_kernel\n.p2align 8\n.type {NAME}_kernel,@function\n'
out+=A.text()
out+=f'''.section .rodata,"a"
.p2align 6
.amdhsa_kernel {NAME}_kernel
  .amdhsa_next_free_vgpr 384
  .amdhsa_next_free_sgpr 102
  .amdhsa_accum_offset 256
  .amdhsa_group_segment_fixed_size 0
  .amdhsa_kernarg_size 96
  .amdhsa_user_sgpr_count 2
  .amdhsa_user_sgpr_kernarg_segment_ptr 1
  .amdhsa_system_sgpr_workgroup_id_x 1
.end_amdhsa_kernel
'''
open(sys.argv[1],'w').write(out)
print('lines',len(A.lines))
```

```python
import sys, os, struct
from asmlib import Asm

NAME='sequential_preLN__gqa_block_cached__geglu_ffn__decode'
D = int(sys.argv[2]) if len(sys.argv)>2 else 12
STAMP=int(os.environ.get('STAMP','0'))
SPIN=100000

Q_OFF=0x0; S1_OFF=0x2000; O1_OFF=0x4000; P2_OFF=0x84000; P3_OFF=0x8C000; WS_SIZE=0xA4800
STAMP_OFF=0x100000
if STAMP: WS_SIZE=0x200000
OOB=0x80000000
L_XN=0; L_Q=2048; L_P=4096; L_OW=6144; L_ST=14336; L_OV=14400; L_RED2=15424; L_ST3=19520; L_HN=19584
L_CNT=19552; L_FLAG=19556; L_RED3=21376; L_RED4=25472; L_W=32768; LDS_SIZE=32768+88*1024
LOG2E=1.4426950408889634
def f2u(x): return struct.unpack('<I',struct.pack('<f',x))[0]

A=Asm()
sK='s[4:7]'; sV='s[8:11]'; sWS='s[12:15]'; sDB='s[16:19]'; sX='s[20:23]'; sWQ='s[24:27]'; sWO='s[28:31]'
sWG='s[32:35]'; sWU='s[36:39]'; sWD='s[40:43]'; sOUT='s[44:47]'
sH='s72'; sS='s73'; sW='s74'; sT0='s75'; sT1='s76'; sT2='s77'; sT3='s78'; sKB='s79'; sVB='s80'; sJ='s81'; sN='s82'; sF='s83'
sOOB='s84'; sC0='s85'; sC1='s86'; sROLE='s87'; sC3='s88'
sA0=90

def srd(base, p, size):
    A(f's_mov_b32 s{base}, s{p}')
    A(f's_and_b32 s{base+1}, s{p+1}, 0xffff')
    A(f's_mov_b32 s{base+2}, {size}')
    A(f's_mov_b32 s{base+3}, 0x00020000')
def stamp(i):
    if not STAMP: return
    A('s_memrealtime s[100:101]')
    A('s_waitcnt lgkmcnt(0)')
    A(f's_mov_b32 s{48+i}, s100')
def guard(go):
    A('s_add_u32 s89, s89, 1')
    A(f's_cmp_gt_u32 s89, {SPIN}')
    A(f's_cbranch_scc1 {go}')
def allreduce(op, v, t, lo=True, x16=True, x32=True):
    ins = 'v_add_f32' if op=='add' else 'v_max_f32'
    if lo:
        for m in ('quad_perm:[1,0,3,2]','quad_perm:[2,3,0,1]','row_half_mirror','row_mirror'):
            A(f'{ins}_dpp v{v}, v{v}, v{v} {m} row_mask:0xf bank_mask:0xf')
    if x16:
        A(f'v_mov_b32 v{t}, v{v}'); A(f'v_permlane16_swap_b32 v{v}, v{t}'); A(f'{ins} v{v}, v{v}, v{t}')
    if x32:
        A(f'v_mov_b32 v{t}, v{v}'); A(f'v_permlane32_swap_b32 v{v}, v{t}'); A(f'{ins} v{v}, v{v}, v{t}')
def bf16round(v):
    A(f'v_cvt_pk_bf16_f32 v{v}, v{v}, v{v}')
    A(f'v_and_b32 v{v}, 0xffff0000, v{v}')
def unpack(src, dst):
    A(f'v_lshlrev_b32 v{dst}, 16, {src}')
    A(f'v_and_b32 v{dst+1}, 0xffff0000, {src}')
def fdiv(d, num, den, r, t):
    A(f'v_mul_f32 v{d}, v{num}, v{r}')
    A(f'v_fma_f32 v{t}, -v{d}, v{den}, v{num}')
    A(f'v_fma_f32 v{d}, v{t}, v{r}, v{d}')
def sentinel_check(regs, t, fail_label):
    regs=list(regs)
    A(f'v_max_u32 v{t}, v{regs[0]}, v{regs[1]}')
    i=2
    while i<len(regs):
        if i+1<len(regs):
            A(f'v_max3_u32 v{t}, v{t}, v{regs[i]}, v{regs[i+1]}'); i+=2
        else:
            A(f'v_max_u32 v{t}, v{t}, v{regs[i]}'); i+=1
    A(f'v_cmp_eq_u32 vcc, -1, v{t}')
    A('s_nop 1')
    A(f's_cbranch_vccnz {fail_label}')
def layernorm_consts(mean, var, t0):
    bf16round(mean); bf16round(var)
    A(f'v_add_f32 v{var}, {hex(f2u(1e-5))}, v{var}')
    bf16round(var)
    A(f'v_sqrt_f32 v{var}, v{var}')
    bf16round(var)
    A(f'v_rcp_f32 v{t0}, v{var}')
def fma8(acc, raw, mul, tmp):
    for k in range(4): unpack(f'v{raw+k}', tmp+2*k)
    for k in range(4):
        A(f'v_pk_fma_f32 v[{acc+2*k}:{acc+2*k+1}], v[{tmp+2*k}:{tmp+2*k+1}], v[{mul}:{mul+1}], v[{acc+2*k}:{acc+2*k+1}] op_sel_hi:[1,0,1]')

A.raw(f'{NAME}_kernel:')
A('s_cmp_ge_u32 s2, 256')
A('s_cbranch_scc1 L_end')
A('s_load_dwordx16 s[48:63], s[0:1], 0')
A('s_load_dwordx8 s[64:71], s[0:1], 64')
A('v_and_b32 v1, 63, v0')
A('v_lshrrev_b32 v6, 6, v0')
A(f'v_readfirstlane_b32 {sW}, v6')
A(f's_and_b32 {sH}, s2, 7')
A(f's_lshr_b32 {sS}, s2, 3')
A(f's_mov_b32 {sOOB}, {hex(OOB)}')
A('s_mov_b32 s89, 0')
A('v_and_b32 v6, 15, v1')
A('v_lshrrev_b32 v7, 4, v1')
A('v_lshlrev_b32 v2, 9, v6')
A('v_lshl_add_u32 v2, v7, 4, v2')
A('v_lshlrev_b32 v3, 4, v1')
A(f'v_mov_b32 v8, {sOOB}')
A('s_waitcnt lgkmcnt(0)')
srd(4,50,33554432); srd(8,52,33554432); srd(12,70,WS_SIZE); srd(16,68,256); srd(20,48,896)
srd(24,54,3670016); srd(28,56,3670016); srd(32,60,1605632); srd(36,62,1605632); srd(40,64,1605632); srd(44,66,896)
if STAMP:
    for i in range(1,16): A(f's_mov_b32 s{48+i}, 0')
stamp(0)
A(f's_mov_b32 {sROLE}, 0')
A(f's_cmp_lt_u32 {sS}, 14')
A(f's_cselect_b32 {sROLE}, 1, {sROLE}')
A(f's_sub_u32 {sT0}, {sS}, 16')
A(f's_cmp_lt_u32 {sT0}, 7')
A(f's_cselect_b32 {sROLE}, 2, {sROLE}')
A(f's_lshl_b32 {sT0}, {sS}, 3')
A(f's_add_u32 {sT0}, {sT0}, {sH}')
A(f's_sub_u32 {sT0}, {sT0}, 112')
A(f's_cmp_lt_u32 {sT0}, 7')
A(f's_cselect_b32 {sROLE}, 3, {sROLE}')
A(f's_cmp_ge_u32 {sS}, 7')
A(f's_cselect_b32 {sT0}, 1, 0')
A(f's_lshl_b32 {sJ}, {sH}, 1')
A(f's_add_u32 {sJ}, {sJ}, {sT0}')
A(f's_mul_i32 {sT0}, {sT0}, 7')
A(f's_sub_u32 {sN}, {sS}, {sT0}')
A(f's_mul_i32 {sF}, {sH}, 7')
A(f's_add_u32 {sF}, {sF}, {sS}')
A(f's_sub_u32 {sF}, {sF}, 16')
A(f's_cmp_eq_u32 {sW}, 4')
A('s_cbranch_scc1 L_helper')

A(f's_lshl_b32 {sKB}, {sH}, 22')
A(f's_lshl_b32 {sT0}, {sS}, 17')
A(f's_add_u32 {sKB}, {sKB}, {sT0}')
A(f's_lshl_b32 {sT0}, {sW}, 15')
A(f's_add_u32 {sKB}, {sKB}, {sT0}')
A(f's_mov_b32 {sVB}, {sKB}')
VR=64
def kload(n):
    blk,c=divmod(n,8)
    if c==0 and blk>0: A(f's_add_u32 {sKB}, {sKB}, 8192')
    A(f'buffer_load_dwordx4 a[{4*n}:{4*n+3}], v2, {sK}, {sKB} offen offset:{c*64} nt')
def vload(n):
    g,c=divmod(n,4)
    if c==0 and g>0: A(f's_add_u32 {sVB}, {sVB}, 4096')
    r=VR+4*(n%16)
    A(f'buffer_load_dwordx4 v[{r}:{r+3}], v3, {sV}, {sVB} offen offset:{c*1024} nt')
def pace(): A(f's_waitcnt vmcnt({D-1})')
cnt=0
for n in range(32):
    if cnt>=D: pace()
    kload(n); cnt+=1
for n in range(16):
    pace(); vload(n)
for k in range(32): A(f'v_mov_b32 v{32+k}, 0')
A('v_and_b32 v6, 15, v1')
A('v_cmp_gt_u32 vcc, 2, v6')
stamp(1)
A('s_barrier')
stamp(2)
A('s_and_saveexec_b64 s[98:99], vcc')
for c in range(8): A(f'ds_read_b128 v[{32+4*c}:{35+4*c}], v2 offset:{L_Q+64*c}')
A('s_mov_b64 exec, s[98:99]')
A('s_waitcnt vmcnt(16) lgkmcnt(0)')
stamp(3)
for blk in range(4):
    for c in range(8):
        n=blk*8+c
        cin = '0' if c==0 else f'v[{16+4*blk}:{19+4*blk}]'
        A(f'v_mfma_f32_16x16x32_bf16 v[{16+4*blk}:{19+4*blk}], a[{4*n}:{4*n+3}], v[{32+4*c}:{35+4*c}], {cin}')
for k in range(0,16,2):
    A(f'v_cvt_pk_bf16_f32 v9, v{16+k}, v{17+k}')
    A(f'v_lshlrev_b32 v{16+k}, 16, v9')
    A(f'v_and_b32 v{17+k}, 0xffff0000, v9')
for k in range(16): A(f'v_mul_f32 v{16+k}, {hex(f2u(0.0625*LOG2E))}, v{16+k}')
A('v_max_f32 v9, v16, v17')
for k in range(2,16,2): A(f'v_max3_f32 v9, v9, v{16+k}, v{17+k}')
allreduce('max',9,10,lo=False)
for k in range(16): A(f'v_sub_f32 v{16+k}, v{16+k}, v9')
for k in range(16): A(f'v_exp_f32 v{16+k}, v{16+k}')
A('v_add_f32 v11, v16, v17')
for k in range(2,16): A(f'v_add_f32 v11, v11, v{16+k}')
A('v_and_b32 v12, 15, v1')
A('v_lshlrev_b32 v13, 2, v12')
A('v_lshl_add_u32 v13, v7, 5, v13')
A(f's_lshl_b32 {sT0}, {sW}, 9')
A(f'v_add_u32 v13, {sT0}, v13')
A('v_cmp_gt_u32 vcc, 2, v12')
A('s_and_saveexec_b64 s[98:99], vcc')
for blk in range(4):
    for r in range(4):
        A(f'ds_write_b32 v13, v{16+4*blk+r} offset:{L_P+blk*128+r*8}')
A('s_mov_b64 exec, s[98:99]')
allreduce('add',11,10,lo=False)
A('v_lshlrev_b32 v12, 2, v12')
A(f's_lshl_b32 {sT1}, {sW}, 4')
A(f'v_add_u32 v12, {sT1}, v12')
A('s_and_saveexec_b64 s[98:99], vcc')
A(f'ds_write_b32 v12, v9 offset:{L_ST}')
A(f'ds_write_b32 v12, v11 offset:{L_ST+8}')
A('s_mov_b64 exec, s[98:99]')
A('v_lshrrev_b32 v13, 5, v1')
A('v_lshlrev_b32 v13, 3, v13')
A(f'v_add_u32 v13, {sT0}, v13')
stamp(4)
A('s_waitcnt lgkmcnt(0)')
ACC=16
for k in range(16): A(f'v_mov_b32 v{ACC+k}, 0')
TMP=56
for q4 in range(4):
    pb=32 if q4%2==0 else 48-8
    pb=32
    for i in range(8):
        n=q4*8+i
        A(f'ds_read_b64 v[{pb+2*i}:{pb+2*i+1}], v13 offset:{L_P+n*16}')
    for i in range(8):
        n=q4*8+i
        issued = min(32, n+16)
        y = issued-1-n
        A(f's_waitcnt vmcnt({y}) lgkmcnt({7-i})')
        r=VR+4*(n%16)
        for k in range(4): unpack(f'v{r+k}', TMP+2*k)
        if n+16<32: vload(n+16)
        for k in range(4):
            A(f'v_pk_fma_f32 v[{ACC+2*k}:{ACC+2*k+1}], v[{TMP+2*k}:{TMP+2*k+1}], v[{pb+2*i}:{pb+2*i+1}], v[{ACC+2*k}:{ACC+2*k+1}] op_sel_hi:[1,0,1]')
        for k in range(4):
            A(f'v_pk_fma_f32 v[{ACC+8+2*k}:{ACC+9+2*k}], v[{TMP+2*k}:{TMP+2*k+1}], v[{pb+2*i}:{pb+2*i+1}], v[{ACC+8+2*k}:{ACC+9+2*k}] op_sel:[0,1,0] op_sel_hi:[1,1,1]')
stamp(5)
for e in range(8): A(f'v_permlane32_swap_b32 v{ACC+e}, v{ACC+8+e}')
for e in range(8): A(f'v_add_f32 v{ACC+e}, v{ACC+e}, v{ACC+8+e}')
A('v_lshlrev_b32 v12, 5, v1')
A(f's_lshl_b32 {sT0}, {sW}, 11')
A(f'v_add_u32 v12, {sT0}, v12')
A(f'ds_write_b128 v12, v[{ACC}:{ACC+3}] offset:{L_OW}')
A(f'ds_write_b128 v12, v[{ACC+4}:{ACC+7}] offset:{L_OW+16}')
A('v_mov_b32 v13, 0')
A('v_mov_b32 v14, 1')
A('s_waitcnt lgkmcnt(0)')
A('s_mov_b64 exec, 1')
A(f'ds_add_u32 v13, v14 offset:{L_CNT}')
A('s_mov_b64 exec, -1')
A(f's_cmp_ge_u32 {sW}, 2')
A('s_cbranch_scc1 L_nopub')
A.label('L_b3spin')
A(f'ds_read_b32 v14, v13 offset:{L_CNT}')
A('s_waitcnt lgkmcnt(0)')
A('v_cmp_ne_u32 vcc, 4, v14')
A('s_nop 1')
A('s_cbranch_vccz L_b3ok')
guard('L_b3ok')
A('s_branch L_b3spin')
A.label('L_b3ok')
A(f's_lshl_b32 {sT0}, {sW}, 2')
A(f'v_mov_b32 v12, {sT0}')
for w in range(4):
    A(f'ds_read_b32 v{16+w}, v12 offset:{L_ST+16*w}')
    A(f'ds_read_b32 v{20+w}, v12 offset:{L_ST+16*w+8}')
A(f's_lshl_b32 {sT0}, {sW}, 10')
A(f'v_add_u32 v13, {sT0}, v3')
for w in range(4): A(f'ds_read_b128 v[{32+4*w}:{35+4*w}], v13 offset:{L_OW+2048*w}')
A('s_waitcnt lgkmcnt(4)')
A('v_max_f32 v10, v16, v17')
A('v_max3_f32 v10, v10, v18, v19')
for w in range(4): A(f'v_sub_f32 v{16+w}, v{16+w}, v10')
for w in range(4): A(f'v_exp_f32 v{16+w}, v{16+w}')
A('v_mul_f32 v11, v16, v20')
for w in range(1,4): A(f'v_fmac_f32 v11, v{16+w}, v{20+w}')
A('s_waitcnt lgkmcnt(0)')
for e in range(4): A(f'v_mul_f32 v{24+e}, v{32+e}, v16')
for w in range(1,4):
    for e in range(4): A(f'v_fmac_f32 v{24+e}, v{32+4*w+e}, v{16+w}')
for e in range(4): A(f'v_min_u32 v{24+e}, 0xfffffffe, v{24+e}')
A('v_min_u32 v10, 0xfffffffe, v10')
A('v_min_u32 v11, 0xfffffffe, v11')
A(f's_lshl_b32 {sT0}, {sH}, 1')
A(f's_add_u32 {sT0}, {sT0}, {sW}')
A(f's_lshl_b32 {sT0}, {sT0}, 5')
A(f's_add_u32 {sT0}, {sT0}, {sS}')
A(f's_lshl_b32 {sT1}, {sT0}, 10')
A(f's_add_u32 {sT1}, {sT1}, {O1_OFF}')
A(f'buffer_store_dwordx4 v[24:27], v3, {sWS}, {sT1} offen sc1')
A(f's_lshl_b32 {sT1}, {sT0}, 3')
A(f's_add_u32 {sT1}, {sT1}, {S1_OFF}')
A('v_cmp_eq_u32 vcc, 0, v1')
A('v_cndmask_b32 v13, v8, v1, vcc')
A(f'buffer_store_dwordx2 v[10:11], v13, {sWS}, {sT1} offen sc1')
A.label('L_nopub')
stamp(6)
A(f's_cmp_eq_u32 {sROLE}, 0')
A('s_cbranch_scc1 L_end')
A('v_mov_b32 v13, 0')
A.label('L_b4spin')
A(f'ds_read_b32 v14, v13 offset:{L_FLAG}')
A('s_waitcnt lgkmcnt(0)')
A('v_cmp_ne_u32 vcc, 1, v14')
A('s_nop 1')
A('s_cbranch_vccz L_b4ok')
guard('L_b4ok')
A('s_sleep 1')
A('s_branch L_b4spin')
A.label('L_b4ok')
A(f's_cmp_eq_u32 {sROLE}, 2')
A('s_cbranch_scc1 L_ffn')
A(f's_cmp_eq_u32 {sROLE}, 3')
A('s_cbranch_scc1 L_fin')

A('v_lshlrev_b32 v9, 3, v7')
A('v_and_b32 v10, 15, v1')
A('v_lshlrev_b32 v10, 4, v10')
A('v_lshl_add_u32 v10, v7, 10, v10')
A(f's_lshl_b32 {sC0}, {sJ}, 8')
A(f's_add_u32 {sC0}, {sC0}, {S1_OFF}')
A(f's_lshl_b32 {sC1}, {sJ}, 15')
A(f's_lshl_b32 {sT0}, {sW}, 8')
A(f's_add_u32 {sC1}, {sC1}, {sT0}')
A(f's_add_u32 {sC1}, {sC1}, {O1_OFF}')
SR=16; OR_=32; WR=64
def wo_poll_issue():
    for i in range(8):
        A(f'buffer_load_dwordx2 v[{SR+2*i}:{SR+1+2*i}], v9, {sWS}, {sC0} offen offset:{32*i} sc1')
    A(f's_mov_b32 {sT0}, {sC1}')
    for i in range(8):
        A(f'buffer_load_dwordx4 v[{OR_+4*i}:{OR_+3+4*i}], v10, {sWS}, {sT0} offen sc1')
        if i<7: A(f's_add_u32 {sT0}, {sT0}, 4096')
wo_poll_issue()
A(f's_lshl_b32 {sT0}, {sW}, 13')
A(f'v_add_u32 v12, {sT0}, v3')
for i in range(8): A(f'ds_read_b128 v[{WR+4*i}:{WR+3+4*i}], v12 offset:{L_W+1024*i}')
A.label('L_wopoll')
A('s_waitcnt vmcnt(0)')
sentinel_check(range(16,64), 11, 'L_wore')
A('s_branch L_wogo')
A.label('L_wore')
guard('L_wogo')
A('s_sleep 1')
wo_poll_issue()
A('s_branch L_wopoll')
A.label('L_wogo')
stamp(8)
A(f'v_max_f32 v11, v{SR}, v{SR+2}')
for i in range(2,8,2): A(f'v_max3_f32 v11, v11, v{SR+2*i}, v{SR+2+2*i}')
allreduce('max',11,12,lo=False)
for i in range(8): A(f'v_sub_f32 v{SR+2*i}, v{SR+2*i}, v11')
for i in range(8): A(f'v_exp_f32 v{SR+2*i}, v{SR+2*i}')
A(f'v_mul_f32 v11, v{SR}, v{SR+1}')
for i in range(1,8): A(f'v_fmac_f32 v11, v{SR+2*i}, v{SR+1+2*i}')
allreduce('add',11,12,lo=False)
A('v_rcp_f32 v12, v11')
for e in range(4): A(f'v_mul_f32 v{96+e}, v{OR_+e}, v{SR}')
for i in range(1,8):
    for e in range(4): A(f'v_fmac_f32 v{96+e}, v{OR_+4*i+e}, v{SR+2*i}')
for e in range(4): allreduce('add',96+e,100+e,lo=False)
for e in range(4):
    fdiv(104+e,96+e,11,12,100+e)
    bf16round(104+e)
A('v_and_b32 v13, 15, v1')
A('v_lshlrev_b32 v13, 4, v13')
A(f's_lshl_b32 {sT0}, {sW}, 8')
A(f'v_add_u32 v13, {sT0}, v13')
A(f'ds_write_b128 v13, v[104:107] offset:{L_OV}')
A('v_lshrrev_b32 v13, 3, v1')
A('v_lshlrev_b32 v13, 2, v13')
A(f'v_add_u32 v13, {sT0}, v13')
A('s_waitcnt lgkmcnt(0)')
for i in range(8): A(f'ds_read_b32 v{32+2*i}, v13 offset:{L_OV+32*i}')
for k in range(8): A(f'v_mov_b32 v{16+k}, 0')
for i in range(8):
    for k in range(4): unpack(f'v{WR+4*i+k}', 96+2*k)
    A(f's_waitcnt lgkmcnt({7-i})')
    for k in range(4):
        A(f'v_pk_fma_f32 v[{16+2*k}:{17+2*k}], v[{96+2*k}:{97+2*k}], v[{32+2*i}:{33+2*i}], v[{16+2*k}:{17+2*k}] op_sel_hi:[1,0,1]')
for k in range(8):
    A(f'v_add_f32_dpp v{16+k}, v{16+k}, v{16+k} row_ror:8 row_mask:0xf bank_mask:0xf')
A('v_and_b32 v13, 7, v1')
A('v_lshlrev_b32 v13, 5, v13')
A('v_lshl_add_u32 v13, v7, 8, v13')
A(f's_lshl_b32 {sT0}, {sW}, 10')
A(f'v_add_u32 v13, {sT0}, v13')
A(f'ds_write_b128 v13, v[16:19] offset:{L_RED2}')
A(f'ds_write_b128 v13, v[20:23] offset:{L_RED2+16}')
A('s_waitcnt lgkmcnt(0)')
A('s_barrier')
A(f's_cmp_lg_u32 {sW}, 0')
A('s_cbranch_scc1 L_end')
A('v_lshlrev_b32 v13, 2, v1')
for k in range(16): A(f'ds_read_b32 v{16+k}, v13 offset:{L_RED2+256*k}')
A('s_waitcnt lgkmcnt(0)')
for st in (8,4,2,1):
    for k in range(st): A(f'v_add_f32 v{16+k}, v{16+k}, v{16+k+st}')
A('v_min_u32 v16, 0xfffffffe, v16')
A(f's_mul_i32 {sT1}, {sJ}, 1792')
A(f's_lshl_b32 {sT2}, {sN}, 8')
A(f's_add_u32 {sT1}, {sT1}, {sT2}')
A(f's_add_u32 {sT1}, {sT1}, {P2_OFF}')
A(f'buffer_store_dword v16, v13, {sWS}, {sT1} offen sc1')
stamp(9)
A('s_branch L_end')

A.label('L_ffn')
A('v_and_b32 v11, 31, v1')
A('v_cmp_gt_u32 vcc, 28, v11')
A('v_lshlrev_b32 v12, 3, v11')
A('v_cndmask_b32 v12, v8, v12, vcc')
A(f's_mul_i32 {sT0}, {sW}, 224')
A(f'buffer_load_dwordx2 v[4:5], v12, {sX}, {sT0} offen')
A('v_lshlrev_b32 v14, 4, v11')
A('v_lshrrev_b32 v12, 5, v1')
A('v_mul_u32_u24 v12, 1792, v12')
A('v_add_u32 v14, v14, v12')
A('v_cndmask_b32 v14, v8, v14, vcc')
A(f's_mul_i32 {sT0}, {sW}, {22*1024}')
A(f'v_add_u32 v12, {sT0}, v3')
for i in range(22): A(f'ds_read_b128 v[{40+4*i}:{43+4*i}], v12 offset:{L_W+1024*i}')
stamp(7)
A(f's_mul_i32 {sC0}, {sW}, 448')
A(f's_add_u32 {sC0}, {sC0}, {P2_OFF}')
A.label('L_ffpoll')
A(f's_mov_b32 {sT0}, {sC0}')
for i in range(8):
    A(f'buffer_load_dwordx4 a[{4*i}:{4*i+3}], v14, {sWS}, {sT0} offen sc1')
    if i<7: A(f's_add_u32 {sT0}, {sT0}, 3584')
A('s_waitcnt vmcnt(0)')
for i in range(16): A(f'v_accvgpr_read_b32 v{16+i}, a{i}')
A('v_max3_u32 v9, v16, v17, v18')
for i in range(3,15,2): A(f'v_max3_u32 v9, v9, v{16+i}, v{17+i}')
A('v_max_u32 v9, v9, v31')
for k in range(8): A(f'v_add_f32 v{16+k}, v{16+k}, v{24+k}')
for i in range(16): A(f'v_accvgpr_read_b32 v{24+i}, a{16+i}')
for i in range(0,16,2): A(f'v_max3_u32 v9, v9, v{24+i}, v{25+i}')
A('v_cmp_eq_u32 vcc, -1, v9')
A('s_nop 1')
A('s_cbranch_vccz L_ffgo')
guard('L_ffgo')
A('s_sleep 1')
A('s_branch L_ffpoll')
A.label('L_ffgo')
stamp(8)
for k in range(8): A(f'v_add_f32 v{24+k}, v{24+k}, v{32+k}')
for k in range(8): A(f'v_add_f32 v{16+k}, v{16+k}, v{24+k}')
for k in range(4): A(f'v_add_f32 v{16+k}, v{16+k}, v{20+k}')
unpack('v4',24); unpack('v5',26)
for e in range(4): allreduce('add',16+e,20+e,lo=False,x16=False)
for e in range(4):
    bf16round(16+e)
    A(f'v_add_f32 v{16+e}, v{16+e}, v{24+e}')
    bf16round(16+e)
A('v_add_f32 v9, v16, v17')
A('v_add_f32 v10, v18, v19')
A('v_add_f32 v9, v9, v10')
allreduce('add',9,10)
A(f'v_mul_f32 v9, {hex(f2u(1.0/224))}, v9')
A('v_mov_b32 v11, 0')
for e in range(4):
    A(f'v_sub_f32 v10, v{16+e}, v9')
    A('v_fmac_f32 v11, v10, v10')
A('v_and_b32 v12, 31, v1')
A('v_cmp_gt_u32 vcc, 28, v12')
A('v_cndmask_b32 v11, 0, v11, vcc')
allreduce('add',11,10)
A('v_mul_f32 v11, 0.5, v11')
A('v_mov_b32 v10, v9')
A(f's_lshl_b32 {sT0}, {sW}, 3')
A(f'v_mov_b32 v12, {sT0}')
A(f'ds_write_b64 v12, v[10:11] offset:{L_ST3}')
A('s_waitcnt lgkmcnt(0)')
A('s_barrier')
A('v_mov_b32 v12, 0')
A(f'ds_read_b128 v[20:23], v12 offset:{L_ST3}')
A(f'ds_read_b128 v[24:27], v12 offset:{L_ST3+16}')
A('s_waitcnt lgkmcnt(0)')
A('v_add_f32 v9, v20, v22')
A('v_add_f32 v10, v24, v26')
A('v_add_f32 v9, v9, v10')
A('v_mul_f32 v9, 0.25, v9')
A('v_add_f32 v11, v21, v23')
A('v_add_f32 v10, v25, v27')
A('v_add_f32 v11, v11, v10')
A('v_mov_b32 v13, 0')
for r in (20,22,24,26):
    A(f'v_sub_f32 v10, v{r}, v9')
    A('v_fmac_f32 v13, v10, v10')
A(f'v_mov_b32 v10, {hex(f2u(112.0))}')
A('v_fmac_f32 v11, v13, v10')
A(f'v_mul_f32 v11, {hex(f2u(1.0/448))}, v11')
layernorm_consts(9,11,10)
for e in range(4):
    A(f'v_sub_f32 v{20+e}, v{16+e}, v9')
    bf16round(20+e)
    fdiv(24+e,20+e,11,10,12)
    bf16round(24+e)
A('v_and_b32 v12, 31, v1')
A('v_cmp_gt_u32 vcc, 28, v12')
A('v_lshlrev_b32 v12, 4, v12')
A(f's_mul_i32 {sT0}, {sW}, 448')
A(f'v_add_u32 v12, {sT0}, v12')
A('s_and_saveexec_b64 s[98:99], vcc')
A(f'ds_write_b128 v12, v[24:27] offset:{L_HN}')
A('s_mov_b64 exec, s[98:99]')
A('v_lshrrev_b32 v12, 2, v1')
A('v_lshlrev_b32 v12, 2, v12')
A(f'v_add_u32 v12, {sT0}, v12')
A('s_waitcnt lgkmcnt(0)')
for i in range(7): A(f'ds_read_b32 v{32+i}, v12 offset:{L_HN+64*i}')
for k in range(16): A(f'v_mov_b32 v{16+k}, 0')
for i in range(7):
    A(f's_waitcnt lgkmcnt({6-i})')
    for mat in range(2):
        raw=40+28*mat+4*i
        for k in range(4):
            A(f'v_lshlrev_b32 v4, 16, v{raw+k}')
            A(f'v_and_b32 v5, 0xffff0000, v{raw+k}')
            A(f'v_fmac_f32 v{16+8*mat+2*k}, v4, v{32+i}')
            A(f'v_fmac_f32 v{17+8*mat+2*k}, v5, v{32+i}')
for m in ('row_ror:8','row_ror:4'):
    for k in range(16):
        A(f'v_add_f32_dpp v{16+k}, v{16+k}, v{16+k} {m} row_mask:0xf bank_mask:0xf')
A('v_and_b32 v13, 3, v1')
A('v_lshlrev_b32 v13, 5, v13')
A('v_lshl_add_u32 v13, v7, 8, v13')
A(f's_lshl_b32 {sT0}, {sW}, 10')
A(f'v_add_u32 v13, {sT0}, v13')
A(f'ds_write_b128 v13, v[16:19] offset:{L_RED3}')
A(f'ds_write_b128 v13, v[20:23] offset:{L_RED3+16}')
A(f'ds_write_b128 v13, v[24:27] offset:{L_RED3+128}')
A(f'ds_write_b128 v13, v[28:31] offset:{L_RED3+144}')
A('s_waitcnt lgkmcnt(0)')
A('s_barrier')
A('v_lshlrev_b32 v13, 2, v1')
for k in range(16): A(f'ds_read_b32 v{16+k}, v13 offset:{L_RED3+256*k}')
A('s_waitcnt lgkmcnt(0)')
for st in (8,4,2,1):
    for k in range(st): A(f'v_add_f32 v{16+k}, v{16+k}, v{16+k+st}')
bf16round(16)
A('v_mov_b32 v17, v16')
A('v_permlane32_swap_b32 v16, v17')
A('v_mul_f32 v18, v16, v16')
A(f'v_mov_b32 v19, {hex(f2u(0.044715))}')
A('v_fma_f32 v18, v18, v19, 1.0')
A('v_mul_f32 v18, v18, v16')
A(f'v_mul_f32 v18, {hex(f2u(2.0*0.7978845608028654*LOG2E))}, v18')
A('v_exp_f32 v18, v18')
A('v_add_f32 v18, 1.0, v18')
A('v_rcp_f32 v18, v18')
A('v_fma_f32 v18, v18, -2.0, 2.0')
A('v_mul_f32 v18, v18, v16')
A('v_mul_f32 v18, 0.5, v18')
bf16round(18)
A('v_mul_f32 v18, v18, v17')
bf16round(18)
A(f's_lshl_b32 {sT0}, {sW}, 3')
for i in range(8):
    A(f'v_readlane_b32 s{sA0+i}, v18, {sT0}')
    if i<7: A(f's_add_u32 {sT0}, {sT0}, 1')
for k in range(8): A(f'v_mov_b32 v{16+k}, 0')
for i in range(8):
    for k in range(4):
        A(f'v_lshlrev_b32 v4, 16, v{96+4*i+k}')
        A(f'v_and_b32 v5, 0xffff0000, v{96+4*i+k}')
        A(f'v_fma_f32 v{16+2*k}, v4, s{sA0+i}, v{16+2*k}')
        A(f'v_fma_f32 v{17+2*k}, v5, s{sA0+i}, v{17+2*k}')
A('v_lshlrev_b32 v13, 5, v1')
A(f's_mul_i32 {sT0}, {sW}, 1792')
A(f'v_add_u32 v13, {sT0}, v13')
A('v_cmp_gt_u32 vcc, 56, v1')
A('s_and_saveexec_b64 s[98:99], vcc')
A(f'ds_write_b128 v13, v[16:19] offset:{L_RED4}')
A(f'ds_write_b128 v13, v[20:23] offset:{L_RED4+16}')
A('s_mov_b64 exec, s[98:99]')
A('s_waitcnt lgkmcnt(0)')
A('s_barrier')
A(f's_cmp_ge_u32 {sW}, 2')
A('s_cbranch_scc1 L_end')
A(f's_lshl_b32 {sT0}, {sW}, 10')
A(f'v_add_u32 v13, {sT0}, v3')
A('v_cmp_gt_u32 vcc, 1792, v13')
A('v_cndmask_b32 v12, v8, v13, vcc')
A('v_cndmask_b32 v13, 0, v13, vcc')
for w in range(4): A(f'ds_read_b128 v[{16+4*w}:{19+4*w}], v13 offset:{L_RED4+1792*w}')
A('s_waitcnt lgkmcnt(0)')
for e in range(4):
    A(f'v_add_f32 v{16+e}, v{16+e}, v{20+e}')
    A(f'v_add_f32 v{24+e}, v{24+e}, v{28+e}')
for e in range(4):
    A(f'v_add_f32 v{16+e}, v{16+e}, v{24+e}')
    A(f'v_min_u32 v{16+e}, 0xfffffffe, v{16+e}')
A(f's_mul_i32 {sT1}, {sF}, 1792')
A(f's_add_u32 {sT1}, {sT1}, {P3_OFF}')
A(f'buffer_store_dwordx4 v[16:19], v12, {sWS}, {sT1} offen sc1')
stamp(9)
A('s_branch L_end')

A.label('L_fin')
A(f's_cmp_lg_u32 {sW}, 0')
A('s_cbranch_scc1 L_end')
A('v_and_b32 v11, 15, v1')
A('v_lshlrev_b32 v12, 3, v11')
A(f's_lshl_b32 {sT0}, {sH}, 7')
A(f'buffer_load_dwordx2 v[48:49], v12, {sX}, {sT0} offen')
A('v_lshlrev_b32 v14, 4, v11')
A('v_mul_u32_u24 v10, 1792, v7')
A('v_add_u32 v14, v14, v10')
A(f's_lshl_b32 {sC0}, {sH}, 8')
A(f's_add_u32 {sC1}, {sC0}, {P3_OFF}')
A(f's_add_u32 {sC0}, {sC0}, {P2_OFF}')
A.label('L_f2poll')
A(f's_mov_b32 {sT0}, {sC0}')
for i in range(4):
    A(f'buffer_load_dwordx4 v[{16+4*i}:{19+4*i}], v14, {sWS}, {sT0} offen sc1')
    if i<3: A(f's_add_u32 {sT0}, {sT0}, 7168')
A('s_waitcnt vmcnt(0)')
sentinel_check(range(16,32), 9, 'L_f2re')
A('s_branch L_f2go')
A.label('L_f2re')
guard('L_f2go')
A('s_sleep 2')
A('s_branch L_f2poll')
A.label('L_f2go')
stamp(7)
unpack('v48',50); unpack('v49',52)
for st in (8,4):
    for k in range(st): A(f'v_add_f32 v{16+k}, v{16+k}, v{16+k+st}')
for e in range(4): allreduce('add',16+e,20+e,lo=False)
for e in range(4):
    bf16round(16+e)
    A(f'v_add_f32 v{16+e}, v{16+e}, v{50+e}')
    bf16round(16+e)
A.label('L_f3poll')
A(f's_mov_b32 {sT0}, {sC1}')
for i in range(14):
    A(f'buffer_load_dwordx4 v[{64+4*i}:{67+4*i}], v14, {sWS}, {sT0} offen sc1')
    if i<13: A(f's_add_u32 {sT0}, {sT0}, 7168')
A('s_waitcnt vmcnt(0)')
sentinel_check(range(64,120), 9, 'L_f3re')
A('s_branch L_f3go')
A.label('L_f3re')
guard('L_f3go')
A('s_sleep 1')
A('s_branch L_f3poll')
A.label('L_f3go')
stamp(8)
for i in range(7):
    for e in range(4): A(f'v_add_f32 v{64+4*i+e}, v{64+4*i+e}, v{92+4*i+e}')
for i in range(1,7):
    for e in range(4): A(f'v_add_f32 v{64+e}, v{64+e}, v{64+4*i+e}')
for e in range(4): allreduce('add',64+e,20+e,lo=False)
for e in range(4):
    bf16round(64+e)
    A(f'v_add_f32 v{64+e}, v{64+e}, v{16+e}')
A('v_cvt_pk_bf16_f32 v64, v64, v65')
A('v_cvt_pk_bf16_f32 v65, v66, v67')
A('v_cmp_gt_u32 vcc, 16, v1')
A('v_cndmask_b32 v12, v8, v12, vcc')
A(f's_lshl_b32 {sT0}, {sH}, 7')
A(f'buffer_store_dwordx2 v[64:65], v12, {sOUT}, {sT0} offen')
A('s_branch L_end')

A.label('L_helper')
A(f'buffer_load_dwordx4 v[60:63], v3, {sX}, 0 offen')
A('v_lshrrev_b32 v9, 1, v1')
A('v_lshlrev_b32 v9, 13, v9')
A('v_and_b32 v10, 1, v1')
A('v_lshl_add_u32 v9, v10, 4, v9')
A(f's_lshl_b32 {sC0}, {sH}, 10')
A(f's_lshl_b32 {sT1}, {sS}, 5')
A(f's_add_u32 {sC0}, {sC0}, {sT1}')
A(f's_mov_b32 {sT0}, {sC0}')
for i in range(14):
    A(f'buffer_load_dwordx4 v[{64+4*i}:{67+4*i}], v9, {sWQ}, {sT0} offen')
    if i<13: A(f's_add_u32 {sT0}, {sT0}, 262144')
for i in range(4): A(f'v_mov_b32 v{12+i}, -1')
A(f's_lshl_b32 {sT0}, {sH}, 6')
A(f's_add_u32 {sT0}, {sT0}, {sS}')
A(f's_lshl_b32 {sT1}, {sT0}, 10')
A(f's_add_u32 {sT1}, {sT1}, {O1_OFF}')
A(f's_add_u32 {sT2}, {sT1}, 32768')
A(f'buffer_store_dwordx4 v[12:15], v3, {sWS}, {sT1} offen sc1')
A(f'buffer_store_dwordx4 v[12:15], v3, {sWS}, {sT2} offen sc1')
A(f's_lshl_b32 {sT1}, {sT0}, 3')
A(f's_add_u32 {sT1}, {sT1}, {S1_OFF}')
A('v_lshlrev_b32 v10, 8, v1')
A('v_cmp_gt_u32 vcc, 2, v1')
A('v_cndmask_b32 v10, v8, v10, vcc')
A(f'buffer_store_dwordx2 v[12:13], v10, {sWS}, {sT1} offen sc1')
A(f's_cmp_lg_u32 {sROLE}, 1')
A('s_cbranch_scc1 L_noclr2')
A(f's_mul_i32 {sT1}, {sJ}, 1792')
A(f's_lshl_b32 {sT2}, {sN}, 8')
A(f's_add_u32 {sT1}, {sT1}, {sT2}')
A(f's_add_u32 {sT1}, {sT1}, {P2_OFF}')
A('v_cmp_gt_u32 vcc, 16, v1')
A('v_cndmask_b32 v10, v8, v3, vcc')
A(f'buffer_store_dwordx4 v[12:15], v10, {sWS}, {sT1} offen sc1')
A.label('L_noclr2')
A(f's_cmp_lg_u32 {sROLE}, 2')
A('s_cbranch_scc1 L_noclear')
A(f's_mul_i32 {sT1}, {sF}, 1792')
A(f's_add_u32 {sT1}, {sT1}, {P3_OFF}')
A('v_cmp_gt_u32 vcc, 48, v1')
A('v_cndmask_b32 v10, v8, v3, vcc')
A(f'buffer_store_dwordx4 v[12:15], v3, {sWS}, {sT1} offen sc1')
A(f'buffer_store_dwordx4 v[12:15], v10, {sWS}, {sT1} offen offset:1024 sc1')
A.label('L_noclear')
A('s_waitcnt vmcnt(16)')
A('s_waitcnt vmcnt(14)')
for k in range(4): unpack(f'v{60+k}', 16+2*k)
A('v_add_f32 v9, v16, v17')
for k in range(2,8): A(f'v_add_f32 v9, v9, v{16+k}')
allreduce('add',9,10)
A(f'v_mul_f32 v9, {hex(f2u(1.0/448))}, v9')
A('v_mov_b32 v11, 0')
for k in range(8):
    A(f'v_sub_f32 v10, v{16+k}, v9')
    A(f'v_fmac_f32 v11, v10, v10')
A('v_cmp_gt_u32 vcc, 56, v1')
A('v_cndmask_b32 v11, 0, v11, vcc')
allreduce('add',11,10)
A(f'v_mul_f32 v11, {hex(f2u(1.0/448))}, v11')
layernorm_consts(9,11,10)
for k in range(8):
    A(f'v_sub_f32 v{16+k}, v{16+k}, v9')
    bf16round(16+k)
    fdiv(24+k,16+k,11,10,12)
    bf16round(24+k)
A('v_lshlrev_b32 v12, 5, v1')
A('v_cmp_gt_u32 vcc, 56, v1')
A('s_and_saveexec_b64 s[98:99], vcc')
A(f'ds_write_b128 v12, v[24:27] offset:{L_XN}')
A(f'ds_write_b128 v12, v[28:31] offset:{L_XN+16}')
A('s_mov_b64 exec, s[98:99]')
A('v_lshrrev_b32 v12, 1, v1')
A('v_lshlrev_b32 v12, 2, v12')
A('s_waitcnt lgkmcnt(0)')
for i in range(14): A(f'ds_read_b32 v{32+2*i}, v12 offset:{L_XN+128*i}')
for k in range(8): A(f'v_mov_b32 v{16+k}, 0')
A('s_waitcnt vmcnt(0) lgkmcnt(0)')
stamp(1)
for i in range(14): fma8(16, 64+4*i, 32+2*i, 24)
for m in ('quad_perm:[2,3,0,1]','row_ror:4','row_ror:8'):
    for k in range(8):
        A(f'v_add_f32_dpp v{16+k}, v{16+k}, v{16+k} {m} row_mask:0xf bank_mask:0xf')
for k in range(8): allreduce('add',16+k,24+k,lo=False)
for k in range(4): A(f'v_cvt_pk_bf16_f32 v{16+k}, v{16+2*k}, v{17+2*k}')
A('v_cmp_gt_u32 vcc, 2, v1')
A('v_cndmask_b32 v12, v8, v3, vcc')
A(f's_add_u32 {sT0}, {sC0}, {Q_OFF}')
A(f'buffer_store_dwordx4 v[16:19], v12, {sWS}, {sT0} offen sc1')
A('s_waitcnt vmcnt(0)')
A('v_mov_b32 v12, 1')
A('v_cmp_eq_u32 vcc, 0, v1')
A('v_cndmask_b32 v13, v8, v1, vcc')
A(f's_lshl_b32 {sT0}, {sH}, 5')
A(f's_add_u32 {sT1}, {sT0}, {sS}')
A(f'buffer_store_byte v12, v13, {sDB}, {sT1} offen sc1')
stamp(2)
A('v_and_b32 v13, 7, v1')
A('v_lshlrev_b32 v13, 2, v13')
A.label('L_fpoll')
A('s_sleep 8')
A(f'buffer_load_dword v12, v13, {sDB}, {sT0} offen sc1')
A('s_waitcnt vmcnt(0)')
A('v_cmp_ne_u32 vcc, 0x01010101, v12')
A('s_nop 1')
A('s_cbranch_vccz L_fok')
guard('L_fok')
A('s_branch L_fpoll')
A.label('L_fok')
stamp(3)
A(f's_lshl_b32 {sT0}, {sH}, 10')
A(f's_add_u32 {sT0}, {sT0}, {Q_OFF}')
A(f'buffer_load_dwordx4 v[16:19], v3, {sWS}, {sT0} offen sc1')
A('s_waitcnt vmcnt(0)')
A(f'ds_write_b128 v3, v[16:19] offset:{L_Q}')
A('v_mov_b32 v12, 0')
A('v_mov_b32 v13, 0')
A(f'ds_write_b64 v12, v[12:13] offset:{L_CNT}')
A('s_waitcnt lgkmcnt(0)')
stamp(4)
A('s_barrier')
A(f's_cmp_eq_u32 {sROLE}, 0')
A('s_cbranch_scc1 L_end')
A(f's_cmp_lg_u32 {sROLE}, 1')
A('s_cbranch_scc1 L_hnowo')
A('v_lshrrev_b32 v9, 3, v1')
A('v_mul_u32_u24 v9, 896, v9')
A('v_and_b32 v10, 7, v1')
A('v_lshl_add_u32 v9, v10, 4, v9')
A(f's_lshl_b32 {sT0}, {sJ}, 8')
A(f's_mul_i32 {sT0}, {sT0}, 896')
A(f's_lshl_b32 {sT1}, {sN}, 7')
A(f's_add_u32 {sT0}, {sT0}, {sT1}')
for i in range(32):
    A(f's_mov_b32 m0, {L_W+1024*i}')
    A('s_nop 0')
    A(f'buffer_load_dwordx4 v9, {sWO}, {sT0} offen nt lds')
    if i<31: A(f's_add_u32 {sT0}, {sT0}, {8*896}')
    if i%4==3: A('s_waitcnt vmcnt(8)')
A.label('L_hnowo')
A(f's_cmp_lg_u32 {sROLE}, 2')
A('s_cbranch_scc1 L_hnoffn')
A('v_lshrrev_b32 v9, 2, v1')
A('v_mul_u32_u24 v9, 3584, v9')
A('v_and_b32 v10, 3, v1')
A('v_lshl_add_u32 v9, v10, 4, v9')
A('v_cmp_gt_u32 vcc, 56, v1')
A('v_cndmask_b32 v10, v8, v3, vcc')
A(f's_lshl_b32 {sT0}, {sF}, 6')
A(f's_lshl_b32 {sT1}, {sF}, 5')
A(f's_mul_i32 {sT1}, {sT1}, 896')
for w in range(4):
    for i in range(7):
        A(f's_mov_b32 m0, {L_W+1024*(22*w+i)}')
        A('s_nop 0')
        A(f'buffer_load_dwordx4 v9, {sWG}, {sT0} offen nt lds')
        A(f's_mov_b32 m0, {L_W+1024*(22*w+7+i)}')
        A('s_nop 0')
        A(f'buffer_load_dwordx4 v9, {sWU}, {sT0} offen nt lds')
        A(f's_add_u32 {sT0}, {sT0}, {16*3584}')
        if i%2==1: A('s_waitcnt vmcnt(8)')
    for i in range(8):
        A(f's_mov_b32 m0, {L_W+1024*(22*w+14+i)}')
        A('s_nop 0')
        A(f'buffer_load_dwordx4 v10, {sWD}, {sT1} offen nt lds')
        A(f's_add_u32 {sT1}, {sT1}, 896')
        if i%4==3: A('s_waitcnt vmcnt(8)')
A.label('L_hnoffn')
A('v_lshlrev_b32 v13, 2, v1')
A.label('L_afpoll')
A(f'buffer_load_dword v12, v13, {sDB}, 0 offen sc1')
A('s_waitcnt vmcnt(0)')
A('v_cmp_ne_u32 vcc, 0x01010101, v12')
A('s_nop 1')
A('s_cbranch_vccz L_afok')
guard('L_afok')
A('s_sleep 8')
A('s_branch L_afpoll')
A.label('L_afok')
stamp(5)
A('v_mov_b32 v12, 0')
A('v_mov_b32 v13, 1')
A(f'ds_write_b32 v12, v13 offset:{L_FLAG}')
A('s_waitcnt lgkmcnt(0)')
A.label('L_end')
if STAMP:
    stamp(10)
    A('s_cmp_ge_u32 s2, 256')
    A('s_cbranch_scc1 L_end2')
    A('v_mov_b32 v5, 0')
    A('s_mul_i32 s3, s2, 5')
    A(f's_add_u32 s3, s3, {sW}')
    A('s_lshl_b32 s3, s3, 6')
    A(f's_add_u32 s3, s3, {STAMP_OFF}')
    A('s_mov_b64 exec, 1')
    for i in range(16):
        A(f'v_mov_b32 v6, s{48+i}')
        A(f'buffer_store_dword v6, v5, {sWS}, s3 offen offset:{4*i}')
    A.label('L_end2')
A('s_endpgm')

hdr=open('cdna_kernels/'+NAME+'.s.ref').read().split('; @launch')[0]
out=hdr+f'; @launch grid=(256,1,1) block=(320,1,1) lds={LDS_SIZE}\n'
out+='.amdgcn_target "amdgcn-amd-amdhsa--gfx950"\n.text\n'
out+=f'.globl {NAME}_kernel\n.p2align 8\n.type {NAME}_kernel,@function\n'
out+=A.text()
out+=f'''.section .rodata,"a"
.p2align 6
.amdhsa_kernel {NAME}_kernel
  .amdhsa_next_free_vgpr 256
  .amdhsa_next_free_sgpr 102
  .amdhsa_accum_offset 128
  .amdhsa_group_segment_fixed_size 0
  .amdhsa_kernarg_size 96
  .amdhsa_user_sgpr_count 2
  .amdhsa_user_sgpr_kernarg_segment_ptr 1
  .amdhsa_system_sgpr_workgroup_id_x 1
.end_amdhsa_kernel
'''
open(sys.argv[1],'w').write(out)
print('lines',len(A.lines))
```

```python
import sys, os, struct
from asmlib import Asm

NAME='sequential_preLN__gqa_block_cached__geglu_ffn__decode'
D = int(sys.argv[2]) if len(sys.argv)>2 else 12
STAMP=int(os.environ.get('STAMP','0'))
SPIN=100000

Q_OFF=0x0; S1_OFF=0x2000; O1_OFF=0x4000; P2_OFF=0x84000; P3_OFF=0x8C000; WS_SIZE=0xA4800
STAMP_OFF=0x100000
if STAMP: WS_SIZE=0x200000
OOB=0x80000000
L_XN=0; L_Q=2048; L_P=4096; L_OW=6144; L_ST=14336; L_OV=14400; L_RED2=15424; L_ST3=19520; L_HN=19584
L_CNT=19552; L_FLAG=19556; L_RED3=21376; L_RED4=25472; L_W=32768; L_V=32768; LDS_SIZE=163840
LOG2E=1.4426950408889634
def f2u(x): return struct.unpack('<I',struct.pack('<f',x))[0]

A=Asm()
sK='s[4:7]'; sV='s[8:11]'; sWS='s[12:15]'; sDB='s[16:19]'; sX='s[20:23]'; sWQ='s[24:27]'; sWO='s[28:31]'
sWG='s[32:35]'; sWU='s[36:39]'; sWD='s[40:43]'; sOUT='s[44:47]'
sH='s72'; sS='s73'; sW='s74'; sT0='s75'; sT1='s76'; sT2='s77'; sT3='s78'; sKB='s79'; sVB='s80'; sJ='s81'; sN='s82'; sF='s83'
sOOB='s84'; sC0='s85'; sC1='s86'; sROLE='s87'; sC3='s88'
sA0=90

def srd(base, p, size):
    A(f's_mov_b32 s{base}, s{p}')
    A(f's_and_b32 s{base+1}, s{p+1}, 0xffff')
    A(f's_mov_b32 s{base+2}, {size}')
    A(f's_mov_b32 s{base+3}, 0x00020000')
def stamp(i):
    if not STAMP: return
    A('s_memrealtime s[100:101]')
    A('s_waitcnt lgkmcnt(0)')
    A(f's_mov_b32 s{48+i}, s100')
def guard(go):
    A('s_add_u32 s89, s89, 1')
    A(f's_cmp_gt_u32 s89, {SPIN}')
    A(f's_cbranch_scc1 {go}')
def allreduce(op, v, t, lo=True, x16=True, x32=True):
    ins = 'v_add_f32' if op=='add' else 'v_max_f32'
    if lo:
        for m in ('quad_perm:[1,0,3,2]','quad_perm:[2,3,0,1]','row_half_mirror','row_mirror'):
            A(f'{ins}_dpp v{v}, v{v}, v{v} {m} row_mask:0xf bank_mask:0xf')
    if x16:
        A(f'v_mov_b32 v{t}, v{v}'); A(f'v_permlane16_swap_b32 v{v}, v{t}'); A(f'{ins} v{v}, v{v}, v{t}')
    if x32:
        A(f'v_mov_b32 v{t}, v{v}'); A(f'v_permlane32_swap_b32 v{v}, v{t}'); A(f'{ins} v{v}, v{v}, v{t}')
def bf16round(v):
    A(f'v_cvt_pk_bf16_f32 v{v}, v{v}, v{v}')
    A(f'v_and_b32 v{v}, 0xffff0000, v{v}')
def unpack(src, dst):
    A(f'v_lshlrev_b32 v{dst}, 16, {src}')
    A(f'v_and_b32 v{dst+1}, 0xffff0000, {src}')
def fdiv(d, num, den, r, t):
    A(f'v_mul_f32 v{d}, v{num}, v{r}')
    A(f'v_fma_f32 v{t}, -v{d}, v{den}, v{num}')
    A(f'v_fma_f32 v{d}, v{t}, v{r}, v{d}')
def sentinel_check(regs, t, fail_label):
    regs=list(regs)
    A(f'v_max_u32 v{t}, v{regs[0]}, v{regs[1]}')
    i=2
    while i<len(regs):
        if i+1<len(regs):
            A(f'v_max3_u32 v{t}, v{t}, v{regs[i]}, v{regs[i+1]}'); i+=2
        else:
            A(f'v_max_u32 v{t}, v{t}, v{regs[i]}'); i+=1
    A(f'v_cmp_eq_u32 vcc, -1, v{t}')
    A('s_nop 1')
    A(f's_cbranch_vccnz {fail_label}')
def layernorm_consts(mean, var, t0):
    bf16round(mean); bf16round(var)
    A(f'v_add_f32 v{var}, {hex(f2u(1e-5))}, v{var}')
    bf16round(var)
    A(f'v_sqrt_f32 v{var}, v{var}')
    bf16round(var)
    A(f'v_rcp_f32 v{t0}, v{var}')
def fma8(acc, raw, mul, tmp):
    for k in range(4): unpack(f'v{raw+k}', tmp+2*k)
    for k in range(4):
        A(f'v_pk_fma_f32 v[{acc+2*k}:{acc+2*k+1}], v[{tmp+2*k}:{tmp+2*k+1}], v[{mul}:{mul+1}], v[{acc+2*k}:{acc+2*k+1}] op_sel_hi:[1,0,1]')

A.raw(f'{NAME}_kernel:')
A('s_cmp_ge_u32 s2, 256')
A('s_cbranch_scc1 L_end')
A('s_load_dwordx16 s[48:63], s[0:1], 0')
A('s_load_dwordx8 s[64:71], s[0:1], 64')
A('v_and_b32 v1, 63, v0')
A('v_lshrrev_b32 v6, 6, v0')
A(f'v_readfirstlane_b32 {sW}, v6')
A(f's_and_b32 {sH}, s2, 7')
A(f's_lshr_b32 {sS}, s2, 3')
A(f's_mov_b32 {sOOB}, {hex(OOB)}')
A('s_mov_b32 s89, 0')
A('v_and_b32 v6, 15, v1')
A('v_lshrrev_b32 v7, 4, v1')
A('v_lshlrev_b32 v2, 9, v6')
A('v_lshl_add_u32 v2, v7, 4, v2')
A('v_lshlrev_b32 v3, 4, v1')
A(f'v_mov_b32 v8, {sOOB}')
A('s_waitcnt lgkmcnt(0)')
srd(4,50,33554432); srd(8,52,33554432); srd(12,70,WS_SIZE); srd(16,68,256); srd(20,48,896)
srd(24,54,3670016); srd(28,56,3670016); srd(32,60,1605632); srd(36,62,1605632); srd(40,64,1605632); srd(44,66,896)
if STAMP:
    for i in range(1,16): A(f's_mov_b32 s{48+i}, 0')
stamp(0)
A(f's_mov_b32 {sROLE}, 0')
A(f's_cmp_lt_u32 {sS}, 14')
A(f's_cselect_b32 {sROLE}, 1, {sROLE}')
A(f's_sub_u32 {sT0}, {sS}, 16')
A(f's_cmp_lt_u32 {sT0}, 7')
A(f's_cselect_b32 {sROLE}, 2, {sROLE}')
A(f's_lshl_b32 {sT0}, {sS}, 3')
A(f's_add_u32 {sT0}, {sT0}, {sH}')
A(f's_sub_u32 {sT0}, {sT0}, 112')
A(f's_cmp_lt_u32 {sT0}, 7')
A(f's_cselect_b32 {sROLE}, 3, {sROLE}')
A(f's_cmp_ge_u32 {sS}, 7')
A(f's_cselect_b32 {sT0}, 1, 0')
A(f's_lshl_b32 {sJ}, {sH}, 1')
A(f's_add_u32 {sJ}, {sJ}, {sT0}')
A(f's_mul_i32 {sT0}, {sT0}, 7')
A(f's_sub_u32 {sN}, {sS}, {sT0}')
A(f's_mul_i32 {sF}, {sH}, 7')
A(f's_add_u32 {sF}, {sF}, {sS}')
A(f's_sub_u32 {sF}, {sF}, 16')
A(f's_cmp_eq_u32 {sW}, 4')
A('s_cbranch_scc1 L_helper')

A(f's_lshl_b32 {sKB}, {sH}, 22')
A(f's_lshl_b32 {sT0}, {sS}, 17')
A(f's_add_u32 {sKB}, {sKB}, {sT0}')
A(f's_lshl_b32 {sT0}, {sW}, 15')
A(f's_add_u32 {sKB}, {sKB}, {sT0}')
A(f's_mov_b32 {sVB}, {sKB}')
def kload(n):
    blk,c=divmod(n,8)
    if c==0 and blk>0: A(f's_add_u32 {sKB}, {sKB}, 8192')
    A(f'buffer_load_dwordx4 a[{4*n}:{4*n+3}], v2, {sK}, {sKB} offen offset:{c*64} nt')
def pace(): A(f's_waitcnt vmcnt({D-1})')
cnt=0
for n in range(8):
    kload(n); cnt+=1
A('v_lshrrev_b32 v9, 5, v1')
A('v_and_b32 v10, 31, v1')
for m4 in range(4):
    A(f'v_add_u32 v11, {2*m4}, v9')
    A('v_lshlrev_b32 v11, 1, v11')
    A('v_xor_b32 v11, v11, v10')
    A('v_lshlrev_b32 v11, 4, v11')
    A(f'v_lshl_add_u32 v{120+m4}, v9, 9, v11')
A(f's_lshl_b32 {sT3}, {sW}, 15')
A(f's_add_u32 {sT3}, {sT3}, {L_V}')
def vload(n):
    A(f's_mov_b32 m0, {sT3}')
    A(f's_add_u32 {sT3}, {sT3}, 1024')
    A(f'buffer_load_dwordx4 v{120+n%4}, {sV}, {sVB} offen nt lds')
    A(f's_add_u32 {sVB}, {sVB}, 1024')
for n in range(8,32):
    if cnt>=D: pace()
    kload(n); cnt+=1
for n in range(32):
    pace(); vload(n)
for k in range(32): A(f'v_mov_b32 v{32+k}, 0')
A('v_and_b32 v9, 15, v1')
A('v_lshrrev_b32 v10, 2, v9')
A('v_lshl_add_u32 v10, v7, 2, v10')
A('v_and_b32 v11, 7, v10')
A('v_and_b32 v9, 3, v9')
A('v_lshlrev_b32 v10, 9, v10')
A('v_lshl_add_u32 v10, v9, 3, v10')
A(f's_lshl_b32 {sT0}, {sW}, 15')
A(f's_add_u32 {sT0}, {sT0}, {L_V}')
A(f'v_add_u32 v10, {sT0}, v10')
for b in range(8):
    A(f'v_xor_b32 v9, {b}, v11')
    A(f'v_lshl_add_u32 v{112+b}, v9, 5, v10')
A('v_and_b32 v6, 15, v1')
A('v_cmp_gt_u32 vcc, 2, v6')
stamp(1)
A('s_barrier')
stamp(2)
A('s_and_saveexec_b64 s[98:99], vcc')
for c in range(8): A(f'ds_read_b128 v[{32+4*c}:{35+4*c}], v2 offset:{L_Q+64*c}')
A('s_mov_b64 exec, s[98:99]')
A('s_waitcnt vmcnt(32) lgkmcnt(0)')
stamp(3)
for blk in range(4):
    for c in range(8):
        n=blk*8+c
        cin = '0' if c==0 else f'v[{16+4*blk}:{19+4*blk}]'
        A(f'v_mfma_f32_16x16x32_bf16 v[{16+4*blk}:{19+4*blk}], a[{4*n}:{4*n+3}], v[{32+4*c}:{35+4*c}], {cin}')
for k in range(0,16,2):
    A(f'v_cvt_pk_bf16_f32 v9, v{16+k}, v{17+k}')
    A(f'v_lshlrev_b32 v{16+k}, 16, v9')
    A(f'v_and_b32 v{17+k}, 0xffff0000, v9')
for k in range(16): A(f'v_mul_f32 v{16+k}, {hex(f2u(0.0625*LOG2E))}, v{16+k}')
A('v_max_f32 v9, v16, v17')
for k in range(2,16,2): A(f'v_max3_f32 v9, v9, v{16+k}, v{17+k}')
allreduce('max',9,10,lo=False)
for k in range(16): A(f'v_sub_f32 v{16+k}, v{16+k}, v9')
for k in range(16): A(f'v_exp_f32 v{16+k}, v{16+k}')
for k in range(8): A(f'v_cvt_pk_bf16_f32 v{104+k}, v{16+2*k}, v{17+2*k}')
stamp(4)
ACC=40
def pv_half(kb, first):
    def rd(t, buf):
        a,b=divmod(t,8)
        for u in range(2):
            A(f'ds_read_b64_tr_b16 v[{buf+2*u}:{buf+2*u+1}], v{112+b} offset:{a*256+kb*16384+u*8192}')
    rd(0,32)
    for t in range(16):
        buf=32+4*(t%2)
        if t<15: rd(t+1, 32+4*((t+1)%2))
        A(f's_waitcnt lgkmcnt({2 if t<15 else 0})')
        cin = '0' if first else f'v[{ACC+4*t}:{ACC+4*t+3}]'
        A(f'v_mfma_f32_16x16x32_bf16 v[{ACC+4*t}:{ACC+4*t+3}], v[{buf}:{buf+3}], v[{104+4*kb}:{107+4*kb}], {cin}')
A('v_lshlrev_b32 v11, 16, v104')
A('v_and_b32 v12, 0xffff0000, v104')
A('v_add_f32 v11, v11, v12')
for k in range(1,8):
    A(f'v_lshlrev_b32 v12, 16, v{104+k}')
    A('v_add_f32 v11, v11, v12')
    A(f'v_and_b32 v12, 0xffff0000, v{104+k}')
    A('v_add_f32 v11, v11, v12')
allreduce('add',11,10,lo=False)
A('v_and_b32 v12, 15, v1')
A('v_lshlrev_b32 v12, 2, v12')
A(f's_lshl_b32 {sT1}, {sW}, 4')
A(f'v_add_u32 v12, {sT1}, v12')
A('s_and_saveexec_b64 s[98:99], vcc')
A(f'ds_write_b32 v12, v9 offset:{L_ST}')
A(f'ds_write_b32 v12, v11 offset:{L_ST+8}')
A('s_mov_b64 exec, s[98:99]')
A('s_waitcnt vmcnt(16) lgkmcnt(0)')
pv_half(0, True)
A('s_waitcnt vmcnt(0)')
pv_half(1, False)
stamp(5)
A('v_and_b32 v12, 15, v1')
A('v_lshlrev_b32 v12, 10, v12')
A('v_lshl_add_u32 v12, v7, 4, v12')
A(f's_lshl_b32 {sT0}, {sW}, 11')
A(f'v_add_u32 v12, {sT0}, v12')
A('s_and_saveexec_b64 s[98:99], vcc')
for t in range(16):
    A(f'ds_write_b128 v12, v[{ACC+4*t}:{ACC+4*t+3}] offset:{L_OW+64*t}')
A('s_mov_b64 exec, s[98:99]')
A('v_mov_b32 v13, 0')
A('v_mov_b32 v14, 1')
A('s_waitcnt lgkmcnt(0)')
A('s_mov_b64 exec, 1')
A(f'ds_add_u32 v13, v14 offset:{L_CNT}')
A('s_mov_b64 exec, -1')
A(f's_cmp_ge_u32 {sW}, 2')
A('s_cbranch_scc1 L_nopub')
A.label('L_b3spin')
A(f'ds_read_b32 v14, v13 offset:{L_CNT}')
A('s_waitcnt lgkmcnt(0)')
A('v_cmp_ne_u32 vcc, 4, v14')
A('s_nop 1')
A('s_cbranch_vccz L_b3ok')
guard('L_b3ok')
A('s_branch L_b3spin')
A.label('L_b3ok')
A(f's_lshl_b32 {sT0}, {sW}, 2')
A(f'v_mov_b32 v12, {sT0}')
for w in range(4):
    A(f'ds_read_b32 v{16+w}, v12 offset:{L_ST+16*w}')
    A(f'ds_read_b32 v{20+w}, v12 offset:{L_ST+16*w+8}')
A(f's_lshl_b32 {sT0}, {sW}, 10')
A(f'v_add_u32 v13, {sT0}, v3')
for w in range(4): A(f'ds_read_b128 v[{32+4*w}:{35+4*w}], v13 offset:{L_OW+2048*w}')
A('s_waitcnt lgkmcnt(4)')
A('v_max_f32 v10, v16, v17')
A('v_max3_f32 v10, v10, v18, v19')
for w in range(4): A(f'v_sub_f32 v{16+w}, v{16+w}, v10')
for w in range(4): A(f'v_exp_f32 v{16+w}, v{16+w}')
A('v_mul_f32 v11, v16, v20')
for w in range(1,4): A(f'v_fmac_f32 v11, v{16+w}, v{20+w}')
A('s_waitcnt lgkmcnt(0)')
for e in range(4): A(f'v_mul_f32 v{24+e}, v{32+e}, v16')
for w in range(1,4):
    for e in range(4): A(f'v_fmac_f32 v{24+e}, v{32+4*w+e}, v{16+w}')
for e in range(4): A(f'v_min_u32 v{24+e}, 0xfffffffe, v{24+e}')
A('v_min_u32 v10, 0xfffffffe, v10')
A('v_min_u32 v11, 0xfffffffe, v11')
A(f's_lshl_b32 {sT0}, {sH}, 1')
A(f's_add_u32 {sT0}, {sT0}, {sW}')
A(f's_lshl_b32 {sT0}, {sT0}, 5')
A(f's_add_u32 {sT0}, {sT0}, {sS}')
A(f's_lshl_b32 {sT1}, {sT0}, 10')
A(f's_add_u32 {sT1}, {sT1}, {O1_OFF}')
A(f'buffer_store_dwordx4 v[24:27], v3, {sWS}, {sT1} offen sc1')
A(f's_lshl_b32 {sT1}, {sT0}, 3')
A(f's_add_u32 {sT1}, {sT1}, {S1_OFF}')
A('v_cmp_eq_u32 vcc, 0, v1')
A('v_cndmask_b32 v13, v8, v1, vcc')
A(f'buffer_store_dwordx2 v[10:11], v13, {sWS}, {sT1} offen sc1')
A.label('L_nopub')
stamp(6)
A(f's_cmp_eq_u32 {sROLE}, 0')
A('s_cbranch_scc1 L_end')
A('v_mov_b32 v13, 0')
A.label('L_b4spin')
A(f'ds_read_b32 v14, v13 offset:{L_FLAG}')
A('s_waitcnt lgkmcnt(0)')
A('v_cmp_ne_u32 vcc, 1, v14')
A('s_nop 1')
A('s_cbranch_vccz L_b4ok')
guard('L_b4ok')
A('s_sleep 1')
A('s_branch L_b4spin')
A.label('L_b4ok')
A(f's_cmp_eq_u32 {sROLE}, 2')
A('s_cbranch_scc1 L_ffn')
A(f's_cmp_eq_u32 {sROLE}, 3')
A('s_cbranch_scc1 L_fin')

A('v_lshlrev_b32 v9, 3, v7')
A('v_and_b32 v10, 15, v1')
A('v_lshlrev_b32 v10, 4, v10')
A('v_lshl_add_u32 v10, v7, 10, v10')
A(f's_lshl_b32 {sC0}, {sJ}, 8')
A(f's_add_u32 {sC0}, {sC0}, {S1_OFF}')
A(f's_lshl_b32 {sC1}, {sJ}, 15')
A(f's_lshl_b32 {sT0}, {sW}, 8')
A(f's_add_u32 {sC1}, {sC1}, {sT0}')
A(f's_add_u32 {sC1}, {sC1}, {O1_OFF}')
SR=16; OR_=32; WR=64
def wo_poll_issue():
    for i in range(8):
        A(f'buffer_load_dwordx2 v[{SR+2*i}:{SR+1+2*i}], v9, {sWS}, {sC0} offen offset:{32*i} sc1')
    A(f's_mov_b32 {sT0}, {sC1}')
    for i in range(8):
        A(f'buffer_load_dwordx4 v[{OR_+4*i}:{OR_+3+4*i}], v10, {sWS}, {sT0} offen sc1')
        if i<7: A(f's_add_u32 {sT0}, {sT0}, 4096')
wo_poll_issue()
A(f's_lshl_b32 {sT0}, {sW}, 13')
A(f'v_add_u32 v12, {sT0}, v3')
for i in range(8): A(f'ds_read_b128 v[{WR+4*i}:{WR+3+4*i}], v12 offset:{L_W+1024*i}')
A.label('L_wopoll')
A('s_waitcnt vmcnt(0)')
sentinel_check(range(16,64), 11, 'L_wore')
A('s_branch L_wogo')
A.label('L_wore')
guard('L_wogo')
A('s_sleep 1')
wo_poll_issue()
A('s_branch L_wopoll')
A.label('L_wogo')
stamp(8)
A(f'v_max_f32 v11, v{SR}, v{SR+2}')
for i in range(2,8,2): A(f'v_max3_f32 v11, v11, v{SR+2*i}, v{SR+2+2*i}')
allreduce('max',11,12,lo=False)
for i in range(8): A(f'v_sub_f32 v{SR+2*i}, v{SR+2*i}, v11')
for i in range(8): A(f'v_exp_f32 v{SR+2*i}, v{SR+2*i}')
A(f'v_mul_f32 v11, v{SR}, v{SR+1}')
for i in range(1,8): A(f'v_fmac_f32 v11, v{SR+2*i}, v{SR+1+2*i}')
allreduce('add',11,12,lo=False)
A('v_rcp_f32 v12, v11')
for e in range(4): A(f'v_mul_f32 v{96+e}, v{OR_+e}, v{SR}')
for i in range(1,8):
    for e in range(4): A(f'v_fmac_f32 v{96+e}, v{OR_+4*i+e}, v{SR+2*i}')
for e in range(4): allreduce('add',96+e,100+e,lo=False)
for e in range(4):
    fdiv(104+e,96+e,11,12,100+e)
    bf16round(104+e)
A('v_and_b32 v13, 15, v1')
A('v_lshlrev_b32 v13, 4, v13')
A(f's_lshl_b32 {sT0}, {sW}, 8')
A(f'v_add_u32 v13, {sT0}, v13')
A(f'ds_write_b128 v13, v[104:107] offset:{L_OV}')
A('v_lshrrev_b32 v13, 3, v1')
A('v_lshlrev_b32 v13, 2, v13')
A(f'v_add_u32 v13, {sT0}, v13')
A('s_waitcnt lgkmcnt(0)')
for i in range(8): A(f'ds_read_b32 v{32+2*i}, v13 offset:{L_OV+32*i}')
for k in range(8): A(f'v_mov_b32 v{16+k}, 0')
for i in range(8):
    for k in range(4): unpack(f'v{WR+4*i+k}', 96+2*k)
    A(f's_waitcnt lgkmcnt({7-i})')
    for k in range(4):
        A(f'v_pk_fma_f32 v[{16+2*k}:{17+2*k}], v[{96+2*k}:{97+2*k}], v[{32+2*i}:{33+2*i}], v[{16+2*k}:{17+2*k}] op_sel_hi:[1,0,1]')
for k in range(8):
    A(f'v_add_f32_dpp v{16+k}, v{16+k}, v{16+k} row_ror:8 row_mask:0xf bank_mask:0xf')
A('v_and_b32 v13, 7, v1')
A('v_lshlrev_b32 v13, 5, v13')
A('v_lshl_add_u32 v13, v7, 8, v13')
A(f's_lshl_b32 {sT0}, {sW}, 10')
A(f'v_add_u32 v13, {sT0}, v13')
A(f'ds_write_b128 v13, v[16:19] offset:{L_RED2}')
A(f'ds_write_b128 v13, v[20:23] offset:{L_RED2+16}')
A('s_waitcnt lgkmcnt(0)')
A('s_barrier')
A(f's_cmp_lg_u32 {sW}, 0')
A('s_cbranch_scc1 L_end')
A('v_lshlrev_b32 v13, 2, v1')
for k in range(16): A(f'ds_read_b32 v{16+k}, v13 offset:{L_RED2+256*k}')
A('s_waitcnt lgkmcnt(0)')
for st in (8,4,2,1):
    for k in range(st): A(f'v_add_f32 v{16+k}, v{16+k}, v{16+k+st}')
A('v_min_u32 v16, 0xfffffffe, v16')
A(f's_mul_i32 {sT1}, {sJ}, 1792')
A(f's_lshl_b32 {sT2}, {sN}, 8')
A(f's_add_u32 {sT1}, {sT1}, {sT2}')
A(f's_add_u32 {sT1}, {sT1}, {P2_OFF}')
A(f'buffer_store_dword v16, v13, {sWS}, {sT1} offen sc1')
stamp(9)
A('s_branch L_end')

A.label('L_ffn')
A('v_and_b32 v11, 31, v1')
A('v_cmp_gt_u32 vcc, 28, v11')
A('v_lshlrev_b32 v12, 3, v11')
A('v_cndmask_b32 v12, v8, v12, vcc')
A(f's_mul_i32 {sT0}, {sW}, 224')
A(f'buffer_load_dwordx2 v[4:5], v12, {sX}, {sT0} offen')
A('v_lshlrev_b32 v14, 4, v11')
A('v_lshrrev_b32 v12, 5, v1')
A('v_mul_u32_u24 v12, 1792, v12')
A('v_add_u32 v14, v14, v12')
A('v_cndmask_b32 v14, v8, v14, vcc')
A(f's_mul_i32 {sT0}, {sW}, {22*1024}')
A(f'v_add_u32 v12, {sT0}, v3')
for i in range(22): A(f'ds_read_b128 v[{40+4*i}:{43+4*i}], v12 offset:{L_W+1024*i}')
stamp(7)
A(f's_mul_i32 {sC0}, {sW}, 448')
A(f's_add_u32 {sC0}, {sC0}, {P2_OFF}')
A.label('L_ffpoll')
A(f's_mov_b32 {sT0}, {sC0}')
for i in range(8):
    A(f'buffer_load_dwordx4 a[{4*i}:{4*i+3}], v14, {sWS}, {sT0} offen sc1')
    if i<7: A(f's_add_u32 {sT0}, {sT0}, 3584')
A('s_waitcnt vmcnt(0)')
for i in range(16): A(f'v_accvgpr_read_b32 v{16+i}, a{i}')
A('v_max3_u32 v9, v16, v17, v18')
for i in range(3,15,2): A(f'v_max3_u32 v9, v9, v{16+i}, v{17+i}')
A('v_max_u32 v9, v9, v31')
for k in range(8): A(f'v_add_f32 v{16+k}, v{16+k}, v{24+k}')
for i in range(16): A(f'v_accvgpr_read_b32 v{24+i}, a{16+i}')
for i in range(0,16,2): A(f'v_max3_u32 v9, v9, v{24+i}, v{25+i}')
A('v_cmp_eq_u32 vcc, -1, v9')
A('s_nop 1')
A('s_cbranch_vccz L_ffgo')
guard('L_ffgo')
A('s_sleep 1')
A('s_branch L_ffpoll')
A.label('L_ffgo')
stamp(8)
for k in range(8): A(f'v_add_f32 v{24+k}, v{24+k}, v{32+k}')
for k in range(8): A(f'v_add_f32 v{16+k}, v{16+k}, v{24+k}')
for k in range(4): A(f'v_add_f32 v{16+k}, v{16+k}, v{20+k}')
unpack('v4',24); unpack('v5',26)
for e in range(4): allreduce('add',16+e,20+e,lo=False,x16=False)
for e in range(4):
    bf16round(16+e)
    A(f'v_add_f32 v{16+e}, v{16+e}, v{24+e}')
    bf16round(16+e)
A('v_add_f32 v9, v16, v17')
A('v_add_f32 v10, v18, v19')
A('v_add_f32 v9, v9, v10')
allreduce('add',9,10)
A(f'v_mul_f32 v9, {hex(f2u(1.0/224))}, v9')
A('v_mov_b32 v11, 0')
for e in range(4):
    A(f'v_sub_f32 v10, v{16+e}, v9')
    A('v_fmac_f32 v11, v10, v10')
A('v_and_b32 v12, 31, v1')
A('v_cmp_gt_u32 vcc, 28, v12')
A('v_cndmask_b32 v11, 0, v11, vcc')
allreduce('add',11,10)
A('v_mul_f32 v11, 0.5, v11')
A('v_mov_b32 v10, v9')
A(f's_lshl_b32 {sT0}, {sW}, 3')
A(f'v_mov_b32 v12, {sT0}')
A(f'ds_write_b64 v12, v[10:11] offset:{L_ST3}')
A('s_waitcnt lgkmcnt(0)')
A('s_barrier')
A('v_mov_b32 v12, 0')
A(f'ds_read_b128 v[20:23], v12 offset:{L_ST3}')
A(f'ds_read_b128 v[24:27], v12 offset:{L_ST3+16}')
A('s_waitcnt lgkmcnt(0)')
A('v_add_f32 v9, v20, v22')
A('v_add_f32 v10, v24, v26')
A('v_add_f32 v9, v9, v10')
A('v_mul_f32 v9, 0.25, v9')
A('v_add_f32 v11, v21, v23')
A('v_add_f32 v10, v25, v27')
A('v_add_f32 v11, v11, v10')
A('v_mov_b32 v13, 0')
for r in (20,22,24,26):
    A(f'v_sub_f32 v10, v{r}, v9')
    A('v_fmac_f32 v13, v10, v10')
A(f'v_mov_b32 v10, {hex(f2u(112.0))}')
A('v_fmac_f32 v11, v13, v10')
A(f'v_mul_f32 v11, {hex(f2u(1.0/448))}, v11')
layernorm_consts(9,11,10)
for e in range(4):
    A(f'v_sub_f32 v{20+e}, v{16+e}, v9')
    bf16round(20+e)
    fdiv(24+e,20+e,11,10,12)
    bf16round(24+e)
A('v_and_b32 v12, 31, v1')
A('v_cmp_gt_u32 vcc, 28, v12')
A('v_lshlrev_b32 v12, 4, v12')
A(f's_mul_i32 {sT0}, {sW}, 448')
A(f'v_add_u32 v12, {sT0}, v12')
A('s_and_saveexec_b64 s[98:99], vcc')
A(f'ds_write_b128 v12, v[24:27] offset:{L_HN}')
A('s_mov_b64 exec, s[98:99]')
A('v_lshrrev_b32 v12, 2, v1')
A('v_lshlrev_b32 v12, 2, v12')
A(f'v_add_u32 v12, {sT0}, v12')
A('s_waitcnt lgkmcnt(0)')
for i in range(7): A(f'ds_read_b32 v{32+i}, v12 offset:{L_HN+64*i}')
for k in range(16): A(f'v_mov_b32 v{16+k}, 0')
for i in range(7):
    A(f's_waitcnt lgkmcnt({6-i})')
    for mat in range(2):
        raw=40+28*mat+4*i
        for k in range(4):
            A(f'v_lshlrev_b32 v4, 16, v{raw+k}')
            A(f'v_and_b32 v5, 0xffff0000, v{raw+k}')
            A(f'v_fmac_f32 v{16+8*mat+2*k}, v4, v{32+i}')
            A(f'v_fmac_f32 v{17+8*mat+2*k}, v5, v{32+i}')
for m in ('row_ror:8','row_ror:4'):
    for k in range(16):
        A(f'v_add_f32_dpp v{16+k}, v{16+k}, v{16+k} {m} row_mask:0xf bank_mask:0xf')
A('v_and_b32 v13, 3, v1')
A('v_lshlrev_b32 v13, 5, v13')
A('v_lshl_add_u32 v13, v7, 8, v13')
A(f's_lshl_b32 {sT0}, {sW}, 10')
A(f'v_add_u32 v13, {sT0}, v13')
A(f'ds_write_b128 v13, v[16:19] offset:{L_RED3}')
A(f'ds_write_b128 v13, v[20:23] offset:{L_RED3+16}')
A(f'ds_write_b128 v13, v[24:27] offset:{L_RED3+128}')
A(f'ds_write_b128 v13, v[28:31] offset:{L_RED3+144}')
A('s_waitcnt lgkmcnt(0)')
A('s_barrier')
A('v_lshlrev_b32 v13, 2, v1')
for k in range(16): A(f'ds_read_b32 v{16+k}, v13 offset:{L_RED3+256*k}')
A('s_waitcnt lgkmcnt(0)')
for st in (8,4,2,1):
    for k in range(st): A(f'v_add_f32 v{16+k}, v{16+k}, v{16+k+st}')
bf16round(16)
A('v_mov_b32 v17, v16')
A('v_permlane32_swap_b32 v16, v17')
A('v_mul_f32 v18, v16, v16')
A(f'v_mov_b32 v19, {hex(f2u(0.044715))}')
A('v_fma_f32 v18, v18, v19, 1.0')
A('v_mul_f32 v18, v18, v16')
A(f'v_mul_f32 v18, {hex(f2u(2.0*0.7978845608028654*LOG2E))}, v18')
A('v_exp_f32 v18, v18')
A('v_add_f32 v18, 1.0, v18')
A('v_rcp_f32 v18, v18')
A('v_fma_f32 v18, v18, -2.0, 2.0')
A('v_mul_f32 v18, v18, v16')
A('v_mul_f32 v18, 0.5, v18')
bf16round(18)
A('v_mul_f32 v18, v18, v17')
bf16round(18)
A(f's_lshl_b32 {sT0}, {sW}, 3')
for i in range(8):
    A(f'v_readlane_b32 s{sA0+i}, v18, {sT0}')
    if i<7: A(f's_add_u32 {sT0}, {sT0}, 1')
for k in range(8): A(f'v_mov_b32 v{16+k}, 0')
for i in range(8):
    for k in range(4):
        A(f'v_lshlrev_b32 v4, 16, v{96+4*i+k}')
        A(f'v_and_b32 v5, 0xffff0000, v{96+4*i+k}')
        A(f'v_fma_f32 v{16+2*k}, v4, s{sA0+i}, v{16+2*k}')
        A(f'v_fma_f32 v{17+2*k}, v5, s{sA0+i}, v{17+2*k}')
A('v_lshlrev_b32 v13, 5, v1')
A(f's_mul_i32 {sT0}, {sW}, 1792')
A(f'v_add_u32 v13, {sT0}, v13')
A('v_cmp_gt_u32 vcc, 56, v1')
A('s_and_saveexec_b64 s[98:99], vcc')
A(f'ds_write_b128 v13, v[16:19] offset:{L_RED4}')
A(f'ds_write_b128 v13, v[20:23] offset:{L_RED4+16}')
A('s_mov_b64 exec, s[98:99]')
A('s_waitcnt lgkmcnt(0)')
A('s_barrier')
A(f's_cmp_ge_u32 {sW}, 2')
A('s_cbranch_scc1 L_end')
A(f's_lshl_b32 {sT0}, {sW}, 10')
A(f'v_add_u32 v13, {sT0}, v3')
A('v_cmp_gt_u32 vcc, 1792, v13')
A('v_cndmask_b32 v12, v8, v13, vcc')
A('v_cndmask_b32 v13, 0, v13, vcc')
for w in range(4): A(f'ds_read_b128 v[{16+4*w}:{19+4*w}], v13 offset:{L_RED4+1792*w}')
A('s_waitcnt lgkmcnt(0)')
for e in range(4):
    A(f'v_add_f32 v{16+e}, v{16+e}, v{20+e}')
    A(f'v_add_f32 v{24+e}, v{24+e}, v{28+e}')
for e in range(4):
    A(f'v_add_f32 v{16+e}, v{16+e}, v{24+e}')
    A(f'v_min_u32 v{16+e}, 0xfffffffe, v{16+e}')
A(f's_mul_i32 {sT1}, {sF}, 1792')
A(f's_add_u32 {sT1}, {sT1}, {P3_OFF}')
A(f'buffer_store_dwordx4 v[16:19], v12, {sWS}, {sT1} offen sc1')
stamp(9)
A('s_branch L_end')

A.label('L_fin')
A(f's_cmp_lg_u32 {sW}, 0')
A('s_cbranch_scc1 L_end')
A('v_and_b32 v11, 15, v1')
A('v_lshlrev_b32 v12, 3, v11')
A(f's_lshl_b32 {sT0}, {sH}, 7')
A(f'buffer_load_dwordx2 v[48:49], v12, {sX}, {sT0} offen')
A('v_lshlrev_b32 v14, 4, v11')
A('v_mul_u32_u24 v10, 1792, v7')
A('v_add_u32 v14, v14, v10')
A(f's_lshl_b32 {sC0}, {sH}, 8')
A(f's_add_u32 {sC1}, {sC0}, {P3_OFF}')
A(f's_add_u32 {sC0}, {sC0}, {P2_OFF}')
A.label('L_f2poll')
A(f's_mov_b32 {sT0}, {sC0}')
for i in range(4):
    A(f'buffer_load_dwordx4 v[{16+4*i}:{19+4*i}], v14, {sWS}, {sT0} offen sc1')
    if i<3: A(f's_add_u32 {sT0}, {sT0}, 7168')
A('s_waitcnt vmcnt(0)')
sentinel_check(range(16,32), 9, 'L_f2re')
A('s_branch L_f2go')
A.label('L_f2re')
guard('L_f2go')
A('s_sleep 2')
A('s_branch L_f2poll')
A.label('L_f2go')
stamp(7)
unpack('v48',50); unpack('v49',52)
for st in (8,4):
    for k in range(st): A(f'v_add_f32 v{16+k}, v{16+k}, v{16+k+st}')
for e in range(4): allreduce('add',16+e,20+e,lo=False)
for e in range(4):
    bf16round(16+e)
    A(f'v_add_f32 v{16+e}, v{16+e}, v{50+e}')
    bf16round(16+e)
A.label('L_f3poll')
A(f's_mov_b32 {sT0}, {sC1}')
for i in range(14):
    A(f'buffer_load_dwordx4 v[{64+4*i}:{67+4*i}], v14, {sWS}, {sT0} offen sc1')
    if i<13: A(f's_add_u32 {sT0}, {sT0}, 7168')
A('s_waitcnt vmcnt(0)')
sentinel_check(range(64,120), 9, 'L_f3re')
A('s_branch L_f3go')
A.label('L_f3re')
guard('L_f3go')
A('s_sleep 1')
A('s_branch L_f3poll')
A.label('L_f3go')
stamp(8)
for i in range(7):
    for e in range(4): A(f'v_add_f32 v{64+4*i+e}, v{64+4*i+e}, v{92+4*i+e}')
for i in range(1,7):
    for e in range(4): A(f'v_add_f32 v{64+e}, v{64+e}, v{64+4*i+e}')
for e in range(4): allreduce('add',64+e,20+e,lo=False)
for e in range(4):
    bf16round(64+e)
    A(f'v_add_f32 v{64+e}, v{64+e}, v{16+e}')
A('v_cvt_pk_bf16_f32 v64, v64, v65')
A('v_cvt_pk_bf16_f32 v65, v66, v67')
A('v_cmp_gt_u32 vcc, 16, v1')
A('v_cndmask_b32 v12, v8, v12, vcc')
A(f's_lshl_b32 {sT0}, {sH}, 7')
A(f'buffer_store_dwordx2 v[64:65], v12, {sOUT}, {sT0} offen')
A('s_branch L_end')

A.label('L_helper')
A(f'buffer_load_dwordx4 v[60:63], v3, {sX}, 0 offen')
A('v_lshrrev_b32 v9, 1, v1')
A('v_lshlrev_b32 v9, 13, v9')
A('v_and_b32 v10, 1, v1')
A('v_lshl_add_u32 v9, v10, 4, v9')
A(f's_lshl_b32 {sC0}, {sH}, 10')
A(f's_lshl_b32 {sT1}, {sS}, 5')
A(f's_add_u32 {sC0}, {sC0}, {sT1}')
A(f's_mov_b32 {sT0}, {sC0}')
for i in range(14):
    A(f'buffer_load_dwordx4 v[{64+4*i}:{67+4*i}], v9, {sWQ}, {sT0} offen nt')
    if i<13: A(f's_add_u32 {sT0}, {sT0}, 262144')
for i in range(4): A(f'v_mov_b32 v{12+i}, -1')
A(f's_lshl_b32 {sT0}, {sH}, 6')
A(f's_add_u32 {sT0}, {sT0}, {sS}')
A(f's_lshl_b32 {sT1}, {sT0}, 10')
A(f's_add_u32 {sT1}, {sT1}, {O1_OFF}')
A(f's_add_u32 {sT2}, {sT1}, 32768')
A(f'buffer_store_dwordx4 v[12:15], v3, {sWS}, {sT1} offen sc1')
A(f'buffer_store_dwordx4 v[12:15], v3, {sWS}, {sT2} offen sc1')
A(f's_lshl_b32 {sT1}, {sT0}, 3')
A(f's_add_u32 {sT1}, {sT1}, {S1_OFF}')
A('v_lshlrev_b32 v10, 8, v1')
A('v_cmp_gt_u32 vcc, 2, v1')
A('v_cndmask_b32 v10, v8, v10, vcc')
A(f'buffer_store_dwordx2 v[12:13], v10, {sWS}, {sT1} offen sc1')
A(f's_cmp_lg_u32 {sROLE}, 1')
A('s_cbranch_scc1 L_noclr2')
A(f's_mul_i32 {sT1}, {sJ}, 1792')
A(f's_lshl_b32 {sT2}, {sN}, 8')
A(f's_add_u32 {sT1}, {sT1}, {sT2}')
A(f's_add_u32 {sT1}, {sT1}, {P2_OFF}')
A('v_cmp_gt_u32 vcc, 16, v1')
A('v_cndmask_b32 v10, v8, v3, vcc')
A(f'buffer_store_dwordx4 v[12:15], v10, {sWS}, {sT1} offen sc1')
A.label('L_noclr2')
A(f's_cmp_lg_u32 {sROLE}, 2')
A('s_cbranch_scc1 L_noclear')
A(f's_mul_i32 {sT1}, {sF}, 1792')
A(f's_add_u32 {sT1}, {sT1}, {P3_OFF}')
A('v_cmp_gt_u32 vcc, 48, v1')
A('v_cndmask_b32 v10, v8, v3, vcc')
A(f'buffer_store_dwordx4 v[12:15], v3, {sWS}, {sT1} offen sc1')
A(f'buffer_store_dwordx4 v[12:15], v10, {sWS}, {sT1} offen offset:1024 sc1')
A.label('L_noclear')
A('s_waitcnt vmcnt(16)')
A('s_waitcnt vmcnt(14)')
for k in range(4): unpack(f'v{60+k}', 16+2*k)
A('v_add_f32 v9, v16, v17')
for k in range(2,8): A(f'v_add_f32 v9, v9, v{16+k}')
allreduce('add',9,10)
A(f'v_mul_f32 v9, {hex(f2u(1.0/448))}, v9')
A('v_mov_b32 v11, 0')
for k in range(8):
    A(f'v_sub_f32 v10, v{16+k}, v9')
    A(f'v_fmac_f32 v11, v10, v10')
A('v_cmp_gt_u32 vcc, 56, v1')
A('v_cndmask_b32 v11, 0, v11, vcc')
allreduce('add',11,10)
A(f'v_mul_f32 v11, {hex(f2u(1.0/448))}, v11')
layernorm_consts(9,11,10)
for k in range(8):
    A(f'v_sub_f32 v{16+k}, v{16+k}, v9')
    bf16round(16+k)
    fdiv(24+k,16+k,11,10,12)
    bf16round(24+k)
A('v_lshlrev_b32 v12, 5, v1')
A('v_cmp_gt_u32 vcc, 56, v1')
A('s_and_saveexec_b64 s[98:99], vcc')
A(f'ds_write_b128 v12, v[24:27] offset:{L_XN}')
A(f'ds_write_b128 v12, v[28:31] offset:{L_XN+16}')
A('s_mov_b64 exec, s[98:99]')
A('v_lshrrev_b32 v12, 1, v1')
A('v_lshlrev_b32 v12, 2, v12')
A('s_waitcnt lgkmcnt(0)')
for i in range(14): A(f'ds_read_b32 v{32+2*i}, v12 offset:{L_XN+128*i}')
for k in range(8): A(f'v_mov_b32 v{16+k}, 0')
A('s_waitcnt vmcnt(0) lgkmcnt(0)')
stamp(1)
for i in range(14): fma8(16, 64+4*i, 32+2*i, 24)
for m in ('quad_perm:[2,3,0,1]','row_ror:4','row_ror:8'):
    for k in range(8):
        A(f'v_add_f32_dpp v{16+k}, v{16+k}, v{16+k} {m} row_mask:0xf bank_mask:0xf')
for k in range(8): allreduce('add',16+k,24+k,lo=False)
for k in range(4): A(f'v_cvt_pk_bf16_f32 v{16+k}, v{16+2*k}, v{17+2*k}')
A('v_cmp_gt_u32 vcc, 2, v1')
A('v_cndmask_b32 v12, v8, v3, vcc')
A(f's_add_u32 {sT0}, {sC0}, {Q_OFF}')
A(f'buffer_store_dwordx4 v[16:19], v12, {sWS}, {sT0} offen sc1')
A('s_waitcnt vmcnt(0)')
A('v_mov_b32 v12, 1')
A('v_cmp_eq_u32 vcc, 0, v1')
A('v_cndmask_b32 v13, v8, v1, vcc')
A(f's_lshl_b32 {sT0}, {sH}, 5')
A(f's_add_u32 {sT1}, {sT0}, {sS}')
A(f'buffer_store_byte v12, v13, {sDB}, {sT1} offen sc1')
stamp(2)
A('v_and_b32 v13, 7, v1')
A('v_lshlrev_b32 v13, 2, v13')
A.label('L_fpoll')
A('s_sleep 8')
A(f'buffer_load_dword v12, v13, {sDB}, {sT0} offen sc1')
A('s_waitcnt vmcnt(0)')
A('v_cmp_ne_u32 vcc, 0x01010101, v12')
A('s_nop 1')
A('s_cbranch_vccz L_fok')
guard('L_fok')
A('s_branch L_fpoll')
A.label('L_fok')
stamp(3)
A(f's_lshl_b32 {sT0}, {sH}, 10')
A(f's_add_u32 {sT0}, {sT0}, {Q_OFF}')
A(f'buffer_load_dwordx4 v[16:19], v3, {sWS}, {sT0} offen sc1')
A('s_waitcnt vmcnt(0)')
A(f'ds_write_b128 v3, v[16:19] offset:{L_Q}')
A('v_mov_b32 v12, 0')
A('v_mov_b32 v13, 0')
A(f'ds_write_b64 v12, v[12:13] offset:{L_CNT}')
A('s_waitcnt lgkmcnt(0)')
stamp(4)
A('s_barrier')
A(f's_cmp_eq_u32 {sROLE}, 0')
A('s_cbranch_scc1 L_end')
A(f's_cmp_lg_u32 {sROLE}, 1')
A('s_cbranch_scc1 L_hnowo')
A('v_lshrrev_b32 v9, 3, v1')
A('v_mul_u32_u24 v9, 896, v9')
A('v_and_b32 v10, 7, v1')
A('v_lshl_add_u32 v9, v10, 4, v9')
A(f's_lshl_b32 {sT0}, {sJ}, 8')
A(f's_mul_i32 {sT0}, {sT0}, 896')
A(f's_lshl_b32 {sT1}, {sN}, 7')
A(f's_add_u32 {sT0}, {sT0}, {sT1}')
for i in range(32):
    A(f'buffer_load_dwordx4 a[{4*i}:{4*i+3}], v9, {sWO}, {sT0} offen nt')
    if i<31: A(f's_add_u32 {sT0}, {sT0}, {8*896}')
    if i%4==3: A('s_waitcnt vmcnt(8)')
A.label('L_hnowo')
A('v_mov_b32 v13, 0')
A.label('L_hcnt')
A(f'ds_read_b32 v14, v13 offset:{L_CNT}')
A('s_waitcnt lgkmcnt(0)')
A('v_cmp_ne_u32 vcc, 4, v14')
A('s_nop 1')
A('s_cbranch_vccz L_hcntok')
guard('L_hcntok')
A('s_sleep 1')
A('s_branch L_hcnt')
A.label('L_hcntok')
A(f's_cmp_lg_u32 {sROLE}, 1')
A('s_cbranch_scc1 L_hnowo2')
A('s_waitcnt vmcnt(0)')
A(f'v_add_u32 v9, {L_W}, v3')
for i in range(32):
    A(f'ds_write_b128 v9, a[{4*i}:{4*i+3}] offset:{1024*i}')
A.label('L_hnowo2')
A(f's_cmp_lg_u32 {sROLE}, 2')
A('s_cbranch_scc1 L_hnoffn')
A('v_lshrrev_b32 v9, 2, v1')
A('v_mul_u32_u24 v9, 3584, v9')
A('v_and_b32 v10, 3, v1')
A('v_lshl_add_u32 v9, v10, 4, v9')
A('v_cmp_gt_u32 vcc, 56, v1')
A('v_cndmask_b32 v10, v8, v3, vcc')
A(f's_lshl_b32 {sT0}, {sF}, 6')
A(f's_lshl_b32 {sT1}, {sF}, 5')
A(f's_mul_i32 {sT1}, {sT1}, 896')
for w in range(4):
    for i in range(7):
        A(f's_mov_b32 m0, {L_W+1024*(22*w+i)}')
        A('s_nop 0')
        A(f'buffer_load_dwordx4 v9, {sWG}, {sT0} offen nt lds')
        A(f's_mov_b32 m0, {L_W+1024*(22*w+7+i)}')
        A('s_nop 0')
        A(f'buffer_load_dwordx4 v9, {sWU}, {sT0} offen nt lds')
        A(f's_add_u32 {sT0}, {sT0}, {16*3584}')
    for i in range(8):
        A(f's_mov_b32 m0, {L_W+1024*(22*w+14+i)}')
        A('s_nop 0')
        A(f'buffer_load_dwordx4 v10, {sWD}, {sT1} offen nt lds')
        A(f's_add_u32 {sT1}, {sT1}, 896')
    A('s_waitcnt vmcnt(30)')
A.label('L_hnoffn')
A('v_lshlrev_b32 v13, 2, v1')
A.label('L_afpoll')
A(f'buffer_load_dword v12, v13, {sDB}, 0 offen sc1')
A('s_waitcnt vmcnt(0)')
A('v_cmp_ne_u32 vcc, 0x01010101, v12')
A('s_nop 1')
A('s_cbranch_vccz L_afok')
guard('L_afok')
A('s_sleep 8')
A('s_branch L_afpoll')
A.label('L_afok')
stamp(5)
A('v_mov_b32 v12, 0')
A('v_mov_b32 v13, 1')
A('s_waitcnt lgkmcnt(0)')
A(f'ds_write_b32 v12, v13 offset:{L_FLAG}')
A('s_waitcnt lgkmcnt(0)')
A.label('L_end')
if STAMP:
    stamp(10)
    A('s_cmp_ge_u32 s2, 256')
    A('s_cbranch_scc1 L_end2')
    A('v_mov_b32 v5, 0')
    A('s_mul_i32 s3, s2, 5')
    A(f's_add_u32 s3, s3, {sW}')
    A('s_lshl_b32 s3, s3, 6')
    A(f's_add_u32 s3, s3, {STAMP_OFF}')
    A('s_mov_b64 exec, 1')
    for i in range(16):
        A(f'v_mov_b32 v6, s{48+i}')
        A(f'buffer_store_dword v6, v5, {sWS}, s3 offen offset:{4*i}')
    A.label('L_end2')
A('s_endpgm')

hdr=open('cdna_kernels/'+NAME+'.s.ref').read().split('; @launch')[0]
out=hdr+f'; @launch grid=(256,1,1) block=(320,1,1) lds={LDS_SIZE}\n'
out+='.amdgcn_target "amdgcn-amd-amdhsa--gfx950"\n.text\n'
out+=f'.globl {NAME}_kernel\n.p2align 8\n.type {NAME}_kernel,@function\n'
out+=A.text()
out+=f'''.section .rodata,"a"
.p2align 6
.amdhsa_kernel {NAME}_kernel
  .amdhsa_next_free_vgpr 256
  .amdhsa_next_free_sgpr 102
  .amdhsa_accum_offset 128
  .amdhsa_group_segment_fixed_size 0
  .amdhsa_kernarg_size 96
  .amdhsa_user_sgpr_count 2
  .amdhsa_user_sgpr_kernarg_segment_ptr 1
  .amdhsa_system_sgpr_workgroup_id_x 1
.end_amdhsa_kernel
'''
open(sys.argv[1],'w').write(out)
print('lines',len(A.lines))
```

```python
import sys, os, struct
from asmlib import Asm

NAME='sequential_preLN__gqa_block_cached__geglu_ffn__decode'
D = int(sys.argv[2]) if len(sys.argv)>2 else 12
STAMP=int(os.environ.get('STAMP','0'))
P1=[int(x) for x in os.environ.get('P1','0,8,16,24').split(',')]
PZ=[int(x) for x in os.environ.get('PZ','16,24,32,40,48,56').split(',')]
SPIN=100000

Q_OFF=0x0; S1_OFF=0x2000; O1_OFF=0x4000; P2_OFF=0x84000; P3_OFF=0x8C000; WS_SIZE=0xA4800
STAMP_OFF=0x100000
if STAMP: WS_SIZE=0x200000
OOB=0x80000000
L_XN=0; L_Q=2048; L_P=4096; L_OW=6144; L_ST=14336; L_OV=14400; L_RED2=15424; L_ST3=19520; L_HN=19584
L_CNT=19552; L_FLAG=19556; L_RED3=21376; L_RED4=25472; L_W=32768; L_V=32768; LDS_SIZE=163840
LOG2E=1.4426950408889634
def f2u(x): return struct.unpack('<I',struct.pack('<f',x))[0]

A=Asm()
sK='s[4:7]'; sV='s[8:11]'; sWS='s[12:15]'; sDB='s[16:19]'; sX='s[20:23]'; sWQ='s[24:27]'; sWO='s[28:31]'
sWG='s[32:35]'; sWU='s[36:39]'; sWD='s[40:43]'; sOUT='s[44:47]'
sH='s72'; sS='s73'; sW='s74'; sT0='s75'; sT1='s76'; sT2='s77'; sT3='s78'; sKB='s79'; sVB='s80'; sJ='s81'; sN='s82'; sF='s83'
sOOB='s84'; sC0='s85'; sC1='s86'; sROLE='s87'; sC3='s88'
sA0=90

def srd(base, p, size):
    A(f's_mov_b32 s{base}, s{p}')
    A(f's_and_b32 s{base+1}, s{p+1}, 0xffff')
    A(f's_mov_b32 s{base+2}, {size}')
    A(f's_mov_b32 s{base+3}, 0x00020000')
def stamp(i):
    if not STAMP: return
    A('s_memrealtime s[100:101]')
    A('s_waitcnt lgkmcnt(0)')
    A(f's_mov_b32 s{48+i}, s100')
def guard(go):
    A('s_add_u32 s89, s89, 1')
    A(f's_cmp_gt_u32 s89, {SPIN}')
    A(f's_cbranch_scc1 {go}')
def allreduce(op, v, t, lo=True, x16=True, x32=True):
    ins = 'v_add_f32' if op=='add' else 'v_max_f32'
    if lo:
        for m in ('quad_perm:[1,0,3,2]','quad_perm:[2,3,0,1]','row_half_mirror','row_mirror'):
            A(f'{ins}_dpp v{v}, v{v}, v{v} {m} row_mask:0xf bank_mask:0xf')
    if x16:
        A(f'v_mov_b32 v{t}, v{v}'); A(f'v_permlane16_swap_b32 v{v}, v{t}'); A(f'{ins} v{v}, v{v}, v{t}')
    if x32:
        A(f'v_mov_b32 v{t}, v{v}'); A(f'v_permlane32_swap_b32 v{v}, v{t}'); A(f'{ins} v{v}, v{v}, v{t}')
def bf16round(v):
    A(f'v_cvt_pk_bf16_f32 v{v}, v{v}, v{v}')
    A(f'v_and_b32 v{v}, 0xffff0000, v{v}')
def unpack(src, dst):
    A(f'v_lshlrev_b32 v{dst}, 16, {src}')
    A(f'v_and_b32 v{dst+1}, 0xffff0000, {src}')
def fdiv(d, num, den, r, t):
    A(f'v_mul_f32 v{d}, v{num}, v{r}')
    A(f'v_fma_f32 v{t}, -v{d}, v{den}, v{num}')
    A(f'v_fma_f32 v{d}, v{t}, v{r}, v{d}')
def sentinel_check(regs, t, fail_label):
    regs=list(regs)
    A(f'v_max_u32 v{t}, v{regs[0]}, v{regs[1]}')
    i=2
    while i<len(regs):
        if i+1<len(regs):
            A(f'v_max3_u32 v{t}, v{t}, v{regs[i]}, v{regs[i+1]}'); i+=2
        else:
            A(f'v_max_u32 v{t}, v{t}, v{regs[i]}'); i+=1
    A(f'v_cmp_eq_u32 vcc, -1, v{t}')
    A('s_nop 1')
    A(f's_cbranch_vccnz {fail_label}')
def layernorm_consts(mean, var, t0):
    bf16round(mean); bf16round(var)
    A(f'v_add_f32 v{var}, {hex(f2u(1e-5))}, v{var}')
    bf16round(var)
    A(f'v_sqrt_f32 v{var}, v{var}')
    bf16round(var)
    A(f'v_rcp_f32 v{t0}, v{var}')
def fma8(acc, raw, mul, tmp):
    for k in range(4): unpack(f'v{raw+k}', tmp+2*k)
    for k in range(4):
        A(f'v_pk_fma_f32 v[{acc+2*k}:{acc+2*k+1}], v[{tmp+2*k}:{tmp+2*k+1}], v[{mul}:{mul+1}], v[{acc+2*k}:{acc+2*k+1}] op_sel_hi:[1,0,1]')

A.raw(f'{NAME}_kernel:')
A('s_cmp_ge_u32 s2, 256')
A('s_cbranch_scc1 L_end')
A('s_load_dwordx16 s[48:63], s[0:1], 0')
A('s_load_dwordx8 s[64:71], s[0:1], 64')
A('v_and_b32 v1, 63, v0')
A('v_lshrrev_b32 v6, 6, v0')
A(f'v_readfirstlane_b32 {sW}, v6')
A(f's_and_b32 {sH}, s2, 7')
A(f's_lshr_b32 {sS}, s2, 3')
A(f's_mov_b32 {sOOB}, {hex(OOB)}')
A('s_mov_b32 s89, 0')
A('v_and_b32 v6, 15, v1')
A('v_lshrrev_b32 v7, 4, v1')
A('v_lshlrev_b32 v2, 9, v6')
A('v_lshl_add_u32 v2, v7, 4, v2')
A('v_lshlrev_b32 v3, 4, v1')
A(f'v_mov_b32 v8, {sOOB}')
A('s_waitcnt lgkmcnt(0)')
srd(4,50,33554432); srd(8,52,33554432); srd(12,70,WS_SIZE); srd(16,68,256); srd(20,48,896)
srd(24,54,3670016); srd(28,56,3670016); srd(32,60,1605632); srd(36,62,1605632); srd(40,64,1605632); srd(44,66,896)
if STAMP:
    for i in range(1,16): A(f's_mov_b32 s{48+i}, 0')
stamp(0)
A(f's_mov_b32 {sROLE}, 0')
A(f's_cmp_lt_u32 {sS}, 14')
A(f's_cselect_b32 {sROLE}, 1, {sROLE}')
A(f's_sub_u32 {sT0}, {sS}, 16')
A(f's_cmp_lt_u32 {sT0}, 7')
A(f's_cselect_b32 {sROLE}, 2, {sROLE}')
A(f's_lshl_b32 {sT0}, {sS}, 3')
A(f's_add_u32 {sT0}, {sT0}, {sH}')
A(f's_sub_u32 {sT0}, {sT0}, 112')
A(f's_cmp_lt_u32 {sT0}, 7')
A(f's_cselect_b32 {sROLE}, 3, {sROLE}')
A(f's_cmp_ge_u32 {sS}, 7')
A(f's_cselect_b32 {sT0}, 1, 0')
A(f's_lshl_b32 {sJ}, {sH}, 1')
A(f's_add_u32 {sJ}, {sJ}, {sT0}')
A(f's_mul_i32 {sT0}, {sT0}, 7')
A(f's_sub_u32 {sN}, {sS}, {sT0}')
A(f's_mul_i32 {sF}, {sH}, 7')
A(f's_add_u32 {sF}, {sF}, {sS}')
A(f's_sub_u32 {sF}, {sF}, 16')
A(f's_cmp_eq_u32 {sW}, 4')
A('s_cbranch_scc1 L_helper')

A(f's_lshl_b32 {sKB}, {sH}, 22')
A(f's_lshl_b32 {sT0}, {sS}, 17')
A(f's_add_u32 {sKB}, {sKB}, {sT0}')
A(f's_lshl_b32 {sT0}, {sW}, 15')
A(f's_add_u32 {sKB}, {sKB}, {sT0}')
A(f's_mov_b32 {sVB}, {sKB}')
A(f's_mov_b32 {sC3}, {PZ[0]}')
for i in range(32):
    if PZ[i%len(PZ)]!=PZ[0]:
        A(f's_cmp_eq_u32 {sS}, {i}')
        A(f's_cselect_b32 {sC3}, {PZ[i%len(PZ)]}, {sC3}')
A(f's_mov_b32 s3, {P1[0]}')
for i in range(32):
    if P1[i%len(P1)]!=P1[0]:
        A(f's_cmp_eq_u32 {sS}, {i}')
        A(f's_cselect_b32 s3, {P1[i%len(P1)]}, s3')
def pausept(k):
    if k in P1:
        A(f's_cmp_lg_u32 s3, {k}')
        A(f's_cbranch_scc1 L_p1{k}')
        A('s_waitcnt vmcnt(0)')
        A('s_barrier')
        A('s_barrier')
        A.label(f'L_p1{k}')
    if k in PZ:
        A(f's_cmp_lg_u32 {sC3}, {k}')
        A(f's_cbranch_scc1 L_pz{k}')
        A('s_waitcnt vmcnt(0)')
        A('s_barrier')
        A('s_barrier')
        A.label(f'L_pz{k}')
def kload(n):
    blk,c=divmod(n,8)
    if c==0 and blk>0: A(f's_add_u32 {sKB}, {sKB}, 8192')
    A(f'buffer_load_dwordx4 a[{4*n}:{4*n+3}], v2, {sK}, {sKB} offen offset:{c*64} nt')
def pace(): A(f's_waitcnt vmcnt({D-1})')
cnt=0
for n in range(8):
    pausept(n)
    kload(n); cnt+=1
A('v_lshrrev_b32 v9, 5, v1')
A('v_and_b32 v10, 31, v1')
for m4 in range(4):
    A(f'v_add_u32 v11, {2*m4}, v9')
    A('v_lshlrev_b32 v11, 1, v11')
    A('v_xor_b32 v11, v11, v10')
    A('v_lshlrev_b32 v11, 4, v11')
    A(f'v_lshl_add_u32 v{120+m4}, v9, 9, v11')
A(f's_lshl_b32 {sT3}, {sW}, 15')
A(f's_add_u32 {sT3}, {sT3}, {L_V}')
def vload(n):
    A(f's_mov_b32 m0, {sT3}')
    A(f's_add_u32 {sT3}, {sT3}, 1024')
    A(f'buffer_load_dwordx4 v{120+n%4}, {sV}, {sVB} offen nt lds')
    A(f's_add_u32 {sVB}, {sVB}, 1024')
for n in range(8,32):
    pausept(n)
    if cnt>=D: pace()
    kload(n); cnt+=1
for n in range(32):
    pausept(32+n)
    pace(); vload(n)
for k in range(32): A(f'v_mov_b32 v{32+k}, 0')
A('v_and_b32 v9, 15, v1')
A('v_lshrrev_b32 v10, 2, v9')
A('v_lshl_add_u32 v10, v7, 2, v10')
A('v_and_b32 v11, 7, v10')
A('v_and_b32 v9, 3, v9')
A('v_lshlrev_b32 v10, 9, v10')
A('v_lshl_add_u32 v10, v9, 3, v10')
A(f's_lshl_b32 {sT0}, {sW}, 15')
A(f's_add_u32 {sT0}, {sT0}, {L_V}')
A(f'v_add_u32 v10, {sT0}, v10')
for b in range(8):
    A(f'v_xor_b32 v9, {b}, v11')
    A(f'v_lshl_add_u32 v{112+b}, v9, 5, v10')
A('v_and_b32 v6, 15, v1')
A('v_cmp_gt_u32 vcc, 2, v6')
stamp(1)
A('s_and_saveexec_b64 s[98:99], vcc')
for c in range(8): A(f'ds_read_b128 v[{32+4*c}:{35+4*c}], v2 offset:{L_Q+64*c}')
A('s_mov_b64 exec, s[98:99]')
A('s_waitcnt vmcnt(32) lgkmcnt(0)')
stamp(3)
for blk in range(4):
    for c in range(8):
        n=blk*8+c
        cin = '0' if c==0 else f'v[{16+4*blk}:{19+4*blk}]'
        A(f'v_mfma_f32_16x16x32_bf16 v[{16+4*blk}:{19+4*blk}], a[{4*n}:{4*n+3}], v[{32+4*c}:{35+4*c}], {cin}')
for k in range(0,16,2):
    A(f'v_cvt_pk_bf16_f32 v9, v{16+k}, v{17+k}')
    A(f'v_lshlrev_b32 v{16+k}, 16, v9')
    A(f'v_and_b32 v{17+k}, 0xffff0000, v9')
for k in range(16): A(f'v_mul_f32 v{16+k}, {hex(f2u(0.0625*LOG2E))}, v{16+k}')
A('v_max_f32 v9, v16, v17')
for k in range(2,16,2): A(f'v_max3_f32 v9, v9, v{16+k}, v{17+k}')
allreduce('max',9,10,lo=False)
for k in range(16): A(f'v_sub_f32 v{16+k}, v{16+k}, v9')
for k in range(16): A(f'v_exp_f32 v{16+k}, v{16+k}')
for k in range(8): A(f'v_cvt_pk_bf16_f32 v{104+k}, v{16+2*k}, v{17+2*k}')
stamp(4)
ACC=40
def pv_half(kb, first):
    def rd(t, buf):
        a,b=divmod(t,8)
        for u in range(2):
            A(f'ds_read_b64_tr_b16 v[{buf+2*u}:{buf+2*u+1}], v{112+b} offset:{a*256+kb*16384+u*8192}')
    rd(0,32)
    for t in range(16):
        buf=32+4*(t%2)
        if t<15: rd(t+1, 32+4*((t+1)%2))
        A(f's_waitcnt lgkmcnt({2 if t<15 else 0})')
        cin = '0' if first else f'v[{ACC+4*t}:{ACC+4*t+3}]'
        A(f'v_mfma_f32_16x16x32_bf16 v[{ACC+4*t}:{ACC+4*t+3}], v[{buf}:{buf+3}], v[{104+4*kb}:{107+4*kb}], {cin}')
A('v_lshlrev_b32 v11, 16, v104')
A('v_and_b32 v12, 0xffff0000, v104')
A('v_add_f32 v11, v11, v12')
for k in range(1,8):
    A(f'v_lshlrev_b32 v12, 16, v{104+k}')
    A('v_add_f32 v11, v11, v12')
    A(f'v_and_b32 v12, 0xffff0000, v{104+k}')
    A('v_add_f32 v11, v11, v12')
allreduce('add',11,10,lo=False)
A('v_and_b32 v12, 15, v1')
A('v_lshlrev_b32 v12, 2, v12')
A(f's_lshl_b32 {sT1}, {sW}, 4')
A(f'v_add_u32 v12, {sT1}, v12')
A('s_and_saveexec_b64 s[98:99], vcc')
A(f'ds_write_b32 v12, v9 offset:{L_ST}')
A(f'ds_write_b32 v12, v11 offset:{L_ST+8}')
A('s_mov_b64 exec, s[98:99]')
A('s_waitcnt vmcnt(16) lgkmcnt(0)')
pv_half(0, True)
A('s_waitcnt vmcnt(0)')
pv_half(1, False)
stamp(5)
A('v_and_b32 v12, 15, v1')
A('v_lshlrev_b32 v12, 10, v12')
A('v_lshl_add_u32 v12, v7, 4, v12')
A(f's_lshl_b32 {sT0}, {sW}, 11')
A(f'v_add_u32 v12, {sT0}, v12')
A('s_and_saveexec_b64 s[98:99], vcc')
for t in range(16):
    A(f'ds_write_b128 v12, v[{ACC+4*t}:{ACC+4*t+3}] offset:{L_OW+64*t}')
A('s_mov_b64 exec, s[98:99]')
A('v_mov_b32 v13, 0')
A('v_mov_b32 v14, 1')
A('s_waitcnt lgkmcnt(0)')
A('s_mov_b64 exec, 1')
A(f'ds_add_u32 v13, v14 offset:{L_CNT}')
A('s_mov_b64 exec, -1')
A(f's_cmp_ge_u32 {sW}, 2')
A('s_cbranch_scc1 L_nopub')
A.label('L_b3spin')
A(f'ds_read_b32 v14, v13 offset:{L_CNT}')
A('s_waitcnt lgkmcnt(0)')
A('v_cmp_ne_u32 vcc, 4, v14')
A('s_nop 1')
A('s_cbranch_vccz L_b3ok')
guard('L_b3ok')
A('s_branch L_b3spin')
A.label('L_b3ok')
A(f's_lshl_b32 {sT0}, {sW}, 2')
A(f'v_mov_b32 v12, {sT0}')
for w in range(4):
    A(f'ds_read_b32 v{16+w}, v12 offset:{L_ST+16*w}')
    A(f'ds_read_b32 v{20+w}, v12 offset:{L_ST+16*w+8}')
A(f's_lshl_b32 {sT0}, {sW}, 10')
A(f'v_add_u32 v13, {sT0}, v3')
for w in range(4): A(f'ds_read_b128 v[{32+4*w}:{35+4*w}], v13 offset:{L_OW+2048*w}')
A('s_waitcnt lgkmcnt(4)')
A('v_max_f32 v10, v16, v17')
A('v_max3_f32 v10, v10, v18, v19')
for w in range(4): A(f'v_sub_f32 v{16+w}, v{16+w}, v10')
for w in range(4): A(f'v_exp_f32 v{16+w}, v{16+w}')
A('v_mul_f32 v11, v16, v20')
for w in range(1,4): A(f'v_fmac_f32 v11, v{16+w}, v{20+w}')
A('s_waitcnt lgkmcnt(0)')
for e in range(4): A(f'v_mul_f32 v{24+e}, v{32+e}, v16')
for w in range(1,4):
    for e in range(4): A(f'v_fmac_f32 v{24+e}, v{32+4*w+e}, v{16+w}')
for e in range(4): A(f'v_min_u32 v{24+e}, 0xfffffffe, v{24+e}')
A('v_min_u32 v10, 0xfffffffe, v10')
A('v_min_u32 v11, 0xfffffffe, v11')
A(f's_lshl_b32 {sT0}, {sH}, 1')
A(f's_add_u32 {sT0}, {sT0}, {sW}')
A(f's_lshl_b32 {sT0}, {sT0}, 5')
A(f's_add_u32 {sT0}, {sT0}, {sS}')
A(f's_lshl_b32 {sT1}, {sT0}, 10')
A(f's_add_u32 {sT1}, {sT1}, {O1_OFF}')
A(f'buffer_store_dwordx4 v[24:27], v3, {sWS}, {sT1} offen sc1')
A(f's_lshl_b32 {sT1}, {sT0}, 3')
A(f's_add_u32 {sT1}, {sT1}, {S1_OFF}')
A('v_cmp_eq_u32 vcc, 0, v1')
A('v_cndmask_b32 v13, v8, v1, vcc')
A(f'buffer_store_dwordx2 v[10:11], v13, {sWS}, {sT1} offen sc1')
A.label('L_nopub')
stamp(6)
A(f's_cmp_eq_u32 {sROLE}, 0')
A('s_cbranch_scc1 L_end')
A('v_mov_b32 v13, 0')
A.label('L_b4spin')
A(f'ds_read_b32 v14, v13 offset:{L_FLAG}')
A('s_waitcnt lgkmcnt(0)')
A('v_cmp_ne_u32 vcc, 1, v14')
A('s_nop 1')
A('s_cbranch_vccz L_b4ok')
guard('L_b4ok')
A('s_sleep 1')
A('s_branch L_b4spin')
A.label('L_b4ok')
A(f's_cmp_eq_u32 {sROLE}, 2')
A('s_cbranch_scc1 L_ffn')
A(f's_cmp_eq_u32 {sROLE}, 3')
A('s_cbranch_scc1 L_fin')

A('v_lshlrev_b32 v9, 3, v7')
A('v_and_b32 v10, 15, v1')
A('v_lshlrev_b32 v10, 4, v10')
A('v_lshl_add_u32 v10, v7, 10, v10')
A(f's_lshl_b32 {sC0}, {sJ}, 8')
A(f's_add_u32 {sC0}, {sC0}, {S1_OFF}')
A(f's_lshl_b32 {sC1}, {sJ}, 15')
A(f's_lshl_b32 {sT0}, {sW}, 8')
A(f's_add_u32 {sC1}, {sC1}, {sT0}')
A(f's_add_u32 {sC1}, {sC1}, {O1_OFF}')
SR=16; OR_=32; WR=64
def wo_poll_issue():
    for i in range(8):
        A(f'buffer_load_dwordx2 v[{SR+2*i}:{SR+1+2*i}], v9, {sWS}, {sC0} offen offset:{32*i} sc1')
    A(f's_mov_b32 {sT0}, {sC1}')
    for i in range(8):
        A(f'buffer_load_dwordx4 v[{OR_+4*i}:{OR_+3+4*i}], v10, {sWS}, {sT0} offen sc1')
        if i<7: A(f's_add_u32 {sT0}, {sT0}, 4096')
wo_poll_issue()
A(f's_lshl_b32 {sT0}, {sW}, 13')
A(f'v_add_u32 v12, {sT0}, v3')
for i in range(8): A(f'ds_read_b128 v[{WR+4*i}:{WR+3+4*i}], v12 offset:{L_W+1024*i}')
A.label('L_wopoll')
A('s_waitcnt vmcnt(0)')
sentinel_check(range(16,64), 11, 'L_wore')
A('s_branch L_wogo')
A.label('L_wore')
guard('L_wogo')
A('s_sleep 1')
wo_poll_issue()
A('s_branch L_wopoll')
A.label('L_wogo')
stamp(8)
A(f'v_max_f32 v11, v{SR}, v{SR+2}')
for i in range(2,8,2): A(f'v_max3_f32 v11, v11, v{SR+2*i}, v{SR+2+2*i}')
allreduce('max',11,12,lo=False)
for i in range(8): A(f'v_sub_f32 v{SR+2*i}, v{SR+2*i}, v11')
for i in range(8): A(f'v_exp_f32 v{SR+2*i}, v{SR+2*i}')
A(f'v_mul_f32 v11, v{SR}, v{SR+1}')
for i in range(1,8): A(f'v_fmac_f32 v11, v{SR+2*i}, v{SR+1+2*i}')
allreduce('add',11,12,lo=False)
A('v_rcp_f32 v12, v11')
for e in range(4): A(f'v_mul_f32 v{96+e}, v{OR_+e}, v{SR}')
for i in range(1,8):
    for e in range(4): A(f'v_fmac_f32 v{96+e}, v{OR_+4*i+e}, v{SR+2*i}')
for e in range(4): allreduce('add',96+e,100+e,lo=False)
for e in range(4):
    fdiv(104+e,96+e,11,12,100+e)
    bf16round(104+e)
A('v_and_b32 v13, 15, v1')
A('v_lshlrev_b32 v13, 4, v13')
A(f's_lshl_b32 {sT0}, {sW}, 8')
A(f'v_add_u32 v13, {sT0}, v13')
A(f'ds_write_b128 v13, v[104:107] offset:{L_OV}')
A('v_lshrrev_b32 v13, 3, v1')
A('v_lshlrev_b32 v13, 2, v13')
A(f'v_add_u32 v13, {sT0}, v13')
A('s_waitcnt lgkmcnt(0)')
for i in range(8): A(f'ds_read_b32 v{32+2*i}, v13 offset:{L_OV+32*i}')
for k in range(8): A(f'v_mov_b32 v{16+k}, 0')
for i in range(8):
    for k in range(4): unpack(f'v{WR+4*i+k}', 96+2*k)
    A(f's_waitcnt lgkmcnt({7-i})')
    for k in range(4):
        A(f'v_pk_fma_f32 v[{16+2*k}:{17+2*k}], v[{96+2*k}:{97+2*k}], v[{32+2*i}:{33+2*i}], v[{16+2*k}:{17+2*k}] op_sel_hi:[1,0,1]')
for k in range(8):
    A(f'v_add_f32_dpp v{16+k}, v{16+k}, v{16+k} row_ror:8 row_mask:0xf bank_mask:0xf')
A('v_and_b32 v13, 7, v1')
A('v_lshlrev_b32 v13, 5, v13')
A('v_lshl_add_u32 v13, v7, 8, v13')
A(f's_lshl_b32 {sT0}, {sW}, 10')
A(f'v_add_u32 v13, {sT0}, v13')
A(f'ds_write_b128 v13, v[16:19] offset:{L_RED2}')
A(f'ds_write_b128 v13, v[20:23] offset:{L_RED2+16}')
A('s_waitcnt lgkmcnt(0)')
A('s_barrier')
A(f's_cmp_lg_u32 {sW}, 0')
A('s_cbranch_scc1 L_end')
A('v_lshlrev_b32 v13, 2, v1')
for k in range(16): A(f'ds_read_b32 v{16+k}, v13 offset:{L_RED2+256*k}')
A('s_waitcnt lgkmcnt(0)')
for st in (8,4,2,1):
    for k in range(st): A(f'v_add_f32 v{16+k}, v{16+k}, v{16+k+st}')
A('v_min_u32 v16, 0xfffffffe, v16')
A(f's_mul_i32 {sT1}, {sJ}, 1792')
A(f's_lshl_b32 {sT2}, {sN}, 8')
A(f's_add_u32 {sT1}, {sT1}, {sT2}')
A(f's_add_u32 {sT1}, {sT1}, {P2_OFF}')
A(f'buffer_store_dword v16, v13, {sWS}, {sT1} offen sc1')
stamp(9)
A('s_branch L_end')

A.label('L_ffn')
A('v_and_b32 v11, 31, v1')
A('v_cmp_gt_u32 vcc, 28, v11')
A('v_lshlrev_b32 v12, 3, v11')
A('v_cndmask_b32 v12, v8, v12, vcc')
A(f's_mul_i32 {sT0}, {sW}, 224')
A(f'buffer_load_dwordx2 v[4:5], v12, {sX}, {sT0} offen')
A('v_lshlrev_b32 v14, 4, v11')
A('v_lshrrev_b32 v12, 5, v1')
A('v_mul_u32_u24 v12, 1792, v12')
A('v_add_u32 v14, v14, v12')
A('v_cndmask_b32 v14, v8, v14, vcc')
A(f's_mul_i32 {sT0}, {sW}, {22*1024}')
A(f'v_add_u32 v12, {sT0}, v3')
for i in range(22): A(f'ds_read_b128 v[{40+4*i}:{43+4*i}], v12 offset:{L_W+1024*i}')
stamp(7)
A(f's_mul_i32 {sC0}, {sW}, 448')
A(f's_add_u32 {sC0}, {sC0}, {P2_OFF}')
A.label('L_ffpoll')
A(f's_mov_b32 {sT0}, {sC0}')
for i in range(8):
    A(f'buffer_load_dwordx4 a[{4*i}:{4*i+3}], v14, {sWS}, {sT0} offen sc1')
    if i<7: A(f's_add_u32 {sT0}, {sT0}, 3584')
A('s_waitcnt vmcnt(0)')
for i in range(16): A(f'v_accvgpr_read_b32 v{16+i}, a{i}')
A('v_max3_u32 v9, v16, v17, v18')
for i in range(3,15,2): A(f'v_max3_u32 v9, v9, v{16+i}, v{17+i}')
A('v_max_u32 v9, v9, v31')
for k in range(8): A(f'v_add_f32 v{16+k}, v{16+k}, v{24+k}')
for i in range(16): A(f'v_accvgpr_read_b32 v{24+i}, a{16+i}')
for i in range(0,16,2): A(f'v_max3_u32 v9, v9, v{24+i}, v{25+i}')
A('v_cmp_eq_u32 vcc, -1, v9')
A('s_nop 1')
A('s_cbranch_vccz L_ffgo')
guard('L_ffgo')
A('s_sleep 1')
A('s_branch L_ffpoll')
A.label('L_ffgo')
stamp(8)
for k in range(8): A(f'v_add_f32 v{24+k}, v{24+k}, v{32+k}')
for k in range(8): A(f'v_add_f32 v{16+k}, v{16+k}, v{24+k}')
for k in range(4): A(f'v_add_f32 v{16+k}, v{16+k}, v{20+k}')
unpack('v4',24); unpack('v5',26)
for e in range(4): allreduce('add',16+e,20+e,lo=False,x16=False)
for e in range(4):
    bf16round(16+e)
    A(f'v_add_f32 v{16+e}, v{16+e}, v{24+e}')
    bf16round(16+e)
A('v_add_f32 v9, v16, v17')
A('v_add_f32 v10, v18, v19')
A('v_add_f32 v9, v9, v10')
allreduce('add',9,10)
A(f'v_mul_f32 v9, {hex(f2u(1.0/224))}, v9')
A('v_mov_b32 v11, 0')
for e in range(4):
    A(f'v_sub_f32 v10, v{16+e}, v9')
    A('v_fmac_f32 v11, v10, v10')
A('v_and_b32 v12, 31, v1')
A('v_cmp_gt_u32 vcc, 28, v12')
A('v_cndmask_b32 v11, 0, v11, vcc')
allreduce('add',11,10)
A('v_mul_f32 v11, 0.5, v11')
A('v_mov_b32 v10, v9')
A(f's_lshl_b32 {sT0}, {sW}, 3')
A(f'v_mov_b32 v12, {sT0}')
A(f'ds_write_b64 v12, v[10:11] offset:{L_ST3}')
A('s_waitcnt lgkmcnt(0)')
A('s_barrier')
A('v_mov_b32 v12, 0')
A(f'ds_read_b128 v[20:23], v12 offset:{L_ST3}')
A(f'ds_read_b128 v[24:27], v12 offset:{L_ST3+16}')
A('s_waitcnt lgkmcnt(0)')
A('v_add_f32 v9, v20, v22')
A('v_add_f32 v10, v24, v26')
A('v_add_f32 v9, v9, v10')
A('v_mul_f32 v9, 0.25, v9')
A('v_add_f32 v11, v21, v23')
A('v_add_f32 v10, v25, v27')
A('v_add_f32 v11, v11, v10')
A('v_mov_b32 v13, 0')
for r in (20,22,24,26):
    A(f'v_sub_f32 v10, v{r}, v9')
    A('v_fmac_f32 v13, v10, v10')
A(f'v_mov_b32 v10, {hex(f2u(112.0))}')
A('v_fmac_f32 v11, v13, v10')
A(f'v_mul_f32 v11, {hex(f2u(1.0/448))}, v11')
layernorm_consts(9,11,10)
for e in range(4):
    A(f'v_sub_f32 v{20+e}, v{16+e}, v9')
    bf16round(20+e)
    fdiv(24+e,20+e,11,10,12)
    bf16round(24+e)
A('v_and_b32 v12, 31, v1')
A('v_cmp_gt_u32 vcc, 28, v12')
A('v_lshlrev_b32 v12, 4, v12')
A(f's_mul_i32 {sT0}, {sW}, 448')
A(f'v_add_u32 v12, {sT0}, v12')
A('s_and_saveexec_b64 s[98:99], vcc')
A(f'ds_write_b128 v12, v[24:27] offset:{L_HN}')
A('s_mov_b64 exec, s[98:99]')
A('v_lshrrev_b32 v12, 2, v1')
A('v_lshlrev_b32 v12, 2, v12')
A(f'v_add_u32 v12, {sT0}, v12')
A('s_waitcnt lgkmcnt(0)')
for i in range(7): A(f'ds_read_b32 v{32+i}, v12 offset:{L_HN+64*i}')
for k in range(16): A(f'v_mov_b32 v{16+k}, 0')
for i in range(7):
    A(f's_waitcnt lgkmcnt({6-i})')
    for mat in range(2):
        raw=40+28*mat+4*i
        for k in range(4):
            A(f'v_lshlrev_b32 v4, 16, v{raw+k}')
            A(f'v_and_b32 v5, 0xffff0000, v{raw+k}')
            A(f'v_fmac_f32 v{16+8*mat+2*k}, v4, v{32+i}')
            A(f'v_fmac_f32 v{17+8*mat+2*k}, v5, v{32+i}')
for m in ('row_ror:8','row_ror:4'):
    for k in range(16):
        A(f'v_add_f32_dpp v{16+k}, v{16+k}, v{16+k} {m} row_mask:0xf bank_mask:0xf')
A('v_and_b32 v13, 3, v1')
A('v_lshlrev_b32 v13, 5, v13')
A('v_lshl_add_u32 v13, v7, 8, v13')
A(f's_lshl_b32 {sT0}, {sW}, 10')
A(f'v_add_u32 v13, {sT0}, v13')
A(f'ds_write_b128 v13, v[16:19] offset:{L_RED3}')
A(f'ds_write_b128 v13, v[20:23] offset:{L_RED3+16}')
A(f'ds_write_b128 v13, v[24:27] offset:{L_RED3+128}')
A(f'ds_write_b128 v13, v[28:31] offset:{L_RED3+144}')
A('s_waitcnt lgkmcnt(0)')
A('s_barrier')
A('v_lshlrev_b32 v13, 2, v1')
for k in range(16): A(f'ds_read_b32 v{16+k}, v13 offset:{L_RED3+256*k}')
A('s_waitcnt lgkmcnt(0)')
for st in (8,4,2,1):
    for k in range(st): A(f'v_add_f32 v{16+k}, v{16+k}, v{16+k+st}')
bf16round(16)
A('v_mov_b32 v17, v16')
A('v_permlane32_swap_b32 v16, v17')
A('v_mul_f32 v18, v16, v16')
A(f'v_mov_b32 v19, {hex(f2u(0.044715))}')
A('v_fma_f32 v18, v18, v19, 1.0')
A('v_mul_f32 v18, v18, v16')
A(f'v_mul_f32 v18, {hex(f2u(2.0*0.7978845608028654*LOG2E))}, v18')
A('v_exp_f32 v18, v18')
A('v_add_f32 v18, 1.0, v18')
A('v_rcp_f32 v18, v18')
A('v_fma_f32 v18, v18, -2.0, 2.0')
A('v_mul_f32 v18, v18, v16')
A('v_mul_f32 v18, 0.5, v18')
bf16round(18)
A('v_mul_f32 v18, v18, v17')
bf16round(18)
A(f's_lshl_b32 {sT0}, {sW}, 3')
for i in range(8):
    A(f'v_readlane_b32 s{sA0+i}, v18, {sT0}')
    if i<7: A(f's_add_u32 {sT0}, {sT0}, 1')
for k in range(8): A(f'v_mov_b32 v{16+k}, 0')
for i in range(8):
    for k in range(4):
        A(f'v_lshlrev_b32 v4, 16, v{96+4*i+k}')
        A(f'v_and_b32 v5, 0xffff0000, v{96+4*i+k}')
        A(f'v_fma_f32 v{16+2*k}, v4, s{sA0+i}, v{16+2*k}')
        A(f'v_fma_f32 v{17+2*k}, v5, s{sA0+i}, v{17+2*k}')
A('v_lshlrev_b32 v13, 5, v1')
A(f's_mul_i32 {sT0}, {sW}, 1792')
A(f'v_add_u32 v13, {sT0}, v13')
A('v_cmp_gt_u32 vcc, 56, v1')
A('s_and_saveexec_b64 s[98:99], vcc')
A(f'ds_write_b128 v13, v[16:19] offset:{L_RED4}')
A(f'ds_write_b128 v13, v[20:23] offset:{L_RED4+16}')
A('s_mov_b64 exec, s[98:99]')
A('s_waitcnt lgkmcnt(0)')
A('s_barrier')
A(f's_cmp_ge_u32 {sW}, 2')
A('s_cbranch_scc1 L_end')
A(f's_lshl_b32 {sT0}, {sW}, 10')
A(f'v_add_u32 v13, {sT0}, v3')
A('v_cmp_gt_u32 vcc, 1792, v13')
A('v_cndmask_b32 v12, v8, v13, vcc')
A('v_cndmask_b32 v13, 0, v13, vcc')
for w in range(4): A(f'ds_read_b128 v[{16+4*w}:{19+4*w}], v13 offset:{L_RED4+1792*w}')
A('s_waitcnt lgkmcnt(0)')
for e in range(4):
    A(f'v_add_f32 v{16+e}, v{16+e}, v{20+e}')
    A(f'v_add_f32 v{24+e}, v{24+e}, v{28+e}')
for e in range(4):
    A(f'v_add_f32 v{16+e}, v{16+e}, v{24+e}')
    A(f'v_min_u32 v{16+e}, 0xfffffffe, v{16+e}')
A(f's_mul_i32 {sT1}, {sF}, 1792')
A(f's_add_u32 {sT1}, {sT1}, {P3_OFF}')
A(f'buffer_store_dwordx4 v[16:19], v12, {sWS}, {sT1} offen sc1')
stamp(9)
A('s_branch L_end')

A.label('L_fin')
A(f's_cmp_lg_u32 {sW}, 0')
A('s_cbranch_scc1 L_end')
A('v_and_b32 v11, 15, v1')
A('v_lshlrev_b32 v12, 3, v11')
A(f's_lshl_b32 {sT0}, {sH}, 7')
A(f'buffer_load_dwordx2 v[48:49], v12, {sX}, {sT0} offen')
A('v_lshlrev_b32 v14, 4, v11')
A('v_mul_u32_u24 v10, 1792, v7')
A('v_add_u32 v14, v14, v10')
A(f's_lshl_b32 {sC0}, {sH}, 8')
A(f's_add_u32 {sC1}, {sC0}, {P3_OFF}')
A(f's_add_u32 {sC0}, {sC0}, {P2_OFF}')
A.label('L_f2poll')
A(f's_mov_b32 {sT0}, {sC0}')
for i in range(4):
    A(f'buffer_load_dwordx4 v[{16+4*i}:{19+4*i}], v14, {sWS}, {sT0} offen sc1')
    if i<3: A(f's_add_u32 {sT0}, {sT0}, 7168')
A('s_waitcnt vmcnt(0)')
sentinel_check(range(16,32), 9, 'L_f2re')
A('s_branch L_f2go')
A.label('L_f2re')
guard('L_f2go')
A('s_sleep 2')
A('s_branch L_f2poll')
A.label('L_f2go')
stamp(7)
unpack('v48',50); unpack('v49',52)
for st in (8,4):
    for k in range(st): A(f'v_add_f32 v{16+k}, v{16+k}, v{16+k+st}')
for e in range(4): allreduce('add',16+e,20+e,lo=False)
for e in range(4):
    bf16round(16+e)
    A(f'v_add_f32 v{16+e}, v{16+e}, v{50+e}')
    bf16round(16+e)
A.label('L_f3poll')
A(f's_mov_b32 {sT0}, {sC1}')
for i in range(14):
    A(f'buffer_load_dwordx4 v[{64+4*i}:{67+4*i}], v14, {sWS}, {sT0} offen sc1')
    if i<13: A(f's_add_u32 {sT0}, {sT0}, 7168')
A('s_waitcnt vmcnt(0)')
sentinel_check(range(64,120), 9, 'L_f3re')
A('s_branch L_f3go')
A.label('L_f3re')
guard('L_f3go')
A('s_sleep 1')
A('s_branch L_f3poll')
A.label('L_f3go')
stamp(8)
for i in range(7):
    for e in range(4): A(f'v_add_f32 v{64+4*i+e}, v{64+4*i+e}, v{92+4*i+e}')
for i in range(1,7):
    for e in range(4): A(f'v_add_f32 v{64+e}, v{64+e}, v{64+4*i+e}')
for e in range(4): allreduce('add',64+e,20+e,lo=False)
for e in range(4):
    bf16round(64+e)
    A(f'v_add_f32 v{64+e}, v{64+e}, v{16+e}')
A('v_cvt_pk_bf16_f32 v64, v64, v65')
A('v_cvt_pk_bf16_f32 v65, v66, v67')
A('v_cmp_gt_u32 vcc, 16, v1')
A('v_cndmask_b32 v12, v8, v12, vcc')
A(f's_lshl_b32 {sT0}, {sH}, 7')
A(f'buffer_store_dwordx2 v[64:65], v12, {sOUT}, {sT0} offen')
A('s_branch L_end')

A.label('L_helper')
A('s_barrier')
stamp(7)
A(f'buffer_load_dwordx4 v[60:63], v3, {sX}, 0 offen')
A('v_lshrrev_b32 v9, 1, v1')
A('v_lshlrev_b32 v9, 13, v9')
A('v_and_b32 v10, 1, v1')
A('v_lshl_add_u32 v9, v10, 4, v9')
A(f's_lshl_b32 {sC0}, {sH}, 10')
A(f's_lshl_b32 {sT1}, {sS}, 5')
A(f's_add_u32 {sC0}, {sC0}, {sT1}')
A(f's_mov_b32 {sT0}, {sC0}')
for i in range(14):
    A(f'buffer_load_dwordx4 v[{64+4*i}:{67+4*i}], v9, {sWQ}, {sT0} offen nt')
    if i<13: A(f's_add_u32 {sT0}, {sT0}, 262144')
A(f's_cmp_lg_u32 {sROLE}, 1')
A('s_cbranch_scc1 L_hnowo')
A('v_lshrrev_b32 v10, 3, v1')
A('v_mul_u32_u24 v10, 896, v10')
A('v_and_b32 v11, 7, v1')
A('v_lshl_add_u32 v10, v11, 4, v10')
A(f's_lshl_b32 {sT0}, {sJ}, 8')
A(f's_mul_i32 {sT0}, {sT0}, 896')
A(f's_lshl_b32 {sT1}, {sN}, 7')
A(f's_add_u32 {sT0}, {sT0}, {sT1}')
for i in range(32):
    A(f'buffer_load_dwordx4 a[{4*i}:{4*i+3}], v10, {sWO}, {sT0} offen nt')
    if i<31: A(f's_add_u32 {sT0}, {sT0}, {8*896}')
A.label('L_hnowo')
for i in range(4): A(f'v_mov_b32 v{12+i}, -1')
A(f's_lshl_b32 {sT0}, {sH}, 6')
A(f's_add_u32 {sT0}, {sT0}, {sS}')
A(f's_lshl_b32 {sT1}, {sT0}, 10')
A(f's_add_u32 {sT1}, {sT1}, {O1_OFF}')
A(f's_add_u32 {sT2}, {sT1}, 32768')
A(f'buffer_store_dwordx4 v[12:15], v3, {sWS}, {sT1} offen sc1')
A(f'buffer_store_dwordx4 v[12:15], v3, {sWS}, {sT2} offen sc1')
A(f's_lshl_b32 {sT1}, {sT0}, 3')
A(f's_add_u32 {sT1}, {sT1}, {S1_OFF}')
A('v_lshlrev_b32 v10, 8, v1')
A('v_cmp_gt_u32 vcc, 2, v1')
A('v_cndmask_b32 v10, v8, v10, vcc')
A(f'buffer_store_dwordx2 v[12:13], v10, {sWS}, {sT1} offen sc1')
A(f's_cmp_lg_u32 {sROLE}, 1')
A('s_cbranch_scc1 L_noclr2')
A(f's_mul_i32 {sT1}, {sJ}, 1792')
A(f's_lshl_b32 {sT2}, {sN}, 8')
A(f's_add_u32 {sT1}, {sT1}, {sT2}')
A(f's_add_u32 {sT1}, {sT1}, {P2_OFF}')
A('v_cmp_gt_u32 vcc, 16, v1')
A('v_cndmask_b32 v10, v8, v3, vcc')
A(f'buffer_store_dwordx4 v[12:15], v10, {sWS}, {sT1} offen sc1')
A.label('L_noclr2')
A(f's_cmp_lg_u32 {sROLE}, 2')
A('s_cbranch_scc1 L_noclear')
A(f's_mul_i32 {sT1}, {sF}, 1792')
A(f's_add_u32 {sT1}, {sT1}, {P3_OFF}')
A('v_cmp_gt_u32 vcc, 48, v1')
A('v_cndmask_b32 v10, v8, v3, vcc')
A(f'buffer_store_dwordx4 v[12:15], v3, {sWS}, {sT1} offen sc1')
A(f'buffer_store_dwordx4 v[12:15], v10, {sWS}, {sT1} offen offset:1024 sc1')
A.label('L_noclear')
def rolewait(extra, tag):
    A(f's_cmp_lg_u32 {sROLE}, 1')
    A(f's_cbranch_scc1 L_rw{tag}a')
    A(f's_waitcnt vmcnt({36+extra})')
    A(f's_branch L_rw{tag}z')
    A.label(f'L_rw{tag}a')
    A(f's_cmp_lg_u32 {sROLE}, 2')
    A(f's_cbranch_scc1 L_rw{tag}b')
    A(f's_waitcnt vmcnt({5+extra})')
    A(f's_branch L_rw{tag}z')
    A.label(f'L_rw{tag}b')
    A(f's_waitcnt vmcnt({3+extra})')
    A.label(f'L_rw{tag}z')
rolewait(14,'x')
for k in range(4): unpack(f'v{60+k}', 16+2*k)
A('v_add_f32 v9, v16, v17')
for k in range(2,8): A(f'v_add_f32 v9, v9, v{16+k}')
allreduce('add',9,10)
A(f'v_mul_f32 v9, {hex(f2u(1.0/448))}, v9')
A('v_mov_b32 v11, 0')
for k in range(8):
    A(f'v_sub_f32 v10, v{16+k}, v9')
    A(f'v_fmac_f32 v11, v10, v10')
A('v_cmp_gt_u32 vcc, 56, v1')
A('v_cndmask_b32 v11, 0, v11, vcc')
allreduce('add',11,10)
A(f'v_mul_f32 v11, {hex(f2u(1.0/448))}, v11')
layernorm_consts(9,11,10)
for k in range(8):
    A(f'v_sub_f32 v{16+k}, v{16+k}, v9')
    bf16round(16+k)
    fdiv(24+k,16+k,11,10,12)
    bf16round(24+k)
A('v_lshlrev_b32 v12, 5, v1')
A('v_cmp_gt_u32 vcc, 56, v1')
A('s_and_saveexec_b64 s[98:99], vcc')
A(f'ds_write_b128 v12, v[24:27] offset:{L_XN}')
A(f'ds_write_b128 v12, v[28:31] offset:{L_XN+16}')
A('s_mov_b64 exec, s[98:99]')
A('v_lshrrev_b32 v12, 1, v1')
A('v_lshlrev_b32 v12, 2, v12')
A('s_waitcnt lgkmcnt(0)')
for i in range(14): A(f'ds_read_b32 v{32+2*i}, v12 offset:{L_XN+128*i}')
for k in range(8): A(f'v_mov_b32 v{16+k}, 0')
A('s_waitcnt lgkmcnt(0)')
rolewait(0,'w')
stamp(1)
for i in range(14): fma8(16, 64+4*i, 32+2*i, 24)
for m in ('quad_perm:[2,3,0,1]','row_ror:4','row_ror:8'):
    for k in range(8):
        A(f'v_add_f32_dpp v{16+k}, v{16+k}, v{16+k} {m} row_mask:0xf bank_mask:0xf')
for k in range(8): allreduce('add',16+k,24+k,lo=False)
for k in range(4): A(f'v_cvt_pk_bf16_f32 v{16+k}, v{16+2*k}, v{17+2*k}')
A('v_cmp_gt_u32 vcc, 2, v1')
A('v_cndmask_b32 v12, v8, v3, vcc')
A(f's_add_u32 {sT0}, {sC0}, {Q_OFF}')
A(f'buffer_store_dwordx4 v[16:19], v12, {sWS}, {sT0} offen sc1')
A('s_waitcnt vmcnt(0)')
A('v_mov_b32 v12, 1')
A('v_cmp_eq_u32 vcc, 0, v1')
A('v_cndmask_b32 v13, v8, v1, vcc')
A(f's_lshl_b32 {sT0}, {sH}, 5')
A(f's_add_u32 {sT1}, {sT0}, {sS}')
A(f'buffer_store_byte v12, v13, {sDB}, {sT1} offen sc1')
stamp(2)
A('s_barrier')
A('s_barrier')
stamp(6)
A('v_and_b32 v13, 7, v1')
A('v_lshlrev_b32 v13, 2, v13')
A.label('L_fpoll')
A(f'buffer_load_dword v12, v13, {sDB}, {sT0} offen sc1')
A('s_waitcnt vmcnt(0)')
A('v_cmp_ne_u32 vcc, 0x01010101, v12')
A('s_nop 1')
A('s_cbranch_vccz L_fok')
guard('L_fok')
A('s_sleep 2')
A('s_branch L_fpoll')
A.label('L_fok')
stamp(3)
A(f's_lshl_b32 {sT0}, {sH}, 10')
A(f's_add_u32 {sT0}, {sT0}, {Q_OFF}')
A(f'buffer_load_dwordx4 v[16:19], v3, {sWS}, {sT0} offen sc1')
A('s_waitcnt vmcnt(0)')
A(f'ds_write_b128 v3, v[16:19] offset:{L_Q}')
A('v_mov_b32 v12, 0')
A('v_mov_b32 v13, 0')
A(f'ds_write_b64 v12, v[12:13] offset:{L_CNT}')
A('s_waitcnt lgkmcnt(0)')
stamp(4)
A('s_barrier')
A(f's_cmp_eq_u32 {sROLE}, 0')
A('s_cbranch_scc1 L_end')
A('v_mov_b32 v13, 0')
A.label('L_hcnt')
A(f'ds_read_b32 v14, v13 offset:{L_CNT}')
A('s_waitcnt lgkmcnt(0)')
A('v_cmp_ne_u32 vcc, 4, v14')
A('s_nop 1')
A('s_cbranch_vccz L_hcntok')
guard('L_hcntok')
A('s_sleep 1')
A('s_branch L_hcnt')
A.label('L_hcntok')
A(f's_cmp_lg_u32 {sROLE}, 1')
A('s_cbranch_scc1 L_hnowo2')
A('s_waitcnt vmcnt(0)')
A(f'v_add_u32 v9, {L_W}, v3')
for i in range(32):
    A(f'ds_write_b128 v9, a[{4*i}:{4*i+3}] offset:{1024*i}')
A.label('L_hnowo2')
A(f's_cmp_lg_u32 {sROLE}, 2')
A('s_cbranch_scc1 L_hnoffn')
A('v_lshrrev_b32 v9, 2, v1')
A('v_mul_u32_u24 v9, 3584, v9')
A('v_and_b32 v10, 3, v1')
A('v_lshl_add_u32 v9, v10, 4, v9')
A('v_cmp_gt_u32 vcc, 56, v1')
A('v_cndmask_b32 v10, v8, v3, vcc')
A(f's_lshl_b32 {sT0}, {sF}, 6')
A(f's_lshl_b32 {sT1}, {sF}, 5')
A(f's_mul_i32 {sT1}, {sT1}, 896')
for w in range(4):
    for i in range(7):
        A(f's_mov_b32 m0, {L_W+1024*(22*w+i)}')
        A('s_nop 0')
        A(f'buffer_load_dwordx4 v9, {sWG}, {sT0} offen nt lds')
        A(f's_mov_b32 m0, {L_W+1024*(22*w+7+i)}')
        A('s_nop 0')
        A(f'buffer_load_dwordx4 v9, {sWU}, {sT0} offen nt lds')
        A(f's_add_u32 {sT0}, {sT0}, {16*3584}')
    for i in range(8):
        A(f's_mov_b32 m0, {L_W+1024*(22*w+14+i)}')
        A('s_nop 0')
        A(f'buffer_load_dwordx4 v10, {sWD}, {sT1} offen nt lds')
        A(f's_add_u32 {sT1}, {sT1}, 896')
    A('s_waitcnt vmcnt(30)')
A.label('L_hnoffn')
A('v_lshlrev_b32 v13, 2, v1')
A.label('L_afpoll')
A(f'buffer_load_dword v12, v13, {sDB}, 0 offen sc1')
A('s_waitcnt vmcnt(0)')
A('v_cmp_ne_u32 vcc, 0x01010101, v12')
A('s_nop 1')
A('s_cbranch_vccz L_afok')
guard('L_afok')
A('s_sleep 8')
A('s_branch L_afpoll')
A.label('L_afok')
stamp(5)
A('v_mov_b32 v12, 0')
A('v_mov_b32 v13, 1')
A('s_waitcnt lgkmcnt(0)')
A(f'ds_write_b32 v12, v13 offset:{L_FLAG}')
A('s_waitcnt lgkmcnt(0)')
A.label('L_end')
if STAMP:
    stamp(10)
    A('s_cmp_ge_u32 s2, 256')
    A('s_cbranch_scc1 L_end2')
    A('v_mov_b32 v5, 0')
    A('s_mul_i32 s3, s2, 5')
    A(f's_add_u32 s3, s3, {sW}')
    A('s_lshl_b32 s3, s3, 6')
    A(f's_add_u32 s3, s3, {STAMP_OFF}')
    A('s_mov_b64 exec, 1')
    for i in range(16):
        A(f'v_mov_b32 v6, s{48+i}')
        A(f'buffer_store_dword v6, v5, {sWS}, s3 offen offset:{4*i}')
    A.label('L_end2')
A('s_endpgm')

hdr=open('cdna_kernels/'+NAME+'.s.ref').read().split('; @launch')[0]
out=hdr+f'; @launch grid=(256,1,1) block=(320,1,1) lds={LDS_SIZE}\n'
out+='.amdgcn_target "amdgcn-amd-amdhsa--gfx950"\n.text\n'
out+=f'.globl {NAME}_kernel\n.p2align 8\n.type {NAME}_kernel,@function\n'
out+=A.text()
out+=f'''.section .rodata,"a"
.p2align 6
.amdhsa_kernel {NAME}_kernel
  .amdhsa_next_free_vgpr 256
  .amdhsa_next_free_sgpr 102
  .amdhsa_accum_offset 128
  .amdhsa_group_segment_fixed_size 0
  .amdhsa_kernarg_size 96
  .amdhsa_user_sgpr_count 2
  .amdhsa_user_sgpr_kernarg_segment_ptr 1
  .amdhsa_system_sgpr_workgroup_id_x 1
.end_amdhsa_kernel
'''
open(sys.argv[1],'w').write(out)
print('lines',len(A.lines))
```

```python
import sys, os, struct
from asmlib import Asm

NAME='sequential_preLN__gqa_block_cached__geglu_ffn__decode'
D = int(sys.argv[2]) if len(sys.argv)>2 else 12
STAMP=int(os.environ.get('STAMP','0'))
P1=[int(x) for x in os.environ.get('P1','0,8,16,24').split(',')]
PZ=[int(x) for x in os.environ.get('PZ','16,24,32,40,48,56').split(',')]
SPIN=100000

Q_OFF=0x0; S1_OFF=0x2000; O1_OFF=0x4000; P2_OFF=0x84000; P3_OFF=0x8C000; WS_SIZE=0xBD000
STAMP_OFF=0x100000
if STAMP: WS_SIZE=0x200000
OOB=0x80000000
L_XN=0; L_Q=2048; L_P=4096; L_OW=6144; L_ST=14336; L_OV=14400; L_RED2=15424; L_ST3=19520; L_HN=19584
L_CNT=19552; L_FLAG=19556; L_GU=21376; L_RED3=21376; L_RED4=25472; L_W=32768; L_V=32768; LDS_SIZE=163840
LOG2E=1.4426950408889634
def f2u(x): return struct.unpack('<I',struct.pack('<f',x))[0]

A=Asm()
sK='s[4:7]'; sV='s[8:11]'; sWS='s[12:15]'; sDB='s[16:19]'; sX='s[20:23]'; sWQ='s[24:27]'; sWO='s[28:31]'
sWG='s[32:35]'; sWU='s[36:39]'; sWD='s[40:43]'; sOUT='s[44:47]'
sH='s72'; sS='s73'; sW='s74'; sT0='s75'; sT1='s76'; sT2='s77'; sT3='s78'; sKB='s79'; sVB='s80'; sJ='s81'; sN='s82'; sF='s83'
sOOB='s84'; sC0='s85'; sC1='s86'; sROLE='s87'; sC3='s88'
sA0=90

def srd(base, p, size):
    A(f's_mov_b32 s{base}, s{p}')
    A(f's_and_b32 s{base+1}, s{p+1}, 0xffff')
    A(f's_mov_b32 s{base+2}, {size}')
    A(f's_mov_b32 s{base+3}, 0x00020000')
def stamp(i):
    if not STAMP: return
    A('s_memrealtime s[100:101]')
    A('s_waitcnt lgkmcnt(0)')
    A(f's_mov_b32 s{48+i}, s100')
def guard(go):
    A('s_add_u32 s89, s89, 1')
    A(f's_cmp_gt_u32 s89, {SPIN}')
    A(f's_cbranch_scc1 {go}')
def allreduce(op, v, t, lo=True, x16=True, x32=True):
    ins = 'v_add_f32' if op=='add' else 'v_max_f32'
    if lo:
        for m in ('quad_perm:[1,0,3,2]','quad_perm:[2,3,0,1]','row_half_mirror','row_mirror'):
            A(f'{ins}_dpp v{v}, v{v}, v{v} {m} row_mask:0xf bank_mask:0xf')
    if x16:
        A(f'v_mov_b32 v{t}, v{v}'); A(f'v_permlane16_swap_b32 v{v}, v{t}'); A(f'{ins} v{v}, v{v}, v{t}')
    if x32:
        A(f'v_mov_b32 v{t}, v{v}'); A(f'v_permlane32_swap_b32 v{v}, v{t}'); A(f'{ins} v{v}, v{v}, v{t}')
def bf16round(v):
    A(f'v_cvt_pk_bf16_f32 v{v}, v{v}, v{v}')
    A(f'v_and_b32 v{v}, 0xffff0000, v{v}')
def unpack(src, dst):
    A(f'v_lshlrev_b32 v{dst}, 16, {src}')
    A(f'v_and_b32 v{dst+1}, 0xffff0000, {src}')
def fdiv(d, num, den, r, t):
    A(f'v_mul_f32 v{d}, v{num}, v{r}')
    A(f'v_fma_f32 v{t}, -v{d}, v{den}, v{num}')
    A(f'v_fma_f32 v{d}, v{t}, v{r}, v{d}')
def sentinel_check(regs, t, fail_label):
    regs=list(regs)
    A(f'v_max_u32 v{t}, v{regs[0]}, v{regs[1]}')
    i=2
    while i<len(regs):
        if i+1<len(regs):
            A(f'v_max3_u32 v{t}, v{t}, v{regs[i]}, v{regs[i+1]}'); i+=2
        else:
            A(f'v_max_u32 v{t}, v{t}, v{regs[i]}'); i+=1
    A(f'v_cmp_eq_u32 vcc, -1, v{t}')
    A('s_nop 1')
    A(f's_cbranch_vccnz {fail_label}')
def layernorm_consts(mean, var, t0):
    bf16round(mean); bf16round(var)
    A(f'v_add_f32 v{var}, {hex(f2u(1e-5))}, v{var}')
    bf16round(var)
    A(f'v_sqrt_f32 v{var}, v{var}')
    bf16round(var)
    A(f'v_rcp_f32 v{t0}, v{var}')
def fma8(acc, raw, mul, tmp):
    for k in range(4): unpack(f'v{raw+k}', tmp+2*k)
    for k in range(4):
        A(f'v_pk_fma_f32 v[{acc+2*k}:{acc+2*k+1}], v[{tmp+2*k}:{tmp+2*k+1}], v[{mul}:{mul+1}], v[{acc+2*k}:{acc+2*k+1}] op_sel_hi:[1,0,1]')

A.raw(f'{NAME}_kernel:')
A('s_cmp_ge_u32 s2, 256')
A('s_cbranch_scc1 L_end')
A('s_load_dwordx16 s[48:63], s[0:1], 0')
A('s_load_dwordx8 s[64:71], s[0:1], 64')
A('v_and_b32 v1, 63, v0')
A('v_lshrrev_b32 v6, 6, v0')
A(f'v_readfirstlane_b32 {sW}, v6')
A(f's_and_b32 {sH}, s2, 7')
A(f's_lshr_b32 {sS}, s2, 3')
A(f's_mov_b32 {sOOB}, {hex(OOB)}')
A('s_mov_b32 s89, 0')
A('v_and_b32 v6, 15, v1')
A('v_lshrrev_b32 v7, 4, v1')
A('v_lshlrev_b32 v2, 9, v6')
A('v_lshl_add_u32 v2, v7, 4, v2')
A('v_lshlrev_b32 v3, 4, v1')
A(f'v_mov_b32 v8, {sOOB}')
A('s_waitcnt lgkmcnt(0)')
srd(4,50,33554432); srd(8,52,33554432); srd(12,70,WS_SIZE); srd(16,68,256); srd(20,48,896)
srd(24,54,3670016); srd(28,56,3670016); srd(32,60,1605632); srd(36,62,1605632); srd(40,64,1605632); srd(44,66,896)
if STAMP:
    for i in range(1,16): A(f's_mov_b32 s{48+i}, 0')
stamp(0)
A(f's_mov_b32 {sROLE}, 0')
A(f's_cmp_lt_u32 {sS}, 14')
A(f's_cselect_b32 {sROLE}, 1, {sROLE}')
A(f's_sub_u32 {sT0}, {sS}, 16')
A(f's_cmp_lt_u32 {sT0}, 14')
A(f's_cselect_b32 {sROLE}, 2, {sROLE}')
A(f's_sub_u32 {sT0}, {sS}, 14')
A(f's_cmp_lt_u32 {sT0}, 2')
A(f's_cselect_b32 {sT1}, 1, 0')
A(f's_cmp_lt_u32 {sH}, 7')
A(f's_cselect_b32 {sT1}, {sT1}, 0')
A(f's_cmp_eq_u32 {sT1}, 1')
A(f's_cselect_b32 {sROLE}, 3, {sROLE}')
A(f's_cmp_ge_u32 {sS}, 7')
A(f's_cselect_b32 {sT0}, 1, 0')
A(f's_lshl_b32 {sJ}, {sH}, 1')
A(f's_add_u32 {sJ}, {sJ}, {sT0}')
A(f's_mul_i32 {sT0}, {sT0}, 7')
A(f's_sub_u32 {sN}, {sS}, {sT0}')
A(f's_mul_i32 {sF}, {sH}, 14')
A(f's_add_u32 {sF}, {sF}, {sS}')
A(f's_sub_u32 {sF}, {sF}, 16')
A(f's_cmp_eq_u32 {sW}, 4')
A('s_cbranch_scc1 L_helper')

A(f's_lshl_b32 {sKB}, {sH}, 22')
A(f's_lshl_b32 {sT0}, {sS}, 17')
A(f's_add_u32 {sKB}, {sKB}, {sT0}')
A(f's_lshl_b32 {sT0}, {sW}, 15')
A(f's_add_u32 {sKB}, {sKB}, {sT0}')
A(f's_mov_b32 {sVB}, {sKB}')
A(f's_mov_b32 {sC3}, {PZ[0]}')
for i in range(32):
    if PZ[i%len(PZ)]!=PZ[0]:
        A(f's_cmp_eq_u32 {sS}, {i}')
        A(f's_cselect_b32 {sC3}, {PZ[i%len(PZ)]}, {sC3}')
A(f's_mov_b32 s3, {P1[0]}')
for i in range(32):
    if P1[i%len(P1)]!=P1[0]:
        A(f's_cmp_eq_u32 {sS}, {i}')
        A(f's_cselect_b32 s3, {P1[i%len(P1)]}, s3')
def pausept(k):
    if k in P1:
        A(f's_cmp_lg_u32 s3, {k}')
        A(f's_cbranch_scc1 L_p1{k}')
        A('s_waitcnt vmcnt(0)')
        A('s_barrier')
        A('s_barrier')
        A.label(f'L_p1{k}')
    if k in PZ:
        A(f's_cmp_lg_u32 {sC3}, {k}')
        A(f's_cbranch_scc1 L_pz{k}')
        A('s_waitcnt vmcnt(0)')
        A('s_barrier')
        A('s_barrier')
        A.label(f'L_pz{k}')
def kload(n):
    blk,c=divmod(n,8)
    if c==0 and blk>0: A(f's_add_u32 {sKB}, {sKB}, 8192')
    A(f'buffer_load_dwordx4 a[{4*n}:{4*n+3}], v2, {sK}, {sKB} offen offset:{c*64} nt')
def pace(): A(f's_waitcnt vmcnt({D-1})')
cnt=0
for n in range(8):
    pausept(n)
    kload(n); cnt+=1
A('v_lshrrev_b32 v9, 5, v1')
A('v_and_b32 v10, 31, v1')
for m4 in range(4):
    A(f'v_add_u32 v11, {2*m4}, v9')
    A('v_lshlrev_b32 v11, 1, v11')
    A('v_xor_b32 v11, v11, v10')
    A('v_lshlrev_b32 v11, 4, v11')
    A(f'v_lshl_add_u32 v{120+m4}, v9, 9, v11')
A(f's_lshl_b32 {sT3}, {sW}, 15')
A(f's_add_u32 {sT3}, {sT3}, {L_V}')
def vload(n):
    A(f's_mov_b32 m0, {sT3}')
    A(f's_add_u32 {sT3}, {sT3}, 1024')
    A(f'buffer_load_dwordx4 v{120+n%4}, {sV}, {sVB} offen nt lds')
    A(f's_add_u32 {sVB}, {sVB}, 1024')
for n in range(8,32):
    pausept(n)
    if cnt>=D: pace()
    kload(n); cnt+=1
for n in range(32):
    pausept(32+n)
    pace(); vload(n)
for k in range(32): A(f'v_mov_b32 v{32+k}, 0')
A('v_and_b32 v9, 15, v1')
A('v_lshrrev_b32 v10, 2, v9')
A('v_lshl_add_u32 v10, v7, 2, v10')
A('v_and_b32 v11, 7, v10')
A('v_and_b32 v9, 3, v9')
A('v_lshlrev_b32 v10, 9, v10')
A('v_lshl_add_u32 v10, v9, 3, v10')
A(f's_lshl_b32 {sT0}, {sW}, 15')
A(f's_add_u32 {sT0}, {sT0}, {L_V}')
A(f'v_add_u32 v10, {sT0}, v10')
for b in range(8):
    A(f'v_xor_b32 v9, {b}, v11')
    A(f'v_lshl_add_u32 v{112+b}, v9, 5, v10')
A('v_and_b32 v6, 15, v1')
A('v_cmp_gt_u32 vcc, 2, v6')
stamp(1)
A('s_and_saveexec_b64 s[98:99], vcc')
for c in range(8): A(f'ds_read_b128 v[{32+4*c}:{35+4*c}], v2 offset:{L_Q+64*c}')
A('s_mov_b64 exec, s[98:99]')
A('s_waitcnt vmcnt(32) lgkmcnt(0)')
stamp(3)
for blk in range(4):
    for c in range(8):
        n=blk*8+c
        cin = '0' if c==0 else f'v[{16+4*blk}:{19+4*blk}]'
        A(f'v_mfma_f32_16x16x32_bf16 v[{16+4*blk}:{19+4*blk}], a[{4*n}:{4*n+3}], v[{32+4*c}:{35+4*c}], {cin}')
for k in range(0,16,2):
    A(f'v_cvt_pk_bf16_f32 v9, v{16+k}, v{17+k}')
    A(f'v_lshlrev_b32 v{16+k}, 16, v9')
    A(f'v_and_b32 v{17+k}, 0xffff0000, v9')
for k in range(16): A(f'v_mul_f32 v{16+k}, {hex(f2u(0.0625*LOG2E))}, v{16+k}')
A('v_max_f32 v9, v16, v17')
for k in range(2,16,2): A(f'v_max3_f32 v9, v9, v{16+k}, v{17+k}')
allreduce('max',9,10,lo=False)
for k in range(16): A(f'v_sub_f32 v{16+k}, v{16+k}, v9')
for k in range(16): A(f'v_exp_f32 v{16+k}, v{16+k}')
for k in range(8): A(f'v_cvt_pk_bf16_f32 v{104+k}, v{16+2*k}, v{17+2*k}')
stamp(4)
ACC=40
def pv_half(kb, first):
    def rd(t, buf):
        a,b=divmod(t,8)
        for u in range(2):
            A(f'ds_read_b64_tr_b16 v[{buf+2*u}:{buf+2*u+1}], v{112+b} offset:{a*256+kb*16384+u*8192}')
    rd(0,32)
    for t in range(16):
        buf=32+4*(t%2)
        if t<15: rd(t+1, 32+4*((t+1)%2))
        A(f's_waitcnt lgkmcnt({2 if t<15 else 0})')
        cin = '0' if first else f'v[{ACC+4*t}:{ACC+4*t+3}]'
        A(f'v_mfma_f32_16x16x32_bf16 v[{ACC+4*t}:{ACC+4*t+3}], v[{buf}:{buf+3}], v[{104+4*kb}:{107+4*kb}], {cin}')
A('v_lshlrev_b32 v11, 16, v104')
A('v_and_b32 v12, 0xffff0000, v104')
A('v_add_f32 v11, v11, v12')
for k in range(1,8):
    A(f'v_lshlrev_b32 v12, 16, v{104+k}')
    A('v_add_f32 v11, v11, v12')
    A(f'v_and_b32 v12, 0xffff0000, v{104+k}')
    A('v_add_f32 v11, v11, v12')
allreduce('add',11,10,lo=False)
A('v_and_b32 v12, 15, v1')
A('v_lshlrev_b32 v12, 2, v12')
A(f's_lshl_b32 {sT1}, {sW}, 4')
A(f'v_add_u32 v12, {sT1}, v12')
A('s_and_saveexec_b64 s[98:99], vcc')
A(f'ds_write_b32 v12, v9 offset:{L_ST}')
A(f'ds_write_b32 v12, v11 offset:{L_ST+8}')
A('s_mov_b64 exec, s[98:99]')
A('s_waitcnt vmcnt(16) lgkmcnt(0)')
pv_half(0, True)
A('s_waitcnt vmcnt(0)')
pv_half(1, False)
stamp(5)
A('v_and_b32 v12, 15, v1')
A('v_lshlrev_b32 v12, 10, v12')
A('v_lshl_add_u32 v12, v7, 4, v12')
A(f's_lshl_b32 {sT0}, {sW}, 11')
A(f'v_add_u32 v12, {sT0}, v12')
A('s_and_saveexec_b64 s[98:99], vcc')
for t in range(16):
    A(f'ds_write_b128 v12, v[{ACC+4*t}:{ACC+4*t+3}] offset:{L_OW+64*t}')
A('s_mov_b64 exec, s[98:99]')
A('v_mov_b32 v13, 0')
A('v_mov_b32 v14, 1')
A('s_waitcnt lgkmcnt(0)')
A('s_mov_b64 exec, 1')
A(f'ds_add_u32 v13, v14 offset:{L_CNT}')
A('s_mov_b64 exec, -1')
A(f's_cmp_ge_u32 {sW}, 2')
A('s_cbranch_scc1 L_nopub')
A.label('L_b3spin')
A(f'ds_read_b32 v14, v13 offset:{L_CNT}')
A('s_waitcnt lgkmcnt(0)')
A('v_cmp_ne_u32 vcc, 4, v14')
A('s_nop 1')
A('s_cbranch_vccz L_b3ok')
guard('L_b3ok')
A('s_branch L_b3spin')
A.label('L_b3ok')
A(f's_lshl_b32 {sT0}, {sW}, 2')
A(f'v_mov_b32 v12, {sT0}')
for w in range(4):
    A(f'ds_read_b32 v{16+w}, v12 offset:{L_ST+16*w}')
    A(f'ds_read_b32 v{20+w}, v12 offset:{L_ST+16*w+8}')
A(f's_lshl_b32 {sT0}, {sW}, 10')
A(f'v_add_u32 v13, {sT0}, v3')
for w in range(4): A(f'ds_read_b128 v[{32+4*w}:{35+4*w}], v13 offset:{L_OW+2048*w}')
A('s_waitcnt lgkmcnt(4)')
A('v_max_f32 v10, v16, v17')
A('v_max3_f32 v10, v10, v18, v19')
for w in range(4): A(f'v_sub_f32 v{16+w}, v{16+w}, v10')
for w in range(4): A(f'v_exp_f32 v{16+w}, v{16+w}')
A('v_mul_f32 v11, v16, v20')
for w in range(1,4): A(f'v_fmac_f32 v11, v{16+w}, v{20+w}')
A('s_waitcnt lgkmcnt(0)')
for e in range(4): A(f'v_mul_f32 v{24+e}, v{32+e}, v16')
for w in range(1,4):
    for e in range(4): A(f'v_fmac_f32 v{24+e}, v{32+4*w+e}, v{16+w}')
for e in range(4): A(f'v_min_u32 v{24+e}, 0xfffffffe, v{24+e}')
A('v_min_u32 v10, 0xfffffffe, v10')
A('v_min_u32 v11, 0xfffffffe, v11')
A(f's_lshl_b32 {sT0}, {sH}, 1')
A(f's_add_u32 {sT0}, {sT0}, {sW}')
A(f's_lshl_b32 {sT0}, {sT0}, 5')
A(f's_add_u32 {sT0}, {sT0}, {sS}')
A(f's_lshl_b32 {sT1}, {sT0}, 10')
A(f's_add_u32 {sT1}, {sT1}, {O1_OFF}')
A(f'buffer_store_dwordx4 v[24:27], v3, {sWS}, {sT1} offen sc1')
A(f's_lshl_b32 {sT1}, {sT0}, 3')
A(f's_add_u32 {sT1}, {sT1}, {S1_OFF}')
A('v_cmp_eq_u32 vcc, 0, v1')
A('v_cndmask_b32 v13, v8, v1, vcc')
A(f'buffer_store_dwordx2 v[10:11], v13, {sWS}, {sT1} offen sc1')
A.label('L_nopub')
stamp(6)
A(f's_cmp_eq_u32 {sROLE}, 0')
A('s_cbranch_scc1 L_end')
A('v_mov_b32 v13, 0')
A.label('L_b4spin')
A(f'ds_read_b32 v14, v13 offset:{L_FLAG}')
A('s_waitcnt lgkmcnt(0)')
A('v_cmp_ne_u32 vcc, 1, v14')
A('s_nop 1')
A('s_cbranch_vccz L_b4ok')
guard('L_b4ok')
A('s_sleep 1')
A('s_branch L_b4spin')
A.label('L_b4ok')
A(f's_cmp_eq_u32 {sROLE}, 2')
A('s_cbranch_scc1 L_ffn')
A(f's_cmp_eq_u32 {sROLE}, 3')
A('s_cbranch_scc1 L_fin')

A('v_lshlrev_b32 v9, 3, v7')
A('v_and_b32 v10, 15, v1')
A('v_lshlrev_b32 v10, 4, v10')
A('v_lshl_add_u32 v10, v7, 10, v10')
A(f's_lshl_b32 {sC0}, {sJ}, 8')
A(f's_add_u32 {sC0}, {sC0}, {S1_OFF}')
A(f's_lshl_b32 {sC1}, {sJ}, 15')
A(f's_lshl_b32 {sT0}, {sW}, 8')
A(f's_add_u32 {sC1}, {sC1}, {sT0}')
A(f's_add_u32 {sC1}, {sC1}, {O1_OFF}')
SR=16; OR_=32; WR=64
def wo_poll_issue():
    for i in range(8):
        A(f'buffer_load_dwordx2 v[{SR+2*i}:{SR+1+2*i}], v9, {sWS}, {sC0} offen offset:{32*i} sc1')
    A(f's_mov_b32 {sT0}, {sC1}')
    for i in range(8):
        A(f'buffer_load_dwordx4 v[{OR_+4*i}:{OR_+3+4*i}], v10, {sWS}, {sT0} offen sc1')
        if i<7: A(f's_add_u32 {sT0}, {sT0}, 4096')
wo_poll_issue()
A(f's_lshl_b32 {sT0}, {sW}, 13')
A(f'v_add_u32 v12, {sT0}, v3')
for i in range(8): A(f'ds_read_b128 v[{WR+4*i}:{WR+3+4*i}], v12 offset:{L_W+1024*i}')
A.label('L_wopoll')
A('s_waitcnt vmcnt(0)')
sentinel_check(range(16,64), 11, 'L_wore')
A('s_branch L_wogo')
A.label('L_wore')
guard('L_wogo')
A('s_sleep 1')
wo_poll_issue()
A('s_branch L_wopoll')
A.label('L_wogo')
stamp(8)
A(f'v_max_f32 v11, v{SR}, v{SR+2}')
for i in range(2,8,2): A(f'v_max3_f32 v11, v11, v{SR+2*i}, v{SR+2+2*i}')
allreduce('max',11,12,lo=False)
for i in range(8): A(f'v_sub_f32 v{SR+2*i}, v{SR+2*i}, v11')
for i in range(8): A(f'v_exp_f32 v{SR+2*i}, v{SR+2*i}')
A(f'v_mul_f32 v11, v{SR}, v{SR+1}')
for i in range(1,8): A(f'v_fmac_f32 v11, v{SR+2*i}, v{SR+1+2*i}')
allreduce('add',11,12,lo=False)
A('v_rcp_f32 v12, v11')
for e in range(4): A(f'v_mul_f32 v{96+e}, v{OR_+e}, v{SR}')
for i in range(1,8):
    for e in range(4): A(f'v_fmac_f32 v{96+e}, v{OR_+4*i+e}, v{SR+2*i}')
for e in range(4): allreduce('add',96+e,100+e,lo=False)
for e in range(4):
    fdiv(104+e,96+e,11,12,100+e)
    bf16round(104+e)
A('v_and_b32 v13, 15, v1')
A('v_lshlrev_b32 v13, 4, v13')
A(f's_lshl_b32 {sT0}, {sW}, 8')
A(f'v_add_u32 v13, {sT0}, v13')
A(f'ds_write_b128 v13, v[104:107] offset:{L_OV}')
A('v_lshrrev_b32 v13, 3, v1')
A('v_lshlrev_b32 v13, 2, v13')
A(f'v_add_u32 v13, {sT0}, v13')
A('s_waitcnt lgkmcnt(0)')
for i in range(8): A(f'ds_read_b32 v{32+2*i}, v13 offset:{L_OV+32*i}')
for k in range(8): A(f'v_mov_b32 v{16+k}, 0')
for i in range(8):
    for k in range(4): unpack(f'v{WR+4*i+k}', 96+2*k)
    A(f's_waitcnt lgkmcnt({7-i})')
    for k in range(4):
        A(f'v_pk_fma_f32 v[{16+2*k}:{17+2*k}], v[{96+2*k}:{97+2*k}], v[{32+2*i}:{33+2*i}], v[{16+2*k}:{17+2*k}] op_sel_hi:[1,0,1]')
for k in range(8):
    A(f'v_add_f32_dpp v{16+k}, v{16+k}, v{16+k} row_ror:8 row_mask:0xf bank_mask:0xf')
A('v_and_b32 v13, 7, v1')
A('v_lshlrev_b32 v13, 5, v13')
A('v_lshl_add_u32 v13, v7, 8, v13')
A(f's_lshl_b32 {sT0}, {sW}, 10')
A(f'v_add_u32 v13, {sT0}, v13')
A(f'ds_write_b128 v13, v[16:19] offset:{L_RED2}')
A(f'ds_write_b128 v13, v[20:23] offset:{L_RED2+16}')
A('s_waitcnt lgkmcnt(0)')
A('s_barrier')
A(f's_cmp_lg_u32 {sW}, 0')
A('s_cbranch_scc1 L_end')
A('v_lshlrev_b32 v13, 2, v1')
for k in range(16): A(f'ds_read_b32 v{16+k}, v13 offset:{L_RED2+256*k}')
A('s_waitcnt lgkmcnt(0)')
for st in (8,4,2,1):
    for k in range(st): A(f'v_add_f32 v{16+k}, v{16+k}, v{16+k+st}')
A('v_min_u32 v16, 0xfffffffe, v16')
A(f's_mul_i32 {sT1}, {sJ}, 1792')
A(f's_lshl_b32 {sT2}, {sN}, 8')
A(f's_add_u32 {sT1}, {sT1}, {sT2}')
A(f's_add_u32 {sT1}, {sT1}, {P2_OFF}')
A(f'buffer_store_dword v16, v13, {sWS}, {sT1} offen sc1')
stamp(9)
A('s_branch L_end')

A.label('L_ffn')
A('v_and_b32 v11, 31, v1')
A('v_cmp_gt_u32 vcc, 28, v11')
A('v_lshlrev_b32 v12, 3, v11')
A('v_cndmask_b32 v12, v8, v12, vcc')
A(f's_mul_i32 {sT0}, {sW}, 224')
A(f'buffer_load_dwordx2 v[4:5], v12, {sX}, {sT0} offen')
A('v_lshlrev_b32 v14, 4, v11')
A('v_lshrrev_b32 v12, 5, v1')
A('v_mul_u32_u24 v12, 1792, v12')
A('v_add_u32 v14, v14, v12')
A('v_cndmask_b32 v14, v8, v14, vcc')
A('v_and_b32 v9, 15, v1')
A('v_lshrrev_b32 v10, 2, v9')
A('v_and_b32 v9, 3, v9')
A('v_lshl_add_u32 v12, v7, 2, v10')
A('v_mul_u32_u24 v12, 896, v12')
A('v_lshl_add_u32 v12, v9, 3, v12')
A(f's_mul_i32 {sT0}, {sW}, 224')
A(f's_add_u32 {sT0}, {sT0}, {L_W+28672}')
A(f'v_add_u32 v12, {sT0}, v12')
for t in range(7): A(f'ds_read_b64_tr_b16 v[{48+2*t}:{49+2*t}], v12 offset:{32*t}')
A(f's_cmp_ge_u32 {sW}, 2')
A('s_cbranch_scc1 L_ffnogu')
A('v_lshl_add_u32 v12, v7, 3, v10')
A('v_lshlrev_b32 v12, 5, v12')
A('v_lshl_add_u32 v12, v9, 3, v12')
A(f's_mul_i32 {sT0}, {sW}, 14336')
A(f's_add_u32 {sT0}, {sT0}, {L_W}')
A(f'v_add_u32 v12, {sT0}, v12')
for ks in range(14):
    for u in range(2):
        A(f'ds_read_b64_tr_b16 v[{64+4*ks+2*u}:{65+4*ks+2*u}], v12 offset:{1024*ks+128*u}')
A.label('L_ffnogu')
stamp(7)
A(f's_mul_i32 {sC0}, {sW}, 448')
A(f's_add_u32 {sC0}, {sC0}, {P2_OFF}')
A.label('L_ffpoll')
A(f's_mov_b32 {sT0}, {sC0}')
for i in range(8):
    A(f'buffer_load_dwordx4 v[{16+4*i}:{19+4*i}], v14, {sWS}, {sT0} offen sc1')
    if i<7: A(f's_add_u32 {sT0}, {sT0}, 3584')
A('s_waitcnt vmcnt(0)')
sentinel_check(range(16,48), 9, 'L_ffre')
A('s_branch L_ffgo')
A.label('L_ffre')
guard('L_ffgo')
A('s_sleep 1')
A('s_branch L_ffpoll')
A.label('L_ffgo')
stamp(8)
for st in (16,8,4):
    for k in range(st): A(f'v_add_f32 v{16+k}, v{16+k}, v{16+k+st}')
unpack('v4',24); unpack('v5',26)
for e in range(4): allreduce('add',16+e,20+e,lo=False,x16=False)
for e in range(4):
    bf16round(16+e)
    A(f'v_add_f32 v{16+e}, v{16+e}, v{24+e}')
    bf16round(16+e)
A('v_add_f32 v9, v16, v17')
A('v_add_f32 v10, v18, v19')
A('v_add_f32 v9, v9, v10')
allreduce('add',9,10)
A(f'v_mul_f32 v9, {hex(f2u(1.0/224))}, v9')
A('v_mov_b32 v11, 0')
for e in range(4):
    A(f'v_sub_f32 v10, v{16+e}, v9')
    A('v_fmac_f32 v11, v10, v10')
A('v_and_b32 v12, 31, v1')
A('v_cmp_gt_u32 vcc, 28, v12')
A('v_cndmask_b32 v11, 0, v11, vcc')
allreduce('add',11,10)
A('v_mul_f32 v11, 0.5, v11')
A('v_mov_b32 v10, v9')
A(f's_lshl_b32 {sT0}, {sW}, 3')
A(f'v_mov_b32 v12, {sT0}')
A(f'ds_write_b64 v12, v[10:11] offset:{L_ST3}')
A('s_waitcnt lgkmcnt(0)')
A('s_barrier')
A('v_mov_b32 v12, 0')
A(f'ds_read_b128 v[20:23], v12 offset:{L_ST3}')
A(f'ds_read_b128 v[24:27], v12 offset:{L_ST3+16}')
A('s_waitcnt lgkmcnt(0)')
A('v_add_f32 v9, v20, v22')
A('v_add_f32 v10, v24, v26')
A('v_add_f32 v9, v9, v10')
A('v_mul_f32 v9, 0.25, v9')
A('v_add_f32 v11, v21, v23')
A('v_add_f32 v10, v25, v27')
A('v_add_f32 v11, v11, v10')
A('v_mov_b32 v13, 0')
for r in (20,22,24,26):
    A(f'v_sub_f32 v10, v{r}, v9')
    A('v_fmac_f32 v13, v10, v10')
A(f'v_mov_b32 v10, {hex(f2u(112.0))}')
A('v_fmac_f32 v11, v13, v10')
A(f'v_mul_f32 v11, {hex(f2u(1.0/448))}, v11')
layernorm_consts(9,11,10)
for e in range(4):
    A(f'v_sub_f32 v{20+e}, v{16+e}, v9')
    bf16round(20+e)
    fdiv(24+e,20+e,11,10,12)
A('v_cvt_pk_bf16_f32 v24, v24, v25')
A('v_cvt_pk_bf16_f32 v25, v26, v27')
A('v_and_b32 v12, 31, v1')
A('v_cmp_gt_u32 vcc, 28, v12')
A('v_lshlrev_b32 v12, 3, v12')
A(f's_mul_i32 {sT0}, {sW}, 224')
A(f'v_add_u32 v12, {sT0}, v12')
A('s_and_saveexec_b64 s[98:99], vcc')
A(f'ds_write_b64 v12, v[24:25] offset:{L_HN}')
A('s_mov_b64 exec, s[98:99]')
for k in range(28): A(f'v_mov_b32 v{16+k}, 0')
A('v_and_b32 v9, 15, v1')
A('v_cmp_eq_u32 vcc, 0, v9')
A('v_lshlrev_b32 v12, 4, v7')
A('s_waitcnt lgkmcnt(0)')
A('s_barrier')
A(f's_cmp_ge_u32 {sW}, 2')
A('s_cbranch_scc1 L_ffnomm')
for hb in range(2):
    A('s_and_saveexec_b64 s[98:99], vcc')
    for k in range(7): A(f'ds_read_b128 v[{16+4*k}:{19+4*k}], v12 offset:{L_HN+64*(7*hb+k)}')
    A('s_mov_b64 exec, s[98:99]')
    for k in range(7):
        ks=7*hb+k
        A(f's_waitcnt lgkmcnt({6-k})')
        cin='0' if ks==0 else 'v[44:47]'
        A(f'v_mfma_f32_16x16x32_bf16 v[44:47], v[{64+4*ks}:{67+4*ks}], v[{16+4*k}:{19+4*k}], {cin}')
for e in range(4): bf16round(44+e)
A(f's_lshl_b32 {sT0}, {sW}, 6')
A(f'v_add_u32 v13, {sT0}, v12')
A('s_and_saveexec_b64 s[98:99], vcc')
A(f'ds_write_b128 v13, v[44:47] offset:{L_GU}')
A('s_mov_b64 exec, s[98:99]')
A.label('L_ffnomm')
A('s_waitcnt lgkmcnt(0)')
A('s_barrier')
A(f'ds_read_b128 v[16:19], v12 offset:{L_GU}')
A(f'ds_read_b128 v[20:23], v12 offset:{L_GU+64}')
A(f'v_mov_b32 v28, {hex(f2u(0.044715))}')
A('s_waitcnt lgkmcnt(0)')
for e in range(4): A(f'v_mul_f32 v{24+e}, v{16+e}, v{16+e}')
for e in range(4): A(f'v_fma_f32 v{24+e}, v{24+e}, v28, 1.0')
for e in range(4): A(f'v_mul_f32 v{24+e}, v{24+e}, v{16+e}')
for e in range(4): A(f'v_mul_f32 v{24+e}, {hex(f2u(2.0*0.7978845608028654*LOG2E))}, v{24+e}')
for e in range(4): A(f'v_exp_f32 v{24+e}, v{24+e}')
for e in range(4): A(f'v_add_f32 v{24+e}, 1.0, v{24+e}')
for e in range(4): A(f'v_rcp_f32 v{24+e}, v{24+e}')
for e in range(4): A(f'v_fma_f32 v{24+e}, v{24+e}, -2.0, 2.0')
for e in range(4): A(f'v_mul_f32 v{24+e}, v{24+e}, v{16+e}')
for e in range(4): A(f'v_mul_f32 v{24+e}, 0.5, v{24+e}')
for e in range(4): bf16round(24+e)
for e in range(4): A(f'v_mul_f32 v{24+e}, v{24+e}, v{20+e}')
A('v_cvt_pk_bf16_f32 v24, v24, v25')
A('v_cvt_pk_bf16_f32 v25, v26, v27')
A('v_cndmask_b32 v24, 0, v24, vcc')
A('v_cndmask_b32 v25, 0, v25, vcc')
for t in range(7):
    A(f'v_mfma_f32_16x16x16_bf16 v[{64+4*t}:{67+4*t}], v[{48+2*t}:{49+2*t}], v[24:25], 0')
A('v_cndmask_b32 v13, v8, v12, vcc')
A(f's_mul_i32 {sT1}, {sF}, 1792')
A(f's_mul_i32 {sT0}, {sW}, 448')
A(f's_add_u32 {sT1}, {sT1}, {sT0}')
A(f's_add_u32 {sT1}, {sT1}, {P3_OFF}')
for t in range(7):
    for e in range(4): A(f'v_min_u32 v{64+4*t+e}, 0xfffffffe, v{64+4*t+e}')
    A(f'buffer_store_dwordx4 v[{64+4*t}:{67+4*t}], v13, {sWS}, {sT1} offen offset:{64*t} sc1')
stamp(9)
A('s_branch L_end')

A.label('L_fin')
A(f's_cmp_lg_u32 {sW}, 0')
A('s_cbranch_scc1 L_end')
A(f's_sub_u32 {sN}, {sS}, 14')
A(f's_mul_i32 {sN}, {sN}, 7')
A(f's_add_u32 {sN}, {sN}, {sH}')
A('v_and_b32 v11, 7, v1')
A('v_lshlrev_b32 v12, 3, v11')
A(f's_lshl_b32 {sT0}, {sN}, 6')
A(f'buffer_load_dwordx2 v[48:49], v12, {sX}, {sT0} offen')
A('v_lshlrev_b32 v14, 4, v11')
A('v_lshrrev_b32 v10, 3, v1')
A('v_mul_u32_u24 v10, 1792, v10')
A('v_add_u32 v14, v14, v10')
A(f's_lshl_b32 {sC0}, {sN}, 7')
A(f's_add_u32 {sC1}, {sC0}, {P3_OFF}')
A(f's_add_u32 {sC0}, {sC0}, {P2_OFF}')
A(f's_add_u32 {sT1}, {sC0}, 14336')
def red8(v,t):
    A(f'v_add_f32_dpp v{v}, v{v}, v{v} row_ror:8 row_mask:0xf bank_mask:0xf')
    allreduce('add',v,t,lo=False)
A.label('L_f2poll')
A(f'buffer_load_dwordx4 v[16:19], v14, {sWS}, {sC0} offen sc1')
A(f'buffer_load_dwordx4 v[20:23], v14, {sWS}, {sT1} offen sc1')
A('s_waitcnt vmcnt(0)')
sentinel_check(range(16,24), 9, 'L_f2re')
A('s_branch L_f2go')
A.label('L_f2re')
guard('L_f2go')
A('s_sleep 2')
A('s_branch L_f2poll')
A.label('L_f2go')
stamp(7)
unpack('v48',50); unpack('v49',52)
for k in range(4): A(f'v_add_f32 v{16+k}, v{16+k}, v{20+k}')
for e in range(4): red8(16+e,20+e)
for e in range(4):
    bf16round(16+e)
    A(f'v_add_f32 v{16+e}, v{16+e}, v{50+e}')
    bf16round(16+e)
A.label('L_f3poll')
A(f's_mov_b32 {sT0}, {sC1}')
for i in range(14):
    A(f'buffer_load_dwordx4 v[{64+4*i}:{67+4*i}], v14, {sWS}, {sT0} offen sc1')
    if i<13: A(f's_add_u32 {sT0}, {sT0}, 14336')
A('s_waitcnt vmcnt(0)')
sentinel_check(range(64,120), 9, 'L_f3re')
A('s_branch L_f3go')
A.label('L_f3re')
guard('L_f3go')
A('s_branch L_f3poll')
A.label('L_f3go')
stamp(8)
for i in range(7):
    for e in range(4): A(f'v_add_f32 v{64+4*i+e}, v{64+4*i+e}, v{92+4*i+e}')
for i in range(3):
    for e in range(4): A(f'v_add_f32 v{64+4*i+e}, v{64+4*i+e}, v{80+4*i+e}')
for e in range(4): A(f'v_add_f32 v{64+e}, v{64+e}, v{68+e}')
for e in range(4): A(f'v_add_f32 v{72+e}, v{72+e}, v{76+e}')
for e in range(4): A(f'v_add_f32 v{64+e}, v{64+e}, v{72+e}')
for e in range(4): red8(64+e,20+e)
for e in range(4):
    bf16round(64+e)
    A(f'v_add_f32 v{64+e}, v{64+e}, v{16+e}')
A('v_cvt_pk_bf16_f32 v64, v64, v65')
A('v_cvt_pk_bf16_f32 v65, v66, v67')
A('v_cmp_gt_u32 vcc, 8, v1')
A('v_cndmask_b32 v12, v8, v12, vcc')
A(f's_lshl_b32 {sT0}, {sN}, 6')
A(f'buffer_store_dwordx2 v[64:65], v12, {sOUT}, {sT0} offen')
A('s_branch L_end')

A.label('L_helper')
A('s_barrier')
stamp(7)
A(f'buffer_load_dwordx4 v[60:63], v3, {sX}, 0 offen')
A('v_lshrrev_b32 v9, 1, v1')
A('v_lshlrev_b32 v9, 13, v9')
A('v_and_b32 v10, 1, v1')
A('v_lshl_add_u32 v9, v10, 4, v9')
A(f's_lshl_b32 {sC0}, {sH}, 10')
A(f's_lshl_b32 {sT1}, {sS}, 5')
A(f's_add_u32 {sC0}, {sC0}, {sT1}')
A(f's_mov_b32 {sT0}, {sC0}')
for i in range(14):
    A(f'buffer_load_dwordx4 v[{64+4*i}:{67+4*i}], v9, {sWQ}, {sT0} offen nt')
    if i<13: A(f's_add_u32 {sT0}, {sT0}, 262144')
A(f's_cmp_lg_u32 {sROLE}, 1')
A('s_cbranch_scc1 L_hnowo')
A('v_lshrrev_b32 v10, 3, v1')
A('v_mul_u32_u24 v10, 896, v10')
A('v_and_b32 v11, 7, v1')
A('v_lshl_add_u32 v10, v11, 4, v10')
A(f's_lshl_b32 {sT0}, {sJ}, 8')
A(f's_mul_i32 {sT0}, {sT0}, 896')
A(f's_lshl_b32 {sT1}, {sN}, 7')
A(f's_add_u32 {sT0}, {sT0}, {sT1}')
for i in range(32):
    A(f'buffer_load_dwordx4 a[{4*i}:{4*i+3}], v10, {sWO}, {sT0} offen nt')
    if i<31: A(f's_add_u32 {sT0}, {sT0}, {8*896}')
A.label('L_hnowo')
A(f's_cmp_lg_u32 {sROLE}, 2')
A('s_cbranch_scc1 L_hnoff0')
A('v_lshrrev_b32 v10, 1, v1')
A('v_mul_u32_u24 v10, 3584, v10')
A('v_and_b32 v11, 1, v1')
A('v_lshl_add_u32 v10, v11, 4, v10')
A(f's_lshl_b32 {sT0}, {sF}, 5')
for i in range(14):
    A(f'buffer_load_dwordx4 a[{4*i}:{4*i+3}], v10, {sWG}, {sT0} offen nt')
    A(f'buffer_load_dwordx4 a[{56+4*i}:{59+4*i}], v10, {sWU}, {sT0} offen nt')
    if i<13: A(f's_add_u32 {sT0}, {sT0}, {32*3584}')
A(f's_mul_i32 {sC1}, {sF}, 14336')
for i in range(4):
    A(f'buffer_load_dwordx4 a[{112+4*i}:{115+4*i}], v3, {sWD}, {sC1} offen offset:{1024*i} nt')
A.label('L_hnoff0')
for i in range(4): A(f'v_mov_b32 v{12+i}, -1')
A(f's_lshl_b32 {sT0}, {sH}, 6')
A(f's_add_u32 {sT0}, {sT0}, {sS}')
A(f's_lshl_b32 {sT1}, {sT0}, 10')
A(f's_add_u32 {sT1}, {sT1}, {O1_OFF}')
A(f's_add_u32 {sT2}, {sT1}, 32768')
A(f'buffer_store_dwordx4 v[12:15], v3, {sWS}, {sT1} offen sc1')
A(f'buffer_store_dwordx4 v[12:15], v3, {sWS}, {sT2} offen sc1')
A(f's_lshl_b32 {sT1}, {sT0}, 3')
A(f's_add_u32 {sT1}, {sT1}, {S1_OFF}')
A('v_lshlrev_b32 v10, 8, v1')
A('v_cmp_gt_u32 vcc, 2, v1')
A('v_cndmask_b32 v10, v8, v10, vcc')
A(f'buffer_store_dwordx2 v[12:13], v10, {sWS}, {sT1} offen sc1')
A(f's_cmp_lg_u32 {sROLE}, 1')
A('s_cbranch_scc1 L_noclr2')
A(f's_mul_i32 {sT1}, {sJ}, 1792')
A(f's_lshl_b32 {sT2}, {sN}, 8')
A(f's_add_u32 {sT1}, {sT1}, {sT2}')
A(f's_add_u32 {sT1}, {sT1}, {P2_OFF}')
A('v_cmp_gt_u32 vcc, 16, v1')
A('v_cndmask_b32 v10, v8, v3, vcc')
A(f'buffer_store_dwordx4 v[12:15], v10, {sWS}, {sT1} offen sc1')
A.label('L_noclr2')
A(f's_cmp_lg_u32 {sROLE}, 2')
A('s_cbranch_scc1 L_noclear')
A(f's_mul_i32 {sT1}, {sF}, 1792')
A(f's_add_u32 {sT1}, {sT1}, {P3_OFF}')
A('v_cmp_gt_u32 vcc, 48, v1')
A('v_cndmask_b32 v10, v8, v3, vcc')
A(f'buffer_store_dwordx4 v[12:15], v3, {sWS}, {sT1} offen sc1')
A(f'buffer_store_dwordx4 v[12:15], v10, {sWS}, {sT1} offen offset:1024 sc1')
A.label('L_noclear')
def rolewait(extra, tag):
    A(f's_cmp_lg_u32 {sROLE}, 1')
    A(f's_cbranch_scc1 L_rw{tag}a')
    A(f's_waitcnt vmcnt({36+extra})')
    A(f's_branch L_rw{tag}z')
    A.label(f'L_rw{tag}a')
    A(f's_cmp_lg_u32 {sROLE}, 2')
    A(f's_cbranch_scc1 L_rw{tag}b')
    A(f's_waitcnt vmcnt({37+extra})')
    A(f's_branch L_rw{tag}z')
    A.label(f'L_rw{tag}b')
    A(f's_waitcnt vmcnt({3+extra})')
    A.label(f'L_rw{tag}z')
rolewait(14,'x')
for k in range(4): unpack(f'v{60+k}', 16+2*k)
A('v_add_f32 v9, v16, v17')
for k in range(2,8): A(f'v_add_f32 v9, v9, v{16+k}')
allreduce('add',9,10)
A(f'v_mul_f32 v9, {hex(f2u(1.0/448))}, v9')
A('v_mov_b32 v11, 0')
for k in range(8):
    A(f'v_sub_f32 v10, v{16+k}, v9')
    A(f'v_fmac_f32 v11, v10, v10')
A('v_cmp_gt_u32 vcc, 56, v1')
A('v_cndmask_b32 v11, 0, v11, vcc')
allreduce('add',11,10)
A(f'v_mul_f32 v11, {hex(f2u(1.0/448))}, v11')
layernorm_consts(9,11,10)
for k in range(8):
    A(f'v_sub_f32 v{16+k}, v{16+k}, v9')
    bf16round(16+k)
    fdiv(24+k,16+k,11,10,12)
    bf16round(24+k)
A('v_lshlrev_b32 v12, 5, v1')
A('v_cmp_gt_u32 vcc, 56, v1')
A('s_and_saveexec_b64 s[98:99], vcc')
A(f'ds_write_b128 v12, v[24:27] offset:{L_XN}')
A(f'ds_write_b128 v12, v[28:31] offset:{L_XN+16}')
A('s_mov_b64 exec, s[98:99]')
A('v_lshrrev_b32 v12, 1, v1')
A('v_lshlrev_b32 v12, 2, v12')
A('s_waitcnt lgkmcnt(0)')
for i in range(14): A(f'ds_read_b32 v{32+2*i}, v12 offset:{L_XN+128*i}')
for k in range(8): A(f'v_mov_b32 v{16+k}, 0')
A('s_waitcnt lgkmcnt(0)')
rolewait(0,'w')
stamp(1)
for i in range(14): fma8(16, 64+4*i, 32+2*i, 24)
for m in ('quad_perm:[2,3,0,1]','row_ror:4','row_ror:8'):
    for k in range(8):
        A(f'v_add_f32_dpp v{16+k}, v{16+k}, v{16+k} {m} row_mask:0xf bank_mask:0xf')
for k in range(8): allreduce('add',16+k,24+k,lo=False)
for k in range(4): A(f'v_cvt_pk_bf16_f32 v{16+k}, v{16+2*k}, v{17+2*k}')
A('v_cmp_gt_u32 vcc, 2, v1')
A('v_cndmask_b32 v12, v8, v3, vcc')
A(f's_add_u32 {sT0}, {sC0}, {Q_OFF}')
A(f'buffer_store_dwordx4 v[16:19], v12, {sWS}, {sT0} offen sc1')
A('s_waitcnt vmcnt(0)')
A('v_mov_b32 v12, 1')
A('v_cmp_eq_u32 vcc, 0, v1')
A('v_cndmask_b32 v13, v8, v1, vcc')
A(f's_lshl_b32 {sT0}, {sH}, 5')
A(f's_add_u32 {sT1}, {sT0}, {sS}')
A(f'buffer_store_byte v12, v13, {sDB}, {sT1} offen sc1')
stamp(2)
A(f's_cmp_lg_u32 {sROLE}, 2')
A('s_cbranch_scc1 L_hnoff1')
A(f's_add_u32 {sC1}, {sC1}, 4096')
for i in range(10):
    if i in (4,8): A(f's_add_u32 {sC1}, {sC1}, 4096')
    A(f'buffer_load_dwordx4 v[{80+4*i}:{83+4*i}], v3, {sWD}, {sC1} offen offset:{1024*(i%4)} nt')
A.label('L_hnoff1')
A('s_barrier')
A('s_barrier')
stamp(6)
A('v_and_b32 v13, 7, v1')
A('v_lshlrev_b32 v13, 2, v13')
A.label('L_fpoll')
A(f'buffer_load_dword v12, v13, {sDB}, {sT0} offen sc1')
A('s_waitcnt vmcnt(0)')
A('v_cmp_ne_u32 vcc, 0x01010101, v12')
A('s_nop 1')
A('s_cbranch_vccz L_fok')
guard('L_fok')
A('s_sleep 2')
A('s_branch L_fpoll')
A.label('L_fok')
stamp(3)
A(f's_lshl_b32 {sT0}, {sH}, 10')
A(f's_add_u32 {sT0}, {sT0}, {Q_OFF}')
A(f'buffer_load_dwordx4 v[16:19], v3, {sWS}, {sT0} offen sc1')
A('s_waitcnt vmcnt(0)')
A(f'ds_write_b128 v3, v[16:19] offset:{L_Q}')
A('v_mov_b32 v12, 0')
A('v_mov_b32 v13, 0')
A(f'ds_write_b64 v12, v[12:13] offset:{L_CNT}')
A('s_waitcnt lgkmcnt(0)')
stamp(4)
A('s_barrier')
A(f's_cmp_eq_u32 {sROLE}, 0')
A('s_cbranch_scc1 L_end')
A('v_mov_b32 v13, 0')
A.label('L_hcnt')
A(f'ds_read_b32 v14, v13 offset:{L_CNT}')
A('s_waitcnt lgkmcnt(0)')
A('v_cmp_ne_u32 vcc, 4, v14')
A('s_nop 1')
A('s_cbranch_vccz L_hcntok')
guard('L_hcntok')
A('s_sleep 1')
A('s_branch L_hcnt')
A.label('L_hcntok')
A(f's_cmp_lg_u32 {sROLE}, 1')
A('s_cbranch_scc1 L_hnowo2')
A('s_waitcnt vmcnt(0)')
A(f'v_add_u32 v9, {L_W}, v3')
for i in range(32):
    A(f'ds_write_b128 v9, a[{4*i}:{4*i+3}] offset:{1024*i}')
A.label('L_hnowo2')
A(f's_cmp_lg_u32 {sROLE}, 2')
A('s_cbranch_scc1 L_hnoffn')
A('s_waitcnt vmcnt(0)')
A(f'v_add_u32 v9, {L_W}, v3')
for i in range(32):
    A(f'ds_write_b128 v9, a[{4*i}:{4*i+3}] offset:{1024*i}')
for i in range(10):
    A(f'ds_write_b128 v9, v[{80+4*i}:{83+4*i}] offset:{1024*(32+i)}')
A.label('L_hnoffn')
A('v_lshlrev_b32 v13, 2, v1')
A.label('L_afpoll')
A(f'buffer_load_dword v12, v13, {sDB}, 0 offen sc1')
A('s_waitcnt vmcnt(0)')
A('v_cmp_ne_u32 vcc, 0x01010101, v12')
A('s_nop 1')
A('s_cbranch_vccz L_afok')
guard('L_afok')
A('s_sleep 8')
A('s_branch L_afpoll')
A.label('L_afok')
stamp(5)
A('v_mov_b32 v12, 0')
A('v_mov_b32 v13, 1')
A('s_waitcnt lgkmcnt(0)')
A(f'ds_write_b32 v12, v13 offset:{L_FLAG}')
A('s_waitcnt lgkmcnt(0)')
A.label('L_end')
if STAMP:
    stamp(10)
    A('s_cmp_ge_u32 s2, 256')
    A('s_cbranch_scc1 L_end2')
    A('v_mov_b32 v5, 0')
    A('s_mul_i32 s3, s2, 5')
    A(f's_add_u32 s3, s3, {sW}')
    A('s_lshl_b32 s3, s3, 6')
    A(f's_add_u32 s3, s3, {STAMP_OFF}')
    A('s_mov_b64 exec, 1')
    for i in range(16):
        A(f'v_mov_b32 v6, s{48+i}')
        A(f'buffer_store_dword v6, v5, {sWS}, s3 offen offset:{4*i}')
    A.label('L_end2')
A('s_endpgm')

hdr=open('cdna_kernels/'+NAME+'.s.ref').read().split('; @launch')[0]
out=hdr+f'; @launch grid=(256,1,1) block=(320,1,1) lds={LDS_SIZE}\n'
out+='.amdgcn_target "amdgcn-amd-amdhsa--gfx950"\n.text\n'
out+=f'.globl {NAME}_kernel\n.p2align 8\n.type {NAME}_kernel,@function\n'
out+=A.text()
out+=f'''.section .rodata,"a"
.p2align 6
.amdhsa_kernel {NAME}_kernel
  .amdhsa_next_free_vgpr 256
  .amdhsa_next_free_sgpr 102
  .amdhsa_accum_offset 128
  .amdhsa_group_segment_fixed_size 0
  .amdhsa_kernarg_size 96
  .amdhsa_user_sgpr_count 2
  .amdhsa_user_sgpr_kernarg_segment_ptr 1
  .amdhsa_system_sgpr_workgroup_id_x 1
.end_amdhsa_kernel
'''
open(sys.argv[1],'w').write(out)
print('lines',len(A.lines))
```

```python
import sys, os, struct
from asmlib import Asm

NAME='sequential_preLN__gqa_block_cached__geglu_ffn__decode'
D = int(sys.argv[2]) if len(sys.argv)>2 else 12
STAMP=int(os.environ.get('STAMP','0'))
P1=[int(x) for x in os.environ.get('P1','0,8,16,24').split(',')]
PZ=[int(x) for x in os.environ.get('PZ','16,24,32,40,48,56').split(',')]
SPIN=100000

Q_OFF=0x0; S1_OFF=0x2000; O1_OFF=0x4000; P2_OFF=0x84000; P3_OFF=0x8C000; WS_SIZE=0xBD000
STAMP_OFF=0x100000
if STAMP: WS_SIZE=0x200000
OOB=0x80000000
L_XN=0; L_Q=2048; L_P=4096; L_OW=6144; L_ST=14336; L_OV=14400; L_RED2=15424; L_ST3=19520; L_HN=19584
L_CNT=19552; L_FLAG=19556; L_GU=21376; L_RED3=21376; L_RED4=25472; L_W=32768; L_V=32768; LDS_SIZE=163840
LOG2E=1.4426950408889634
def f2u(x): return struct.unpack('<I',struct.pack('<f',x))[0]

A=Asm()
sK='s[4:7]'; sV='s[8:11]'; sWS='s[12:15]'; sDB='s[16:19]'; sX='s[20:23]'; sWQ='s[24:27]'; sWO='s[28:31]'
sWG='s[32:35]'; sWU='s[36:39]'; sWD='s[40:43]'; sOUT='s[44:47]'
sH='s72'; sS='s73'; sW='s74'; sT0='s75'; sT1='s76'; sT2='s77'; sT3='s78'; sKB='s79'; sVB='s80'; sJ='s81'; sN='s82'; sF='s83'
sOOB='s84'; sC0='s85'; sC1='s86'; sROLE='s87'; sC3='s88'
sA0=90

def srd(base, p, size):
    A(f's_mov_b32 s{base}, s{p}')
    A(f's_and_b32 s{base+1}, s{p+1}, 0xffff')
    A(f's_mov_b32 s{base+2}, {size}')
    A(f's_mov_b32 s{base+3}, 0x00020000')
def stamp(i):
    if not STAMP: return
    A('s_memrealtime s[100:101]')
    A('s_waitcnt lgkmcnt(0)')
    A(f's_mov_b32 s{48+i}, s100')
def guard(go):
    A('s_add_u32 s89, s89, 1')
    A(f's_cmp_gt_u32 s89, {SPIN}')
    A(f's_cbranch_scc1 {go}')
def allreduce(op, v, t, lo=True, x16=True, x32=True):
    ins = 'v_add_f32' if op=='add' else 'v_max_f32'
    if lo:
        for m in ('quad_perm:[1,0,3,2]','quad_perm:[2,3,0,1]','row_half_mirror','row_mirror'):
            A(f'{ins}_dpp v{v}, v{v}, v{v} {m} row_mask:0xf bank_mask:0xf')
    if x16:
        A(f'v_mov_b32 v{t}, v{v}'); A(f'v_permlane16_swap_b32 v{v}, v{t}'); A(f'{ins} v{v}, v{v}, v{t}')
    if x32:
        A(f'v_mov_b32 v{t}, v{v}'); A(f'v_permlane32_swap_b32 v{v}, v{t}'); A(f'{ins} v{v}, v{v}, v{t}')
def bf16round(v):
    A(f'v_cvt_pk_bf16_f32 v{v}, v{v}, v{v}')
    A(f'v_and_b32 v{v}, 0xffff0000, v{v}')
def unpack(src, dst):
    A(f'v_lshlrev_b32 v{dst}, 16, {src}')
    A(f'v_and_b32 v{dst+1}, 0xffff0000, {src}')
def fdiv(d, num, den, r, t):
    A(f'v_mul_f32 v{d}, v{num}, v{r}')
    A(f'v_fma_f32 v{t}, -v{d}, v{den}, v{num}')
    A(f'v_fma_f32 v{d}, v{t}, v{r}, v{d}')
def sentinel_check(regs, t, fail_label):
    regs=list(regs)
    A(f'v_max_u32 v{t}, v{regs[0]}, v{regs[1]}')
    i=2
    while i<len(regs):
        if i+1<len(regs):
            A(f'v_max3_u32 v{t}, v{t}, v{regs[i]}, v{regs[i+1]}'); i+=2
        else:
            A(f'v_max_u32 v{t}, v{t}, v{regs[i]}'); i+=1
    A(f'v_cmp_eq_u32 vcc, -1, v{t}')
    A('s_nop 1')
    A(f's_cbranch_vccnz {fail_label}')
def layernorm_consts(mean, var, t0):
    bf16round(mean); bf16round(var)
    A(f'v_add_f32 v{var}, {hex(f2u(1e-5))}, v{var}')
    bf16round(var)
    A(f'v_sqrt_f32 v{var}, v{var}')
    bf16round(var)
    A(f'v_rcp_f32 v{t0}, v{var}')
def fma8(acc, raw, mul, tmp):
    for k in range(4): unpack(f'v{raw+k}', tmp+2*k)
    for k in range(4):
        A(f'v_pk_fma_f32 v[{acc+2*k}:{acc+2*k+1}], v[{tmp+2*k}:{tmp+2*k+1}], v[{mul}:{mul+1}], v[{acc+2*k}:{acc+2*k+1}] op_sel_hi:[1,0,1]')

A.raw(f'{NAME}_kernel:')
A('s_cmp_ge_u32 s2, 256')
A('s_cbranch_scc1 L_end')
A('s_load_dwordx16 s[48:63], s[0:1], 0')
A('s_load_dwordx8 s[64:71], s[0:1], 64')
A('v_and_b32 v1, 63, v0')
A('v_lshrrev_b32 v6, 6, v0')
A(f'v_readfirstlane_b32 {sW}, v6')
A(f's_and_b32 {sH}, s2, 7')
A(f's_lshr_b32 {sS}, s2, 3')
A(f's_mov_b32 {sOOB}, {hex(OOB)}')
A('s_mov_b32 s89, 0')
A('v_and_b32 v6, 15, v1')
A('v_lshrrev_b32 v7, 4, v1')
A('v_lshlrev_b32 v2, 9, v6')
A('v_lshl_add_u32 v2, v7, 4, v2')
A('v_lshlrev_b32 v3, 4, v1')
A(f'v_mov_b32 v8, {sOOB}')
A('s_waitcnt lgkmcnt(0)')
srd(4,50,33554432); srd(8,52,33554432); srd(12,70,WS_SIZE); srd(16,68,256); srd(20,48,896)
srd(24,54,3670016); srd(28,56,3670016); srd(32,60,1605632); srd(36,62,1605632); srd(40,64,1605632); srd(44,66,896)
if STAMP:
    for i in range(1,16): A(f's_mov_b32 s{48+i}, 0')
stamp(0)
A(f's_mov_b32 {sROLE}, 0')
A(f's_cmp_lt_u32 {sS}, 14')
A(f's_cselect_b32 {sROLE}, 1, {sROLE}')
A(f's_sub_u32 {sT0}, {sS}, 16')
A(f's_cmp_lt_u32 {sT0}, 14')
A(f's_cselect_b32 {sROLE}, 2, {sROLE}')
A(f's_sub_u32 {sT0}, {sS}, 14')
A(f's_cmp_lt_u32 {sT0}, 2')
A(f's_cselect_b32 {sT1}, 1, 0')
A(f's_cmp_lt_u32 {sH}, 7')
A(f's_cselect_b32 {sT1}, {sT1}, 0')
A(f's_cmp_eq_u32 {sT1}, 1')
A(f's_cselect_b32 {sROLE}, 3, {sROLE}')
A(f's_cmp_ge_u32 {sS}, 7')
A(f's_cselect_b32 {sT0}, 1, 0')
A(f's_lshl_b32 {sJ}, {sH}, 1')
A(f's_add_u32 {sJ}, {sJ}, {sT0}')
A(f's_mul_i32 {sT0}, {sT0}, 7')
A(f's_sub_u32 {sN}, {sS}, {sT0}')
A(f's_mul_i32 {sF}, {sH}, 14')
A(f's_add_u32 {sF}, {sF}, {sS}')
A(f's_sub_u32 {sF}, {sF}, 16')
A(f's_cmp_eq_u32 {sW}, 4')
A('s_cbranch_scc1 L_helper')

A(f's_lshl_b32 {sKB}, {sH}, 22')
A(f's_lshl_b32 {sT0}, {sS}, 17')
A(f's_add_u32 {sKB}, {sKB}, {sT0}')
A(f's_lshl_b32 {sT0}, {sW}, 15')
A(f's_add_u32 {sKB}, {sKB}, {sT0}')
A(f's_mov_b32 {sVB}, {sKB}')
A('s_barrier')
def pausept(k): pass
A('v_and_b32 v6, 15, v1')
A('v_cmp_gt_u32 vcc, 2, v6')
A('v_cndmask_b32 v4, v8, v2, vcc')
A(f's_lshl_b32 {sT0}, {sH}, 10')
A(f's_add_u32 {sT0}, {sT0}, {Q_OFF}')
for c in range(8):
    A(f'buffer_load_dwordx4 v[{32+4*c}:{35+4*c}], v4, {sWS}, {sT0} offen offset:{c*64}')
def kload(n):
    blk,c=divmod(n,8)
    if c==0 and blk>0: A(f's_add_u32 {sKB}, {sKB}, 8192')
    A(f'buffer_load_dwordx4 a[{4*n}:{4*n+3}], v2, {sK}, {sKB} offen offset:{c*64} nt')
def pace(): A(f's_waitcnt vmcnt({D-1})')
cnt=0
for n in range(8):
    pausept(n)
    kload(n); cnt+=1
A('v_lshrrev_b32 v9, 5, v1')
A('v_and_b32 v10, 31, v1')
for m4 in range(4):
    A(f'v_add_u32 v11, {2*m4}, v9')
    A('v_lshlrev_b32 v11, 1, v11')
    A('v_xor_b32 v11, v11, v10')
    A('v_lshlrev_b32 v11, 4, v11')
    A(f'v_lshl_add_u32 v{120+m4}, v9, 9, v11')
A(f's_lshl_b32 {sT3}, {sW}, 15')
A(f's_add_u32 {sT3}, {sT3}, {L_V}')
def vload(n):
    A(f's_mov_b32 m0, {sT3}')
    A(f's_add_u32 {sT3}, {sT3}, 1024')
    A(f'buffer_load_dwordx4 v{120+n%4}, {sV}, {sVB} offen nt lds')
    A(f's_add_u32 {sVB}, {sVB}, 1024')
for n in range(8,32):
    pausept(n)
    if cnt>=D: pace()
    kload(n); cnt+=1
for n in range(32):
    pausept(32+n)
    pace(); vload(n)
A('v_and_b32 v9, 15, v1')
A('v_lshrrev_b32 v10, 2, v9')
A('v_lshl_add_u32 v10, v7, 2, v10')
A('v_and_b32 v11, 7, v10')
A('v_and_b32 v9, 3, v9')
A('v_lshlrev_b32 v10, 9, v10')
A('v_lshl_add_u32 v10, v9, 3, v10')
A(f's_lshl_b32 {sT0}, {sW}, 15')
A(f's_add_u32 {sT0}, {sT0}, {L_V}')
A(f'v_add_u32 v10, {sT0}, v10')
for b in range(8):
    A(f'v_xor_b32 v9, {b}, v11')
    A(f'v_lshl_add_u32 v{112+b}, v9, 5, v10')
A('v_and_b32 v6, 15, v1')
A('v_cmp_gt_u32 vcc, 2, v6')
stamp(1)
A('s_waitcnt vmcnt(32)')
stamp(3)
for blk in range(4):
    for c in range(8):
        n=blk*8+c
        cin = '0' if c==0 else f'v[{16+4*blk}:{19+4*blk}]'
        A(f'v_mfma_f32_16x16x32_bf16 v[{16+4*blk}:{19+4*blk}], a[{4*n}:{4*n+3}], v[{32+4*c}:{35+4*c}], {cin}')
for k in range(0,16,2):
    A(f'v_cvt_pk_bf16_f32 v9, v{16+k}, v{17+k}')
    A(f'v_lshlrev_b32 v{16+k}, 16, v9')
    A(f'v_and_b32 v{17+k}, 0xffff0000, v9')
for k in range(16): A(f'v_mul_f32 v{16+k}, {hex(f2u(0.0625*LOG2E))}, v{16+k}')
A('v_max_f32 v9, v16, v17')
for k in range(2,16,2): A(f'v_max3_f32 v9, v9, v{16+k}, v{17+k}')
allreduce('max',9,10,lo=False)
for k in range(16): A(f'v_sub_f32 v{16+k}, v{16+k}, v9')
for k in range(16): A(f'v_exp_f32 v{16+k}, v{16+k}')
for k in range(8): A(f'v_cvt_pk_bf16_f32 v{104+k}, v{16+2*k}, v{17+2*k}')
stamp(4)
ACC=40
def pv_half(kb, first):
    def rd(t, buf):
        a,b=divmod(t,8)
        for u in range(2):
            A(f'ds_read_b64_tr_b16 v[{buf+2*u}:{buf+2*u+1}], v{112+b} offset:{a*256+kb*16384+u*8192}')
    rd(0,32)
    for t in range(16):
        buf=32+4*(t%2)
        if t<15: rd(t+1, 32+4*((t+1)%2))
        A(f's_waitcnt lgkmcnt({2 if t<15 else 0})')
        cin = '0' if first else f'v[{ACC+4*t}:{ACC+4*t+3}]'
        A(f'v_mfma_f32_16x16x32_bf16 v[{ACC+4*t}:{ACC+4*t+3}], v[{buf}:{buf+3}], v[{104+4*kb}:{107+4*kb}], {cin}')
A('v_lshlrev_b32 v11, 16, v104')
A('v_and_b32 v12, 0xffff0000, v104')
A('v_add_f32 v11, v11, v12')
for k in range(1,8):
    A(f'v_lshlrev_b32 v12, 16, v{104+k}')
    A('v_add_f32 v11, v11, v12')
    A(f'v_and_b32 v12, 0xffff0000, v{104+k}')
    A('v_add_f32 v11, v11, v12')
allreduce('add',11,10,lo=False)
A('v_and_b32 v12, 15, v1')
A('v_lshlrev_b32 v12, 2, v12')
A(f's_lshl_b32 {sT1}, {sW}, 4')
A(f'v_add_u32 v12, {sT1}, v12')
A('s_and_saveexec_b64 s[98:99], vcc')
A(f'ds_write_b32 v12, v9 offset:{L_ST}')
A(f'ds_write_b32 v12, v11 offset:{L_ST+8}')
A('s_mov_b64 exec, s[98:99]')
A('s_waitcnt vmcnt(16) lgkmcnt(0)')
pv_half(0, True)
A('s_waitcnt vmcnt(0)')
pv_half(1, False)
stamp(5)
A('v_and_b32 v12, 15, v1')
A('v_lshlrev_b32 v12, 10, v12')
A('v_lshl_add_u32 v12, v7, 4, v12')
A(f's_lshl_b32 {sT0}, {sW}, 11')
A(f'v_add_u32 v12, {sT0}, v12')
A('s_and_saveexec_b64 s[98:99], vcc')
for t in range(16):
    A(f'ds_write_b128 v12, v[{ACC+4*t}:{ACC+4*t+3}] offset:{L_OW+64*t}')
A('s_mov_b64 exec, s[98:99]')
A('v_mov_b32 v13, 0')
A('v_mov_b32 v14, 1')
A('s_waitcnt lgkmcnt(0)')
A('s_mov_b64 exec, 1')
A(f'ds_add_u32 v13, v14 offset:{L_CNT}')
A('s_mov_b64 exec, -1')
A(f's_cmp_ge_u32 {sW}, 2')
A('s_cbranch_scc1 L_nopub')
A.label('L_b3spin')
A(f'ds_read_b32 v14, v13 offset:{L_CNT}')
A('s_waitcnt lgkmcnt(0)')
A('v_cmp_ne_u32 vcc, 4, v14')
A('s_nop 1')
A('s_cbranch_vccz L_b3ok')
guard('L_b3ok')
A('s_branch L_b3spin')
A.label('L_b3ok')
A(f's_lshl_b32 {sT0}, {sW}, 2')
A(f'v_mov_b32 v12, {sT0}')
for w in range(4):
    A(f'ds_read_b32 v{16+w}, v12 offset:{L_ST+16*w}')
    A(f'ds_read_b32 v{20+w}, v12 offset:{L_ST+16*w+8}')
A(f's_lshl_b32 {sT0}, {sW}, 10')
A(f'v_add_u32 v13, {sT0}, v3')
for w in range(4): A(f'ds_read_b128 v[{32+4*w}:{35+4*w}], v13 offset:{L_OW+2048*w}')
A('s_waitcnt lgkmcnt(4)')
A('v_max_f32 v10, v16, v17')
A('v_max3_f32 v10, v10, v18, v19')
for w in range(4): A(f'v_sub_f32 v{16+w}, v{16+w}, v10')
for w in range(4): A(f'v_exp_f32 v{16+w}, v{16+w}')
A('v_mul_f32 v11, v16, v20')
for w in range(1,4): A(f'v_fmac_f32 v11, v{16+w}, v{20+w}')
A('s_waitcnt lgkmcnt(0)')
for e in range(4): A(f'v_mul_f32 v{24+e}, v{32+e}, v16')
for w in range(1,4):
    for e in range(4): A(f'v_fmac_f32 v{24+e}, v{32+4*w+e}, v{16+w}')
for e in range(4): A(f'v_min_u32 v{24+e}, 0xfffffffe, v{24+e}')
A('v_min_u32 v10, 0xfffffffe, v10')
A('v_min_u32 v11, 0xfffffffe, v11')
A(f's_lshl_b32 {sT0}, {sH}, 1')
A(f's_add_u32 {sT0}, {sT0}, {sW}')
A(f's_lshl_b32 {sT0}, {sT0}, 5')
A(f's_add_u32 {sT0}, {sT0}, {sS}')
A(f's_lshl_b32 {sT1}, {sT0}, 10')
A(f's_add_u32 {sT1}, {sT1}, {O1_OFF}')
A(f'buffer_store_dwordx4 v[24:27], v3, {sWS}, {sT1} offen sc1')
A(f's_lshl_b32 {sT1}, {sT0}, 3')
A(f's_add_u32 {sT1}, {sT1}, {S1_OFF}')
A('v_cmp_eq_u32 vcc, 0, v1')
A('v_cndmask_b32 v13, v8, v1, vcc')
A(f'buffer_store_dwordx2 v[10:11], v13, {sWS}, {sT1} offen sc1')
A.label('L_nopub')
stamp(6)
A(f's_cmp_eq_u32 {sROLE}, 0')
A('s_cbranch_scc1 L_end')
A('v_mov_b32 v13, 0')
A.label('L_b4spin')
A(f'ds_read_b32 v14, v13 offset:{L_FLAG}')
A('s_waitcnt lgkmcnt(0)')
A('v_cmp_ne_u32 vcc, 1, v14')
A('s_nop 1')
A('s_cbranch_vccz L_b4ok')
guard('L_b4ok')
A('s_sleep 1')
A('s_branch L_b4spin')
A.label('L_b4ok')
A(f's_cmp_eq_u32 {sROLE}, 2')
A('s_cbranch_scc1 L_ffn')
A(f's_cmp_eq_u32 {sROLE}, 3')
A('s_cbranch_scc1 L_fin')

A('v_lshlrev_b32 v9, 3, v7')
A('v_and_b32 v10, 15, v1')
A('v_lshlrev_b32 v10, 4, v10')
A('v_lshl_add_u32 v10, v7, 10, v10')
A(f's_lshl_b32 {sC0}, {sJ}, 8')
A(f's_add_u32 {sC0}, {sC0}, {S1_OFF}')
A(f's_lshl_b32 {sC1}, {sJ}, 15')
A(f's_lshl_b32 {sT0}, {sW}, 8')
A(f's_add_u32 {sC1}, {sC1}, {sT0}')
A(f's_add_u32 {sC1}, {sC1}, {O1_OFF}')
SR=16; OR_=32; WR=64
def wo_poll_issue():
    for i in range(8):
        A(f'buffer_load_dwordx2 v[{SR+2*i}:{SR+1+2*i}], v9, {sWS}, {sC0} offen offset:{32*i} sc1')
    A(f's_mov_b32 {sT0}, {sC1}')
    for i in range(8):
        A(f'buffer_load_dwordx4 v[{OR_+4*i}:{OR_+3+4*i}], v10, {sWS}, {sT0} offen sc1')
        if i<7: A(f's_add_u32 {sT0}, {sT0}, 4096')
wo_poll_issue()
A(f's_lshl_b32 {sT0}, {sW}, 13')
A(f'v_add_u32 v12, {sT0}, v3')
for i in range(8): A(f'ds_read_b128 v[{WR+4*i}:{WR+3+4*i}], v12 offset:{L_W+1024*i}')
A.label('L_wopoll')
A('s_waitcnt vmcnt(0)')
sentinel_check(range(16,64), 11, 'L_wore')
A('s_branch L_wogo')
A.label('L_wore')
guard('L_wogo')
A('s_sleep 1')
wo_poll_issue()
A('s_branch L_wopoll')
A.label('L_wogo')
stamp(8)
A(f'v_max_f32 v11, v{SR}, v{SR+2}')
for i in range(2,8,2): A(f'v_max3_f32 v11, v11, v{SR+2*i}, v{SR+2+2*i}')
allreduce('max',11,12,lo=False)
for i in range(8): A(f'v_sub_f32 v{SR+2*i}, v{SR+2*i}, v11')
for i in range(8): A(f'v_exp_f32 v{SR+2*i}, v{SR+2*i}')
A(f'v_mul_f32 v11, v{SR}, v{SR+1}')
for i in range(1,8): A(f'v_fmac_f32 v11, v{SR+2*i}, v{SR+1+2*i}')
allreduce('add',11,12,lo=False)
A('v_rcp_f32 v12, v11')
for e in range(4): A(f'v_mul_f32 v{96+e}, v{OR_+e}, v{SR}')
for i in range(1,8):
    for e in range(4): A(f'v_fmac_f32 v{96+e}, v{OR_+4*i+e}, v{SR+2*i}')
for e in range(4): allreduce('add',96+e,100+e,lo=False)
for e in range(4):
    fdiv(104+e,96+e,11,12,100+e)
    bf16round(104+e)
A('v_and_b32 v13, 15, v1')
A('v_lshlrev_b32 v13, 4, v13')
A(f's_lshl_b32 {sT0}, {sW}, 8')
A(f'v_add_u32 v13, {sT0}, v13')
A(f'ds_write_b128 v13, v[104:107] offset:{L_OV}')
A('v_lshrrev_b32 v13, 3, v1')
A('v_lshlrev_b32 v13, 2, v13')
A(f'v_add_u32 v13, {sT0}, v13')
A('s_waitcnt lgkmcnt(0)')
for i in range(8): A(f'ds_read_b32 v{32+2*i}, v13 offset:{L_OV+32*i}')
for k in range(8): A(f'v_mov_b32 v{16+k}, 0')
for i in range(8):
    for k in range(4): unpack(f'v{WR+4*i+k}', 96+2*k)
    A(f's_waitcnt lgkmcnt({7-i})')
    for k in range(4):
        A(f'v_pk_fma_f32 v[{16+2*k}:{17+2*k}], v[{96+2*k}:{97+2*k}], v[{32+2*i}:{33+2*i}], v[{16+2*k}:{17+2*k}] op_sel_hi:[1,0,1]')
for k in range(8):
    A(f'v_add_f32_dpp v{16+k}, v{16+k}, v{16+k} row_ror:8 row_mask:0xf bank_mask:0xf')
A('v_and_b32 v13, 7, v1')
A('v_lshlrev_b32 v13, 5, v13')
A('v_lshl_add_u32 v13, v7, 8, v13')
A(f's_lshl_b32 {sT0}, {sW}, 10')
A(f'v_add_u32 v13, {sT0}, v13')
A(f'ds_write_b128 v13, v[16:19] offset:{L_RED2}')
A(f'ds_write_b128 v13, v[20:23] offset:{L_RED2+16}')
A('s_waitcnt lgkmcnt(0)')
A('s_barrier')
A(f's_cmp_lg_u32 {sW}, 0')
A('s_cbranch_scc1 L_end')
A('v_lshlrev_b32 v13, 2, v1')
for k in range(16): A(f'ds_read_b32 v{16+k}, v13 offset:{L_RED2+256*k}')
A('s_waitcnt lgkmcnt(0)')
for st in (8,4,2,1):
    for k in range(st): A(f'v_add_f32 v{16+k}, v{16+k}, v{16+k+st}')
A('v_min_u32 v16, 0xfffffffe, v16')
A(f's_mul_i32 {sT1}, {sJ}, 1792')
A(f's_lshl_b32 {sT2}, {sN}, 8')
A(f's_add_u32 {sT1}, {sT1}, {sT2}')
A(f's_add_u32 {sT1}, {sT1}, {P2_OFF}')
A(f'buffer_store_dword v16, v13, {sWS}, {sT1} offen sc1')
stamp(9)
A('s_branch L_end')

A.label('L_ffn')
A('v_and_b32 v11, 31, v1')
A('v_cmp_gt_u32 vcc, 28, v11')
A('v_lshlrev_b32 v12, 3, v11')
A('v_cndmask_b32 v12, v8, v12, vcc')
A(f's_mul_i32 {sT0}, {sW}, 224')
A(f'buffer_load_dwordx2 v[4:5], v12, {sX}, {sT0} offen')
A('v_lshlrev_b32 v14, 4, v11')
A('v_lshrrev_b32 v12, 5, v1')
A('v_mul_u32_u24 v12, 1792, v12')
A('v_add_u32 v14, v14, v12')
A('v_cndmask_b32 v14, v8, v14, vcc')
A('v_and_b32 v9, 15, v1')
A('v_lshrrev_b32 v10, 2, v9')
A('v_and_b32 v9, 3, v9')
A('v_lshl_add_u32 v12, v7, 2, v10')
A('v_mul_u32_u24 v12, 896, v12')
A('v_lshl_add_u32 v12, v9, 3, v12')
A(f's_mul_i32 {sT0}, {sW}, 224')
A(f's_add_u32 {sT0}, {sT0}, {L_W+28672}')
A(f'v_add_u32 v12, {sT0}, v12')
for t in range(7): A(f'ds_read_b64_tr_b16 v[{48+2*t}:{49+2*t}], v12 offset:{32*t}')
A(f's_cmp_ge_u32 {sW}, 2')
A('s_cbranch_scc1 L_ffnogu')
A('v_lshl_add_u32 v12, v7, 3, v10')
A('v_lshlrev_b32 v12, 5, v12')
A('v_lshl_add_u32 v12, v9, 3, v12')
A(f's_mul_i32 {sT0}, {sW}, 14336')
A(f's_add_u32 {sT0}, {sT0}, {L_W}')
A(f'v_add_u32 v12, {sT0}, v12')
for ks in range(14):
    for u in range(2):
        A(f'ds_read_b64_tr_b16 v[{64+4*ks+2*u}:{65+4*ks+2*u}], v12 offset:{1024*ks+128*u}')
A.label('L_ffnogu')
stamp(7)
A(f's_mul_i32 {sC0}, {sW}, 448')
A(f's_add_u32 {sC0}, {sC0}, {P2_OFF}')
A.label('L_ffpoll')
A(f's_mov_b32 {sT0}, {sC0}')
for i in range(8):
    A(f'buffer_load_dwordx4 v[{16+4*i}:{19+4*i}], v14, {sWS}, {sT0} offen sc1')
    if i<7: A(f's_add_u32 {sT0}, {sT0}, 3584')
A('s_waitcnt vmcnt(0)')
sentinel_check(range(16,48), 9, 'L_ffre')
A('s_branch L_ffgo')
A.label('L_ffre')
guard('L_ffgo')
A('s_sleep 1')
A('s_branch L_ffpoll')
A.label('L_ffgo')
stamp(8)
for st in (16,8,4):
    for k in range(st): A(f'v_add_f32 v{16+k}, v{16+k}, v{16+k+st}')
unpack('v4',24); unpack('v5',26)
for e in range(4): allreduce('add',16+e,20+e,lo=False,x16=False)
for e in range(4):
    bf16round(16+e)
    A(f'v_add_f32 v{16+e}, v{16+e}, v{24+e}')
    bf16round(16+e)
A('v_add_f32 v9, v16, v17')
A('v_add_f32 v10, v18, v19')
A('v_add_f32 v9, v9, v10')
allreduce('add',9,10)
A(f'v_mul_f32 v9, {hex(f2u(1.0/224))}, v9')
A('v_mov_b32 v11, 0')
for e in range(4):
    A(f'v_sub_f32 v10, v{16+e}, v9')
    A('v_fmac_f32 v11, v10, v10')
A('v_and_b32 v12, 31, v1')
A('v_cmp_gt_u32 vcc, 28, v12')
A('v_cndmask_b32 v11, 0, v11, vcc')
allreduce('add',11,10)
A('v_mul_f32 v11, 0.5, v11')
A('v_mov_b32 v10, v9')
A(f's_lshl_b32 {sT0}, {sW}, 3')
A(f'v_mov_b32 v12, {sT0}')
A(f'ds_write_b64 v12, v[10:11] offset:{L_ST3}')
A('s_waitcnt lgkmcnt(0)')
A('s_barrier')
A('v_mov_b32 v12, 0')
A(f'ds_read_b128 v[20:23], v12 offset:{L_ST3}')
A(f'ds_read_b128 v[24:27], v12 offset:{L_ST3+16}')
A('s_waitcnt lgkmcnt(0)')
A('v_add_f32 v9, v20, v22')
A('v_add_f32 v10, v24, v26')
A('v_add_f32 v9, v9, v10')
A('v_mul_f32 v9, 0.25, v9')
A('v_add_f32 v11, v21, v23')
A('v_add_f32 v10, v25, v27')
A('v_add_f32 v11, v11, v10')
A('v_mov_b32 v13, 0')
for r in (20,22,24,26):
    A(f'v_sub_f32 v10, v{r}, v9')
    A('v_fmac_f32 v13, v10, v10')
A(f'v_mov_b32 v10, {hex(f2u(112.0))}')
A('v_fmac_f32 v11, v13, v10')
A(f'v_mul_f32 v11, {hex(f2u(1.0/448))}, v11')
layernorm_consts(9,11,10)
for e in range(4):
    A(f'v_sub_f32 v{20+e}, v{16+e}, v9')
    bf16round(20+e)
    fdiv(24+e,20+e,11,10,12)
A('v_cvt_pk_bf16_f32 v24, v24, v25')
A('v_cvt_pk_bf16_f32 v25, v26, v27')
A('v_and_b32 v12, 31, v1')
A('v_cmp_gt_u32 vcc, 28, v12')
A('v_lshlrev_b32 v12, 3, v12')
A(f's_mul_i32 {sT0}, {sW}, 224')
A(f'v_add_u32 v12, {sT0}, v12')
A('s_and_saveexec_b64 s[98:99], vcc')
A(f'ds_write_b64 v12, v[24:25] offset:{L_HN}')
A('s_mov_b64 exec, s[98:99]')
for k in range(28): A(f'v_mov_b32 v{16+k}, 0')
A('v_and_b32 v9, 15, v1')
A('v_cmp_eq_u32 vcc, 0, v9')
A('v_lshlrev_b32 v12, 4, v7')
A('s_waitcnt lgkmcnt(0)')
A('s_barrier')
A(f's_cmp_ge_u32 {sW}, 2')
A('s_cbranch_scc1 L_ffnomm')
for hb in range(2):
    A('s_and_saveexec_b64 s[98:99], vcc')
    for k in range(7): A(f'ds_read_b128 v[{16+4*k}:{19+4*k}], v12 offset:{L_HN+64*(7*hb+k)}')
    A('s_mov_b64 exec, s[98:99]')
    for k in range(7):
        ks=7*hb+k
        A(f's_waitcnt lgkmcnt({6-k})')
        cin='0' if ks==0 else 'v[44:47]'
        A(f'v_mfma_f32_16x16x32_bf16 v[44:47], v[{64+4*ks}:{67+4*ks}], v[{16+4*k}:{19+4*k}], {cin}')
for e in range(4): bf16round(44+e)
A(f's_lshl_b32 {sT0}, {sW}, 6')
A(f'v_add_u32 v13, {sT0}, v12')
A('s_and_saveexec_b64 s[98:99], vcc')
A(f'ds_write_b128 v13, v[44:47] offset:{L_GU}')
A('s_mov_b64 exec, s[98:99]')
A.label('L_ffnomm')
A('s_waitcnt lgkmcnt(0)')
A('s_barrier')
A(f'ds_read_b128 v[16:19], v12 offset:{L_GU}')
A(f'ds_read_b128 v[20:23], v12 offset:{L_GU+64}')
A(f'v_mov_b32 v28, {hex(f2u(0.044715))}')
A('s_waitcnt lgkmcnt(0)')
for e in range(4): A(f'v_mul_f32 v{24+e}, v{16+e}, v{16+e}')
for e in range(4): A(f'v_fma_f32 v{24+e}, v{24+e}, v28, 1.0')
for e in range(4): A(f'v_mul_f32 v{24+e}, v{24+e}, v{16+e}')
for e in range(4): A(f'v_mul_f32 v{24+e}, {hex(f2u(2.0*0.7978845608028654*LOG2E))}, v{24+e}')
for e in range(4): A(f'v_exp_f32 v{24+e}, v{24+e}')
for e in range(4): A(f'v_add_f32 v{24+e}, 1.0, v{24+e}')
for e in range(4): A(f'v_rcp_f32 v{24+e}, v{24+e}')
for e in range(4): A(f'v_fma_f32 v{24+e}, v{24+e}, -2.0, 2.0')
for e in range(4): A(f'v_mul_f32 v{24+e}, v{24+e}, v{16+e}')
for e in range(4): A(f'v_mul_f32 v{24+e}, 0.5, v{24+e}')
for e in range(4): bf16round(24+e)
for e in range(4): A(f'v_mul_f32 v{24+e}, v{24+e}, v{20+e}')
A('v_cvt_pk_bf16_f32 v24, v24, v25')
A('v_cvt_pk_bf16_f32 v25, v26, v27')
A('v_cndmask_b32 v24, 0, v24, vcc')
A('v_cndmask_b32 v25, 0, v25, vcc')
for t in range(7):
    A(f'v_mfma_f32_16x16x16_bf16 v[{64+4*t}:{67+4*t}], v[{48+2*t}:{49+2*t}], v[24:25], 0')
A('v_cndmask_b32 v13, v8, v12, vcc')
A(f's_mul_i32 {sT1}, {sF}, 1792')
A(f's_mul_i32 {sT0}, {sW}, 448')
A(f's_add_u32 {sT1}, {sT1}, {sT0}')
A(f's_add_u32 {sT1}, {sT1}, {P3_OFF}')
for t in range(7):
    for e in range(4): A(f'v_min_u32 v{64+4*t+e}, 0xfffffffe, v{64+4*t+e}')
    A(f'buffer_store_dwordx4 v[{64+4*t}:{67+4*t}], v13, {sWS}, {sT1} offen offset:{64*t} sc1')
stamp(9)
A('s_branch L_end')

A.label('L_fin')
A(f's_cmp_lg_u32 {sW}, 0')
A('s_cbranch_scc1 L_end')
A(f's_sub_u32 {sN}, {sS}, 14')
A(f's_mul_i32 {sN}, {sN}, 7')
A(f's_add_u32 {sN}, {sN}, {sH}')
A('v_and_b32 v11, 7, v1')
A('v_lshlrev_b32 v12, 3, v11')
A(f's_lshl_b32 {sT0}, {sN}, 6')
A(f'buffer_load_dwordx2 v[48:49], v12, {sX}, {sT0} offen')
A('v_lshlrev_b32 v14, 4, v11')
A('v_lshrrev_b32 v10, 3, v1')
A('v_mul_u32_u24 v10, 1792, v10')
A('v_add_u32 v14, v14, v10')
A(f's_lshl_b32 {sC0}, {sN}, 7')
A(f's_add_u32 {sC1}, {sC0}, {P3_OFF}')
A(f's_add_u32 {sC0}, {sC0}, {P2_OFF}')
A(f's_add_u32 {sT1}, {sC0}, 14336')
def red8(v,t):
    A(f'v_add_f32_dpp v{v}, v{v}, v{v} row_ror:8 row_mask:0xf bank_mask:0xf')
    allreduce('add',v,t,lo=False)
A.label('L_f2poll')
A(f'buffer_load_dwordx4 v[16:19], v14, {sWS}, {sC0} offen sc1')
A(f'buffer_load_dwordx4 v[20:23], v14, {sWS}, {sT1} offen sc1')
A('s_waitcnt vmcnt(0)')
sentinel_check(range(16,24), 9, 'L_f2re')
A('s_branch L_f2go')
A.label('L_f2re')
guard('L_f2go')
A('s_sleep 2')
A('s_branch L_f2poll')
A.label('L_f2go')
stamp(7)
unpack('v48',50); unpack('v49',52)
for k in range(4): A(f'v_add_f32 v{16+k}, v{16+k}, v{20+k}')
for e in range(4): red8(16+e,20+e)
for e in range(4):
    bf16round(16+e)
    A(f'v_add_f32 v{16+e}, v{16+e}, v{50+e}')
    bf16round(16+e)
A.label('L_f3poll')
A(f's_mov_b32 {sT0}, {sC1}')
for i in range(14):
    A(f'buffer_load_dwordx4 v[{64+4*i}:{67+4*i}], v14, {sWS}, {sT0} offen sc1')
    if i<13: A(f's_add_u32 {sT0}, {sT0}, 14336')
A('s_waitcnt vmcnt(0)')
sentinel_check(range(64,120), 9, 'L_f3re')
A('s_branch L_f3go')
A.label('L_f3re')
guard('L_f3go')
A('s_branch L_f3poll')
A.label('L_f3go')
stamp(8)
for i in range(7):
    for e in range(4): A(f'v_add_f32 v{64+4*i+e}, v{64+4*i+e}, v{92+4*i+e}')
for i in range(3):
    for e in range(4): A(f'v_add_f32 v{64+4*i+e}, v{64+4*i+e}, v{80+4*i+e}')
for e in range(4): A(f'v_add_f32 v{64+e}, v{64+e}, v{68+e}')
for e in range(4): A(f'v_add_f32 v{72+e}, v{72+e}, v{76+e}')
for e in range(4): A(f'v_add_f32 v{64+e}, v{64+e}, v{72+e}')
for e in range(4): red8(64+e,20+e)
for e in range(4):
    bf16round(64+e)
    A(f'v_add_f32 v{64+e}, v{64+e}, v{16+e}')
A('v_cvt_pk_bf16_f32 v64, v64, v65')
A('v_cvt_pk_bf16_f32 v65, v66, v67')
A('v_cmp_gt_u32 vcc, 8, v1')
A('v_cndmask_b32 v12, v8, v12, vcc')
A(f's_lshl_b32 {sT0}, {sN}, 6')
A(f'buffer_store_dwordx2 v[64:65], v12, {sOUT}, {sT0} offen')
A('s_branch L_end')

A.label('L_helper')
A('v_mov_b32 v12, 0')
A('v_mov_b32 v13, 0')
A(f'ds_write_b64 v12, v[12:13] offset:{L_CNT}')
A('s_waitcnt lgkmcnt(0)')
A('s_barrier')
A(f's_cmp_eq_u32 {sROLE}, 0')
A('s_cbranch_scc1 L_end')
A(f's_cmp_lg_u32 {sROLE}, 1')
A('s_cbranch_scc1 L_hnowo')
A('v_lshrrev_b32 v10, 3, v1')
A('v_mul_u32_u24 v10, 896, v10')
A('v_and_b32 v11, 7, v1')
A('v_lshl_add_u32 v10, v11, 4, v10')
A(f's_lshl_b32 {sT0}, {sJ}, 8')
A(f's_mul_i32 {sT0}, {sT0}, 896')
A(f's_lshl_b32 {sT1}, {sN}, 7')
A(f's_add_u32 {sT0}, {sT0}, {sT1}')
for i in range(32):
    A(f'buffer_load_dwordx4 a[{4*i}:{4*i+3}], v10, {sWO}, {sT0} offen nt')
    if i<31: A(f's_add_u32 {sT0}, {sT0}, {8*896}')
A.label('L_hnowo')
A(f's_cmp_lg_u32 {sROLE}, 2')
A('s_cbranch_scc1 L_hnoff0')
A('v_lshrrev_b32 v10, 1, v1')
A('v_mul_u32_u24 v10, 3584, v10')
A('v_and_b32 v11, 1, v1')
A('v_lshl_add_u32 v10, v11, 4, v10')
A(f's_lshl_b32 {sT0}, {sF}, 5')
for i in range(14):
    A(f'buffer_load_dwordx4 a[{4*i}:{4*i+3}], v10, {sWG}, {sT0} offen nt')
    A(f'buffer_load_dwordx4 a[{56+4*i}:{59+4*i}], v10, {sWU}, {sT0} offen nt')
    if i<13: A(f's_add_u32 {sT0}, {sT0}, {32*3584}')
A(f's_mul_i32 {sC1}, {sF}, 14336')
for i in range(14):
    if i in (4,8,12): A(f's_add_u32 {sC1}, {sC1}, 4096')
    dst = f'a[{112+4*i}:{115+4*i}]' if i<4 else f'v[{80+4*(i-4)}:{83+4*(i-4)}]'
    A(f'buffer_load_dwordx4 {dst}, v3, {sWD}, {sC1} offen offset:{1024*(i%4)} nt')
A.label('L_hnoff0')
A('v_mov_b32 v13, 0')
A.label('L_hcnt')
A(f'ds_read_b32 v14, v13 offset:{L_CNT}')
A('s_waitcnt lgkmcnt(0)')
A('v_cmp_ne_u32 vcc, 4, v14')
A('s_nop 1')
A('s_cbranch_vccz L_hcntok')
guard('L_hcntok')
A('s_sleep 1')
A('s_branch L_hcnt')
A.label('L_hcntok')
A(f's_cmp_lg_u32 {sROLE}, 1')
A('s_cbranch_scc1 L_hnowo2')
A('s_waitcnt vmcnt(0)')
A(f'v_add_u32 v9, {L_W}, v3')
for i in range(32):
    A(f'ds_write_b128 v9, a[{4*i}:{4*i+3}] offset:{1024*i}')
A.label('L_hnowo2')
A(f's_cmp_lg_u32 {sROLE}, 2')
A('s_cbranch_scc1 L_hnoffn')
A('s_waitcnt vmcnt(0)')
A(f'v_add_u32 v9, {L_W}, v3')
for i in range(32):
    A(f'ds_write_b128 v9, a[{4*i}:{4*i+3}] offset:{1024*i}')
for i in range(10):
    A(f'ds_write_b128 v9, v[{80+4*i}:{83+4*i}] offset:{1024*(32+i)}')
A.label('L_hnoffn')
stamp(5)
A('v_mov_b32 v12, 0')
A('v_mov_b32 v13, 1')
A('s_waitcnt lgkmcnt(0)')
A(f'ds_write_b32 v12, v13 offset:{L_FLAG}')
A('s_waitcnt lgkmcnt(0)')
A.label('L_end')
if STAMP:
    stamp(10)
    A('s_cmp_ge_u32 s2, 256')
    A('s_cbranch_scc1 L_end2')
    A('v_mov_b32 v5, 0')
    A('s_mul_i32 s3, s2, 5')
    A(f's_add_u32 s3, s3, {sW}')
    A('s_lshl_b32 s3, s3, 6')
    A(f's_add_u32 s3, s3, {STAMP_OFF}')
    A('s_mov_b64 exec, 1')
    for i in range(16):
        A(f'v_mov_b32 v6, s{48+i}')
        A(f'buffer_store_dword v6, v5, {sWS}, s3 offen offset:{4*i}')
    A.label('L_end2')
A('s_endpgm')


MAIN=A
A=Asm()
A.raw('qproj_kernel:')
A('s_cmp_ge_u32 s2, 256')
A('s_cbranch_scc1 Q_end')
A('s_load_dwordx16 s[48:63], s[0:1], 0')
A('s_load_dwordx8 s[64:71], s[0:1], 64')
A('v_and_b32 v1, 63, v0')
A(f's_and_b32 {sH}, s2, 7')
A(f's_lshr_b32 {sS}, s2, 3')
A(f's_mov_b32 {sOOB}, {hex(OOB)}')
A('v_lshlrev_b32 v3, 4, v1')
A(f'v_mov_b32 v8, {sOOB}')
A('v_lshrrev_b32 v9, 1, v1')
A('v_lshlrev_b32 v9, 13, v9')
A('v_and_b32 v10, 1, v1')
A('v_lshl_add_u32 v9, v10, 4, v9')
A(f's_lshl_b32 {sC0}, {sH}, 10')
A(f's_lshl_b32 {sT1}, {sS}, 5')
A(f's_add_u32 {sC0}, {sC0}, {sT1}')
A('s_waitcnt lgkmcnt(0)')
srd(12,70,WS_SIZE); srd(20,48,896); srd(24,54,3670016)
A(f'buffer_load_dwordx4 v[60:63], v3, {sX}, 0 offen')
A(f's_mov_b32 {sT0}, {sC0}')
for i in range(14):
    A(f'buffer_load_dwordx4 v[{64+4*i}:{67+4*i}], v9, {sWQ}, {sT0} offen nt')
    if i<13: A(f's_add_u32 {sT0}, {sT0}, 262144')
A(f's_mov_b32 {sROLE}, 0')
A(f's_cmp_lt_u32 {sS}, 14')
A(f's_cselect_b32 {sROLE}, 1, {sROLE}')
A(f's_sub_u32 {sT0}, {sS}, 16')
A(f's_cmp_lt_u32 {sT0}, 14')
A(f's_cselect_b32 {sROLE}, 2, {sROLE}')
A(f's_cmp_ge_u32 {sS}, 7')
A(f's_cselect_b32 {sT0}, 1, 0')
A(f's_lshl_b32 {sJ}, {sH}, 1')
A(f's_add_u32 {sJ}, {sJ}, {sT0}')
A(f's_mul_i32 {sT0}, {sT0}, 7')
A(f's_sub_u32 {sN}, {sS}, {sT0}')
A(f's_mul_i32 {sF}, {sH}, 14')
A(f's_add_u32 {sF}, {sF}, {sS}')
A(f's_sub_u32 {sF}, {sF}, 16')
for i in range(4): A(f'v_mov_b32 v{12+i}, -1')
A(f's_lshl_b32 {sT0}, {sH}, 6')
A(f's_add_u32 {sT0}, {sT0}, {sS}')
A(f's_lshl_b32 {sT1}, {sT0}, 10')
A(f's_add_u32 {sT1}, {sT1}, {O1_OFF}')
A(f's_add_u32 {sT2}, {sT1}, 32768')
A(f'buffer_store_dwordx4 v[12:15], v3, {sWS}, {sT1} offen')
A(f'buffer_store_dwordx4 v[12:15], v3, {sWS}, {sT2} offen')
A(f's_lshl_b32 {sT1}, {sT0}, 3')
A(f's_add_u32 {sT1}, {sT1}, {S1_OFF}')
A('v_lshlrev_b32 v10, 8, v1')
A('v_cmp_gt_u32 vcc, 2, v1')
A('v_cndmask_b32 v10, v8, v10, vcc')
A(f'buffer_store_dwordx2 v[12:13], v10, {sWS}, {sT1} offen')
A(f's_cmp_lg_u32 {sROLE}, 1')
A('s_cbranch_scc1 Q_noclr2')
A(f's_mul_i32 {sT1}, {sJ}, 1792')
A(f's_lshl_b32 {sT2}, {sN}, 8')
A(f's_add_u32 {sT1}, {sT1}, {sT2}')
A(f's_add_u32 {sT1}, {sT1}, {P2_OFF}')
A('v_cmp_gt_u32 vcc, 16, v1')
A('v_cndmask_b32 v10, v8, v3, vcc')
A(f'buffer_store_dwordx4 v[12:15], v10, {sWS}, {sT1} offen')
A.label('Q_noclr2')
A(f's_cmp_lg_u32 {sROLE}, 2')
A('s_cbranch_scc1 Q_noclear')
A(f's_mul_i32 {sT1}, {sF}, 1792')
A(f's_add_u32 {sT1}, {sT1}, {P3_OFF}')
A('v_cmp_gt_u32 vcc, 48, v1')
A('v_cndmask_b32 v10, v8, v3, vcc')
A(f'buffer_store_dwordx4 v[12:15], v3, {sWS}, {sT1} offen')
A(f'buffer_store_dwordx4 v[12:15], v10, {sWS}, {sT1} offen offset:1024')
A.label('Q_noclear')
A('s_waitcnt vmcnt(17)')
for k in range(4): unpack(f'v{60+k}', 16+2*k)
A('v_add_f32 v9, v16, v17')
for k in range(2,8): A(f'v_add_f32 v9, v9, v{16+k}')
allreduce('add',9,10)
A(f'v_mul_f32 v9, {hex(f2u(1.0/448))}, v9')
A('v_mov_b32 v11, 0')
for k in range(8):
    A(f'v_sub_f32 v10, v{16+k}, v9')
    A(f'v_fmac_f32 v11, v10, v10')
A('v_cmp_gt_u32 vcc, 56, v1')
A('v_cndmask_b32 v11, 0, v11, vcc')
allreduce('add',11,10)
A(f'v_mul_f32 v11, {hex(f2u(1.0/448))}, v11')
layernorm_consts(9,11,10)
for k in range(8):
    A(f'v_sub_f32 v{16+k}, v{16+k}, v9')
    bf16round(16+k)
    fdiv(24+k,16+k,11,10,12)
    bf16round(24+k)
A('v_lshlrev_b32 v12, 5, v1')
A('v_cmp_gt_u32 vcc, 56, v1')
A('s_and_saveexec_b64 s[98:99], vcc')
A(f'ds_write_b128 v12, v[24:27] offset:0')
A(f'ds_write_b128 v12, v[28:31] offset:16')
A('s_mov_b64 exec, s[98:99]')
A('v_lshrrev_b32 v12, 1, v1')
A('v_lshlrev_b32 v12, 2, v12')
A('s_waitcnt lgkmcnt(0)')
for i in range(14): A(f'ds_read_b32 v{32+2*i}, v12 offset:{128*i}')
for k in range(8): A(f'v_mov_b32 v{16+k}, 0')
A('s_waitcnt lgkmcnt(0)')
for i in range(14):
    A(f's_waitcnt vmcnt({13-i+3})')
    fma8(16, 64+4*i, 32+2*i, 24)
for m in ('quad_perm:[2,3,0,1]','row_ror:4','row_ror:8'):
    for k in range(8):
        A(f'v_add_f32_dpp v{16+k}, v{16+k}, v{16+k} {m} row_mask:0xf bank_mask:0xf')
for k in range(8): allreduce('add',16+k,24+k,lo=False)
for k in range(4): A(f'v_cvt_pk_bf16_f32 v{16+k}, v{16+2*k}, v{17+2*k}')
A('v_cmp_gt_u32 vcc, 2, v1')
A('v_cndmask_b32 v12, v8, v3, vcc')
A(f's_add_u32 {sT0}, {sC0}, {Q_OFF}')
A(f'buffer_store_dwordx4 v[16:19], v12, {sWS}, {sT0} offen')
A.label('Q_end')
A('s_endpgm')
K1=A
A=MAIN
hdr=open('cdna_kernels/'+NAME+'.s.ref').read().split('; @launch')[0]
out=hdr+f'; @launch kernel=qproj_kernel grid=(256,1,1) block=(64,1,1) lds=2048\n; @launch kernel={NAME}_kernel grid=(256,1,1) block=(320,1,1) lds={LDS_SIZE}\n'
out+='.amdgcn_target "amdgcn-amd-amdhsa--gfx950"\n.text\n'
out+=f'.globl {NAME}_kernel\n.p2align 8\n.type {NAME}_kernel,@function\n'
out+=A.text()
out+='.globl qproj_kernel\n.p2align 8\n.type qproj_kernel,@function\n'+K1.text()
out+=f'''.section .rodata,"a"
.p2align 6
.amdhsa_kernel {NAME}_kernel
  .amdhsa_next_free_vgpr 256
  .amdhsa_next_free_sgpr 102
  .amdhsa_accum_offset 128
  .amdhsa_group_segment_fixed_size 0
  .amdhsa_kernarg_size 96
  .amdhsa_user_sgpr_count 2
  .amdhsa_user_sgpr_kernarg_segment_ptr 1
  .amdhsa_system_sgpr_workgroup_id_x 1
.end_amdhsa_kernel
.p2align 6
.amdhsa_kernel qproj_kernel
  .amdhsa_next_free_vgpr 128
  .amdhsa_next_free_sgpr 102
  .amdhsa_accum_offset 128
  .amdhsa_group_segment_fixed_size 0
  .amdhsa_kernarg_size 96
  .amdhsa_user_sgpr_count 2
  .amdhsa_user_sgpr_kernarg_segment_ptr 1
  .amdhsa_system_sgpr_workgroup_id_x 1
.end_amdhsa_kernel
'''
open(sys.argv[1],'w').write(out)
print('lines',len(A.lines))
```

```python
import sys, os, struct
from asmlib import Asm

NAME='sequential_preLN__gqa_block_cached__geglu_ffn__decode'
D = int(sys.argv[2]) if len(sys.argv)>2 else 12
STAMP=int(os.environ.get('STAMP','0'))
SPIN=100000

Q_OFF=0x0; S1_OFF=0x2000; O1_OFF=0x4000; P2_OFF=0x84000; P3_OFF=0x8C000; WS_SIZE=0xA4800
STAMP_OFF=0x100000
if STAMP: WS_SIZE=0x200000
OOB=0x80000000
L_XN=0; L_Q=2048; L_P=4096; L_OW=6144; L_ST=14336; L_OV=14400; L_RED2=15424; L_ST3=19520; L_HN=19584
L_CNT=19552; L_FLAG=19556; L_RED3=21376; L_RED4=25472; L_W=32768; L_V=32768; LDS_SIZE=163840
LOG2E=1.4426950408889634
def f2u(x): return struct.unpack('<I',struct.pack('<f',x))[0]

A=Asm()
sK='s[4:7]'; sV='s[8:11]'; sWS='s[12:15]'; sDB='s[16:19]'; sX='s[20:23]'; sWQ='s[24:27]'; sWO='s[28:31]'
sWG='s[32:35]'; sWU='s[36:39]'; sWD='s[40:43]'; sOUT='s[44:47]'
sH='s72'; sS='s73'; sW='s74'; sT0='s75'; sT1='s76'; sT2='s77'; sT3='s78'; sKB='s79'; sVB='s80'; sJ='s81'; sN='s82'; sF='s83'
sOOB='s84'; sC0='s85'; sC1='s86'; sROLE='s87'; sC3='s88'
sA0=90

def srd(base, p, size):
    A(f's_mov_b32 s{base}, s{p}')
    A(f's_and_b32 s{base+1}, s{p+1}, 0xffff')
    A(f's_mov_b32 s{base+2}, {size}')
    A(f's_mov_b32 s{base+3}, 0x00020000')
def stamp(i):
    if not STAMP: return
    A('s_memrealtime s[100:101]')
    A('s_waitcnt lgkmcnt(0)')
    A(f's_mov_b32 s{48+i}, s100')
def guard(go):
    A('s_add_u32 s89, s89, 1')
    A(f's_cmp_gt_u32 s89, {SPIN}')
    A(f's_cbranch_scc1 {go}')
def allreduce(op, v, t, lo=True, x16=True, x32=True):
    ins = 'v_add_f32' if op=='add' else 'v_max_f32'
    if lo:
        for m in ('quad_perm:[1,0,3,2]','quad_perm:[2,3,0,1]','row_half_mirror','row_mirror'):
            A(f'{ins}_dpp v{v}, v{v}, v{v} {m} row_mask:0xf bank_mask:0xf')
    if x16:
        A(f'v_mov_b32 v{t}, v{v}'); A(f'v_permlane16_swap_b32 v{v}, v{t}'); A(f'{ins} v{v}, v{v}, v{t}')
    if x32:
        A(f'v_mov_b32 v{t}, v{v}'); A(f'v_permlane32_swap_b32 v{v}, v{t}'); A(f'{ins} v{v}, v{v}, v{t}')
def bf16round(v):
    A(f'v_cvt_pk_bf16_f32 v{v}, v{v}, v{v}')
    A(f'v_and_b32 v{v}, 0xffff0000, v{v}')
def unpack(src, dst):
    A(f'v_lshlrev_b32 v{dst}, 16, {src}')
    A(f'v_and_b32 v{dst+1}, 0xffff0000, {src}')
def fdiv(d, num, den, r, t):
    A(f'v_mul_f32 v{d}, v{num}, v{r}')
    A(f'v_fma_f32 v{t}, -v{d}, v{den}, v{num}')
    A(f'v_fma_f32 v{d}, v{t}, v{r}, v{d}')
def sentinel_check(regs, t, fail_label):
    regs=list(regs)
    A(f'v_max_u32 v{t}, v{regs[0]}, v{regs[1]}')
    i=2
    while i<len(regs):
        if i+1<len(regs):
            A(f'v_max3_u32 v{t}, v{t}, v{regs[i]}, v{regs[i+1]}'); i+=2
        else:
            A(f'v_max_u32 v{t}, v{t}, v{regs[i]}'); i+=1
    A(f'v_cmp_eq_u32 vcc, -1, v{t}')
    A('s_nop 1')
    A(f's_cbranch_vccnz {fail_label}')
def layernorm_consts(mean, var, t0):
    bf16round(mean); bf16round(var)
    A(f'v_add_f32 v{var}, {hex(f2u(1e-5))}, v{var}')
    bf16round(var)
    A(f'v_sqrt_f32 v{var}, v{var}')
    bf16round(var)
    A(f'v_rcp_f32 v{t0}, v{var}')
def fma8(acc, raw, mul, tmp):
    for k in range(4): unpack(f'v{raw+k}', tmp+2*k)
    for k in range(4):
        A(f'v_pk_fma_f32 v[{acc+2*k}:{acc+2*k+1}], v[{tmp+2*k}:{tmp+2*k+1}], v[{mul}:{mul+1}], v[{acc+2*k}:{acc+2*k+1}] op_sel_hi:[1,0,1]')

A.raw(f'{NAME}_kernel:')
A('s_cmp_ge_u32 s2, 256')
A('s_cbranch_scc1 L_end')
A('s_load_dwordx16 s[48:63], s[0:1], 0')
A('s_load_dwordx8 s[64:71], s[0:1], 64')
A('v_and_b32 v1, 63, v0')
A('v_lshrrev_b32 v6, 6, v0')
A(f'v_readfirstlane_b32 {sW}, v6')
A(f's_and_b32 {sH}, s2, 7')
A(f's_lshr_b32 {sS}, s2, 3')
A(f's_mov_b32 {sOOB}, {hex(OOB)}')
A('s_mov_b32 s89, 0')
A('v_and_b32 v6, 15, v1')
A('v_lshrrev_b32 v7, 4, v1')
A('v_lshlrev_b32 v2, 9, v6')
A('v_lshl_add_u32 v2, v7, 4, v2')
A('v_lshlrev_b32 v3, 4, v1')
A(f'v_mov_b32 v8, {sOOB}')
A('s_waitcnt lgkmcnt(0)')
srd(4,50,33554432); srd(8,52,33554432); srd(12,70,WS_SIZE); srd(16,68,256); srd(20,48,896)
srd(24,54,3670016); srd(28,56,3670016); srd(32,60,1605632); srd(36,62,1605632); srd(40,64,1605632); srd(44,66,896)
if STAMP:
    for i in range(1,16): A(f's_mov_b32 s{48+i}, 0')
stamp(0)
A(f's_mov_b32 {sROLE}, 0')
A(f's_cmp_lt_u32 {sS}, 14')
A(f's_cselect_b32 {sROLE}, 1, {sROLE}')
A(f's_sub_u32 {sT0}, {sS}, 16')
A(f's_cmp_lt_u32 {sT0}, 7')
A(f's_cselect_b32 {sROLE}, 2, {sROLE}')
A(f's_lshl_b32 {sT0}, {sS}, 3')
A(f's_add_u32 {sT0}, {sT0}, {sH}')
A(f's_sub_u32 {sT0}, {sT0}, 112')
A(f's_cmp_lt_u32 {sT0}, 7')
A(f's_cselect_b32 {sROLE}, 3, {sROLE}')
A(f's_cmp_ge_u32 {sS}, 7')
A(f's_cselect_b32 {sT0}, 1, 0')
A(f's_lshl_b32 {sJ}, {sH}, 1')
A(f's_add_u32 {sJ}, {sJ}, {sT0}')
A(f's_mul_i32 {sT0}, {sT0}, 7')
A(f's_sub_u32 {sN}, {sS}, {sT0}')
A(f's_mul_i32 {sF}, {sH}, 7')
A(f's_add_u32 {sF}, {sF}, {sS}')
A(f's_sub_u32 {sF}, {sF}, 16')
A(f's_cmp_eq_u32 {sW}, 4')
A('s_cbranch_scc1 L_helper')

A(f's_lshl_b32 {sKB}, {sH}, 22')
A(f's_lshl_b32 {sT0}, {sS}, 17')
A(f's_add_u32 {sKB}, {sKB}, {sT0}')
A(f's_lshl_b32 {sT0}, {sW}, 15')
A(f's_add_u32 {sKB}, {sKB}, {sT0}')
A(f's_mov_b32 {sVB}, {sKB}')
def kload(n):
    blk,c=divmod(n,8)
    if c==0 and blk>0: A(f's_add_u32 {sKB}, {sKB}, 8192')
    A(f'buffer_load_dwordx4 a[{4*n}:{4*n+3}], v2, {sK}, {sKB} offen offset:{c*64} nt')
def pace(): A(f's_waitcnt vmcnt({D-1})')
cnt=0
for n in range(8):
    kload(n); cnt+=1
A('v_lshrrev_b32 v9, 5, v1')
A('v_and_b32 v10, 31, v1')
for m4 in range(4):
    A(f'v_add_u32 v11, {2*m4}, v9')
    A('v_lshlrev_b32 v11, 1, v11')
    A('v_xor_b32 v11, v11, v10')
    A('v_lshlrev_b32 v11, 4, v11')
    A(f'v_lshl_add_u32 v{120+m4}, v9, 9, v11')
A(f's_lshl_b32 {sT3}, {sW}, 15')
A(f's_add_u32 {sT3}, {sT3}, {L_V}')
def vload(n):
    A(f's_mov_b32 m0, {sT3}')
    A(f's_add_u32 {sT3}, {sT3}, 1024')
    A(f'buffer_load_dwordx4 v{120+n%4}, {sV}, {sVB} offen nt lds')
    A(f's_add_u32 {sVB}, {sVB}, 1024')
for n in range(8,32):
    if cnt>=D: pace()
    kload(n); cnt+=1
for n in range(32):
    pace(); vload(n)
for k in range(32): A(f'v_mov_b32 v{32+k}, 0')
A('v_and_b32 v9, 15, v1')
A('v_lshrrev_b32 v10, 2, v9')
A('v_lshl_add_u32 v10, v7, 2, v10')
A('v_and_b32 v11, 7, v10')
A('v_and_b32 v9, 3, v9')
A('v_lshlrev_b32 v10, 9, v10')
A('v_lshl_add_u32 v10, v9, 3, v10')
A(f's_lshl_b32 {sT0}, {sW}, 15')
A(f's_add_u32 {sT0}, {sT0}, {L_V}')
A(f'v_add_u32 v10, {sT0}, v10')
for b in range(8):
    A(f'v_xor_b32 v9, {b}, v11')
    A(f'v_lshl_add_u32 v{112+b}, v9, 5, v10')
A('v_and_b32 v6, 15, v1')
A('v_cmp_gt_u32 vcc, 2, v6')
stamp(1)
A('s_barrier')
stamp(2)
A('s_and_saveexec_b64 s[98:99], vcc')
for c in range(8): A(f'ds_read_b128 v[{32+4*c}:{35+4*c}], v2 offset:{L_Q+64*c}')
A('s_mov_b64 exec, s[98:99]')
A('s_waitcnt vmcnt(32) lgkmcnt(0)')
stamp(3)
for blk in range(4):
    for c in range(8):
        n=blk*8+c
        cin = '0' if c==0 else f'v[{16+4*blk}:{19+4*blk}]'
        A(f'v_mfma_f32_16x16x32_bf16 v[{16+4*blk}:{19+4*blk}], a[{4*n}:{4*n+3}], v[{32+4*c}:{35+4*c}], {cin}')
for k in range(0,16,2):
    A(f'v_cvt_pk_bf16_f32 v9, v{16+k}, v{17+k}')
    A(f'v_lshlrev_b32 v{16+k}, 16, v9')
    A(f'v_and_b32 v{17+k}, 0xffff0000, v9')
for k in range(16): A(f'v_mul_f32 v{16+k}, {hex(f2u(0.0625*LOG2E))}, v{16+k}')
A('v_max_f32 v9, v16, v17')
for k in range(2,16,2): A(f'v_max3_f32 v9, v9, v{16+k}, v{17+k}')
allreduce('max',9,10,lo=False)
for k in range(16): A(f'v_sub_f32 v{16+k}, v{16+k}, v9')
for k in range(16): A(f'v_exp_f32 v{16+k}, v{16+k}')
for k in range(8): A(f'v_cvt_pk_bf16_f32 v{104+k}, v{16+2*k}, v{17+2*k}')
stamp(4)
ACC=40
def pv_half(kb, first):
    def rd(t, buf):
        a,b=divmod(t,8)
        for u in range(2):
            A(f'ds_read_b64_tr_b16 v[{buf+2*u}:{buf+2*u+1}], v{112+b} offset:{a*256+kb*16384+u*8192}')
    rd(0,32)
    for t in range(16):
        buf=32+4*(t%2)
        if t<15: rd(t+1, 32+4*((t+1)%2))
        A(f's_waitcnt lgkmcnt({2 if t<15 else 0})')
        cin = '0' if first else f'v[{ACC+4*t}:{ACC+4*t+3}]'
        A(f'v_mfma_f32_16x16x32_bf16 v[{ACC+4*t}:{ACC+4*t+3}], v[{buf}:{buf+3}], v[{104+4*kb}:{107+4*kb}], {cin}')
A('v_lshlrev_b32 v11, 16, v104')
A('v_and_b32 v12, 0xffff0000, v104')
A('v_add_f32 v11, v11, v12')
for k in range(1,8):
    A(f'v_lshlrev_b32 v12, 16, v{104+k}')
    A('v_add_f32 v11, v11, v12')
    A(f'v_and_b32 v12, 0xffff0000, v{104+k}')
    A('v_add_f32 v11, v11, v12')
allreduce('add',11,10,lo=False)
A('v_and_b32 v12, 15, v1')
A('v_lshlrev_b32 v12, 2, v12')
A(f's_lshl_b32 {sT1}, {sW}, 4')
A(f'v_add_u32 v12, {sT1}, v12')
A('s_and_saveexec_b64 s[98:99], vcc')
A(f'ds_write_b32 v12, v9 offset:{L_ST}')
A(f'ds_write_b32 v12, v11 offset:{L_ST+8}')
A('s_mov_b64 exec, s[98:99]')
A('s_waitcnt vmcnt(16) lgkmcnt(0)')
pv_half(0, True)
A('s_waitcnt vmcnt(0)')
pv_half(1, False)
stamp(5)
A('v_and_b32 v12, 15, v1')
A('v_lshlrev_b32 v12, 10, v12')
A('v_lshl_add_u32 v12, v7, 4, v12')
A(f's_lshl_b32 {sT0}, {sW}, 11')
A(f'v_add_u32 v12, {sT0}, v12')
A('s_and_saveexec_b64 s[98:99], vcc')
for t in range(16):
    A(f'ds_write_b128 v12, v[{ACC+4*t}:{ACC+4*t+3}] offset:{L_OW+64*t}')
A('s_mov_b64 exec, s[98:99]')
A('v_mov_b32 v13, 0')
A('v_mov_b32 v14, 1')
A('s_waitcnt lgkmcnt(0)')
A('s_mov_b64 exec, 1')
A(f'ds_add_u32 v13, v14 offset:{L_CNT}')
A('s_mov_b64 exec, -1')
A(f's_cmp_ge_u32 {sW}, 2')
A('s_cbranch_scc1 L_nopub')
A.label('L_b3spin')
A(f'ds_read_b32 v14, v13 offset:{L_CNT}')
A('s_waitcnt lgkmcnt(0)')
A('v_cmp_ne_u32 vcc, 4, v14')
A('s_nop 1')
A('s_cbranch_vccz L_b3ok')
guard('L_b3ok')
A('s_branch L_b3spin')
A.label('L_b3ok')
A(f's_lshl_b32 {sT0}, {sW}, 2')
A(f'v_mov_b32 v12, {sT0}')
for w in range(4):
    A(f'ds_read_b32 v{16+w}, v12 offset:{L_ST+16*w}')
    A(f'ds_read_b32 v{20+w}, v12 offset:{L_ST+16*w+8}')
A(f's_lshl_b32 {sT0}, {sW}, 10')
A(f'v_add_u32 v13, {sT0}, v3')
for w in range(4): A(f'ds_read_b128 v[{32+4*w}:{35+4*w}], v13 offset:{L_OW+2048*w}')
A('s_waitcnt lgkmcnt(4)')
A('v_max_f32 v10, v16, v17')
A('v_max3_f32 v10, v10, v18, v19')
for w in range(4): A(f'v_sub_f32 v{16+w}, v{16+w}, v10')
for w in range(4): A(f'v_exp_f32 v{16+w}, v{16+w}')
A('v_mul_f32 v11, v16, v20')
for w in range(1,4): A(f'v_fmac_f32 v11, v{16+w}, v{20+w}')
A('s_waitcnt lgkmcnt(0)')
for e in range(4): A(f'v_mul_f32 v{24+e}, v{32+e}, v16')
for w in range(1,4):
    for e in range(4): A(f'v_fmac_f32 v{24+e}, v{32+4*w+e}, v{16+w}')
for e in range(4): A(f'v_min_u32 v{24+e}, 0xfffffffe, v{24+e}')
A('v_min_u32 v10, 0xfffffffe, v10')
A('v_min_u32 v11, 0xfffffffe, v11')
A(f's_lshl_b32 {sT0}, {sH}, 1')
A(f's_add_u32 {sT0}, {sT0}, {sW}')
A(f's_lshl_b32 {sT0}, {sT0}, 5')
A(f's_add_u32 {sT0}, {sT0}, {sS}')
A(f's_lshl_b32 {sT1}, {sT0}, 10')
A(f's_add_u32 {sT1}, {sT1}, {O1_OFF}')
A(f'buffer_store_dwordx4 v[24:27], v3, {sWS}, {sT1} offen sc1')
A(f's_lshl_b32 {sT1}, {sT0}, 3')
A(f's_add_u32 {sT1}, {sT1}, {S1_OFF}')
A('v_cmp_eq_u32 vcc, 0, v1')
A('v_cndmask_b32 v13, v8, v1, vcc')
A(f'buffer_store_dwordx2 v[10:11], v13, {sWS}, {sT1} offen sc1')
A.label('L_nopub')
stamp(6)
A(f's_cmp_eq_u32 {sROLE}, 0')
A('s_cbranch_scc1 L_end')
A('v_mov_b32 v13, 0')
A.label('L_b4spin')
A(f'ds_read_b32 v14, v13 offset:{L_FLAG}')
A('s_waitcnt lgkmcnt(0)')
A('v_cmp_ne_u32 vcc, 1, v14')
A('s_nop 1')
A('s_cbranch_vccz L_b4ok')
guard('L_b4ok')
A('s_sleep 1')
A('s_branch L_b4spin')
A.label('L_b4ok')
A(f's_cmp_eq_u32 {sROLE}, 2')
A('s_cbranch_scc1 L_ffn')
A(f's_cmp_eq_u32 {sROLE}, 3')
A('s_cbranch_scc1 L_fin')

A('v_lshlrev_b32 v9, 3, v7')
A('v_and_b32 v10, 15, v1')
A('v_lshlrev_b32 v10, 4, v10')
A('v_lshl_add_u32 v10, v7, 10, v10')
A(f's_lshl_b32 {sC0}, {sJ}, 8')
A(f's_add_u32 {sC0}, {sC0}, {S1_OFF}')
A(f's_lshl_b32 {sC1}, {sJ}, 15')
A(f's_lshl_b32 {sT0}, {sW}, 8')
A(f's_add_u32 {sC1}, {sC1}, {sT0}')
A(f's_add_u32 {sC1}, {sC1}, {O1_OFF}')
SR=16; OR_=32; WR=64
def wo_poll_issue():
    for i in range(8):
        A(f'buffer_load_dwordx2 v[{SR+2*i}:{SR+1+2*i}], v9, {sWS}, {sC0} offen offset:{32*i} sc1')
    A(f's_mov_b32 {sT0}, {sC1}')
    for i in range(8):
        A(f'buffer_load_dwordx4 v[{OR_+4*i}:{OR_+3+4*i}], v10, {sWS}, {sT0} offen sc1')
        if i<7: A(f's_add_u32 {sT0}, {sT0}, 4096')
wo_poll_issue()
A(f's_lshl_b32 {sT0}, {sW}, 13')
A(f'v_add_u32 v12, {sT0}, v3')
for i in range(8): A(f'ds_read_b128 v[{WR+4*i}:{WR+3+4*i}], v12 offset:{L_W+1024*i}')
A.label('L_wopoll')
A('s_waitcnt vmcnt(0)')
sentinel_check(range(16,64), 11, 'L_wore')
A('s_branch L_wogo')
A.label('L_wore')
guard('L_wogo')
A('s_sleep 1')
wo_poll_issue()
A('s_branch L_wopoll')
A.label('L_wogo')
stamp(8)
A(f'v_max_f32 v11, v{SR}, v{SR+2}')
for i in range(2,8,2): A(f'v_max3_f32 v11, v11, v{SR+2*i}, v{SR+2+2*i}')
allreduce('max',11,12,lo=False)
for i in range(8): A(f'v_sub_f32 v{SR+2*i}, v{SR+2*i}, v11')
for i in range(8): A(f'v_exp_f32 v{SR+2*i}, v{SR+2*i}')
A(f'v_mul_f32 v11, v{SR}, v{SR+1}')
for i in range(1,8): A(f'v_fmac_f32 v11, v{SR+2*i}, v{SR+1+2*i}')
allreduce('add',11,12,lo=False)
A('v_rcp_f32 v12, v11')
for e in range(4): A(f'v_mul_f32 v{96+e}, v{OR_+e}, v{SR}')
for i in range(1,8):
    for e in range(4): A(f'v_fmac_f32 v{96+e}, v{OR_+4*i+e}, v{SR+2*i}')
for e in range(4): allreduce('add',96+e,100+e,lo=False)
for e in range(4):
    fdiv(104+e,96+e,11,12,100+e)
    bf16round(104+e)
A('v_and_b32 v13, 15, v1')
A('v_lshlrev_b32 v13, 4, v13')
A(f's_lshl_b32 {sT0}, {sW}, 8')
A(f'v_add_u32 v13, {sT0}, v13')
A(f'ds_write_b128 v13, v[104:107] offset:{L_OV}')
A('v_lshrrev_b32 v13, 3, v1')
A('v_lshlrev_b32 v13, 2, v13')
A(f'v_add_u32 v13, {sT0}, v13')
A('s_waitcnt lgkmcnt(0)')
for i in range(8): A(f'ds_read_b32 v{32+2*i}, v13 offset:{L_OV+32*i}')
for k in range(8): A(f'v_mov_b32 v{16+k}, 0')
for i in range(8):
    for k in range(4): unpack(f'v{WR+4*i+k}', 96+2*k)
    A(f's_waitcnt lgkmcnt({7-i})')
    for k in range(4):
        A(f'v_pk_fma_f32 v[{16+2*k}:{17+2*k}], v[{96+2*k}:{97+2*k}], v[{32+2*i}:{33+2*i}], v[{16+2*k}:{17+2*k}] op_sel_hi:[1,0,1]')
for k in range(8):
    A(f'v_add_f32_dpp v{16+k}, v{16+k}, v{16+k} row_ror:8 row_mask:0xf bank_mask:0xf')
A('v_and_b32 v13, 7, v1')
A('v_lshlrev_b32 v13, 5, v13')
A('v_lshl_add_u32 v13, v7, 8, v13')
A(f's_lshl_b32 {sT0}, {sW}, 10')
A(f'v_add_u32 v13, {sT0}, v13')
A(f'ds_write_b128 v13, v[16:19] offset:{L_RED2}')
A(f'ds_write_b128 v13, v[20:23] offset:{L_RED2+16}')
A('s_waitcnt lgkmcnt(0)')
A('s_barrier')
A(f's_cmp_lg_u32 {sW}, 0')
A('s_cbranch_scc1 L_end')
A('v_lshlrev_b32 v13, 2, v1')
for k in range(16): A(f'ds_read_b32 v{16+k}, v13 offset:{L_RED2+256*k}')
A('s_waitcnt lgkmcnt(0)')
for st in (8,4,2,1):
    for k in range(st): A(f'v_add_f32 v{16+k}, v{16+k}, v{16+k+st}')
A('v_min_u32 v16, 0xfffffffe, v16')
A(f's_mul_i32 {sT1}, {sJ}, 1792')
A(f's_lshl_b32 {sT2}, {sN}, 8')
A(f's_add_u32 {sT1}, {sT1}, {sT2}')
A(f's_add_u32 {sT1}, {sT1}, {P2_OFF}')
A(f'buffer_store_dword v16, v13, {sWS}, {sT1} offen sc1')
stamp(9)
A('s_branch L_end')

A.label('L_ffn')
A('v_and_b32 v11, 31, v1')
A('v_cmp_gt_u32 vcc, 28, v11')
A('v_lshlrev_b32 v12, 3, v11')
A('v_cndmask_b32 v12, v8, v12, vcc')
A(f's_mul_i32 {sT0}, {sW}, 224')
A(f'buffer_load_dwordx2 v[4:5], v12, {sX}, {sT0} offen')
A('v_lshlrev_b32 v14, 4, v11')
A('v_lshrrev_b32 v12, 5, v1')
A('v_mul_u32_u24 v12, 1792, v12')
A('v_add_u32 v14, v14, v12')
A('v_cndmask_b32 v14, v8, v14, vcc')
A(f's_mul_i32 {sT0}, {sW}, {22*1024}')
A(f'v_add_u32 v12, {sT0}, v3')
for i in range(22): A(f'ds_read_b128 v[{40+4*i}:{43+4*i}], v12 offset:{L_W+1024*i}')
stamp(7)
A(f's_mul_i32 {sC0}, {sW}, 448')
A(f's_add_u32 {sC0}, {sC0}, {P2_OFF}')
A.label('L_ffpoll')
A(f's_mov_b32 {sT0}, {sC0}')
for i in range(8):
    A(f'buffer_load_dwordx4 a[{4*i}:{4*i+3}], v14, {sWS}, {sT0} offen sc1')
    if i<7: A(f's_add_u32 {sT0}, {sT0}, 3584')
A('s_waitcnt vmcnt(0)')
for i in range(16): A(f'v_accvgpr_read_b32 v{16+i}, a{i}')
A('v_max3_u32 v9, v16, v17, v18')
for i in range(3,15,2): A(f'v_max3_u32 v9, v9, v{16+i}, v{17+i}')
A('v_max_u32 v9, v9, v31')
for k in range(8): A(f'v_add_f32 v{16+k}, v{16+k}, v{24+k}')
for i in range(16): A(f'v_accvgpr_read_b32 v{24+i}, a{16+i}')
for i in range(0,16,2): A(f'v_max3_u32 v9, v9, v{24+i}, v{25+i}')
A('v_cmp_eq_u32 vcc, -1, v9')
A('s_nop 1')
A('s_cbranch_vccz L_ffgo')
guard('L_ffgo')
A('s_sleep 1')
A('s_branch L_ffpoll')
A.label('L_ffgo')
stamp(8)
for k in range(8): A(f'v_add_f32 v{24+k}, v{24+k}, v{32+k}')
for k in range(8): A(f'v_add_f32 v{16+k}, v{16+k}, v{24+k}')
for k in range(4): A(f'v_add_f32 v{16+k}, v{16+k}, v{20+k}')
unpack('v4',24); unpack('v5',26)
for e in range(4): allreduce('add',16+e,20+e,lo=False,x16=False)
for e in range(4):
    bf16round(16+e)
    A(f'v_add_f32 v{16+e}, v{16+e}, v{24+e}')
    bf16round(16+e)
A('v_add_f32 v9, v16, v17')
A('v_add_f32 v10, v18, v19')
A('v_add_f32 v9, v9, v10')
allreduce('add',9,10)
A(f'v_mul_f32 v9, {hex(f2u(1.0/224))}, v9')
A('v_mov_b32 v11, 0')
for e in range(4):
    A(f'v_sub_f32 v10, v{16+e}, v9')
    A('v_fmac_f32 v11, v10, v10')
A('v_and_b32 v12, 31, v1')
A('v_cmp_gt_u32 vcc, 28, v12')
A('v_cndmask_b32 v11, 0, v11, vcc')
allreduce('add',11,10)
A('v_mul_f32 v11, 0.5, v11')
A('v_mov_b32 v10, v9')
A(f's_lshl_b32 {sT0}, {sW}, 3')
A(f'v_mov_b32 v12, {sT0}')
A(f'ds_write_b64 v12, v[10:11] offset:{L_ST3}')
A('s_waitcnt lgkmcnt(0)')
A('s_barrier')
A('v_mov_b32 v12, 0')
A(f'ds_read_b128 v[20:23], v12 offset:{L_ST3}')
A(f'ds_read_b128 v[24:27], v12 offset:{L_ST3+16}')
A('s_waitcnt lgkmcnt(0)')
A('v_add_f32 v9, v20, v22')
A('v_add_f32 v10, v24, v26')
A('v_add_f32 v9, v9, v10')
A('v_mul_f32 v9, 0.25, v9')
A('v_add_f32 v11, v21, v23')
A('v_add_f32 v10, v25, v27')
A('v_add_f32 v11, v11, v10')
A('v_mov_b32 v13, 0')
for r in (20,22,24,26):
    A(f'v_sub_f32 v10, v{r}, v9')
    A('v_fmac_f32 v13, v10, v10')
A(f'v_mov_b32 v10, {hex(f2u(112.0))}')
A('v_fmac_f32 v11, v13, v10')
A(f'v_mul_f32 v11, {hex(f2u(1.0/448))}, v11')
layernorm_consts(9,11,10)
for e in range(4):
    A(f'v_sub_f32 v{20+e}, v{16+e}, v9')
    bf16round(20+e)
    fdiv(24+e,20+e,11,10,12)
    bf16round(24+e)
A('v_and_b32 v12, 31, v1')
A('v_cmp_gt_u32 vcc, 28, v12')
A('v_lshlrev_b32 v12, 4, v12')
A(f's_mul_i32 {sT0}, {sW}, 448')
A(f'v_add_u32 v12, {sT0}, v12')
A('s_and_saveexec_b64 s[98:99], vcc')
A(f'ds_write_b128 v12, v[24:27] offset:{L_HN}')
A('s_mov_b64 exec, s[98:99]')
A('v_lshrrev_b32 v12, 2, v1')
A('v_lshlrev_b32 v12, 2, v12')
A(f'v_add_u32 v12, {sT0}, v12')
A('s_waitcnt lgkmcnt(0)')
for i in range(7): A(f'ds_read_b32 v{32+i}, v12 offset:{L_HN+64*i}')
for k in range(16): A(f'v_mov_b32 v{16+k}, 0')
for i in range(7):
    A(f's_waitcnt lgkmcnt({6-i})')
    for mat in range(2):
        raw=40+28*mat+4*i
        for k in range(4):
            A(f'v_lshlrev_b32 v4, 16, v{raw+k}')
            A(f'v_and_b32 v5, 0xffff0000, v{raw+k}')
            A(f'v_fmac_f32 v{16+8*mat+2*k}, v4, v{32+i}')
            A(f'v_fmac_f32 v{17+8*mat+2*k}, v5, v{32+i}')
for m in ('row_ror:8','row_ror:4'):
    for k in range(16):
        A(f'v_add_f32_dpp v{16+k}, v{16+k}, v{16+k} {m} row_mask:0xf bank_mask:0xf')
A('v_and_b32 v13, 3, v1')
A('v_lshlrev_b32 v13, 5, v13')
A('v_lshl_add_u32 v13, v7, 8, v13')
A(f's_lshl_b32 {sT0}, {sW}, 10')
A(f'v_add_u32 v13, {sT0}, v13')
A(f'ds_write_b128 v13, v[16:19] offset:{L_RED3}')
A(f'ds_write_b128 v13, v[20:23] offset:{L_RED3+16}')
A(f'ds_write_b128 v13, v[24:27] offset:{L_RED3+128}')
A(f'ds_write_b128 v13, v[28:31] offset:{L_RED3+144}')
A('s_waitcnt lgkmcnt(0)')
A('s_barrier')
A('v_lshlrev_b32 v13, 2, v1')
for k in range(16): A(f'ds_read_b32 v{16+k}, v13 offset:{L_RED3+256*k}')
A('s_waitcnt lgkmcnt(0)')
for st in (8,4,2,1):
    for k in range(st): A(f'v_add_f32 v{16+k}, v{16+k}, v{16+k+st}')
bf16round(16)
A('v_mov_b32 v17, v16')
A('v_permlane32_swap_b32 v16, v17')
A('v_mul_f32 v18, v16, v16')
A(f'v_mov_b32 v19, {hex(f2u(0.044715))}')
A('v_fma_f32 v18, v18, v19, 1.0')
A('v_mul_f32 v18, v18, v16')
A(f'v_mul_f32 v18, {hex(f2u(2.0*0.7978845608028654*LOG2E))}, v18')
A('v_exp_f32 v18, v18')
A('v_add_f32 v18, 1.0, v18')
A('v_rcp_f32 v18, v18')
A('v_fma_f32 v18, v18, -2.0, 2.0')
A('v_mul_f32 v18, v18, v16')
A('v_mul_f32 v18, 0.5, v18')
bf16round(18)
A('v_mul_f32 v18, v18, v17')
bf16round(18)
A(f's_lshl_b32 {sT0}, {sW}, 3')
for i in range(8):
    A(f'v_readlane_b32 s{sA0+i}, v18, {sT0}')
    if i<7: A(f's_add_u32 {sT0}, {sT0}, 1')
for k in range(8): A(f'v_mov_b32 v{16+k}, 0')
for i in range(8):
    for k in range(4):
        A(f'v_lshlrev_b32 v4, 16, v{96+4*i+k}')
        A(f'v_and_b32 v5, 0xffff0000, v{96+4*i+k}')
        A(f'v_fma_f32 v{16+2*k}, v4, s{sA0+i}, v{16+2*k}')
        A(f'v_fma_f32 v{17+2*k}, v5, s{sA0+i}, v{17+2*k}')
A('v_lshlrev_b32 v13, 5, v1')
A(f's_mul_i32 {sT0}, {sW}, 1792')
A(f'v_add_u32 v13, {sT0}, v13')
A('v_cmp_gt_u32 vcc, 56, v1')
A('s_and_saveexec_b64 s[98:99], vcc')
A(f'ds_write_b128 v13, v[16:19] offset:{L_RED4}')
A(f'ds_write_b128 v13, v[20:23] offset:{L_RED4+16}')
A('s_mov_b64 exec, s[98:99]')
A('s_waitcnt lgkmcnt(0)')
A('s_barrier')
A(f's_cmp_ge_u32 {sW}, 2')
A('s_cbranch_scc1 L_end')
A(f's_lshl_b32 {sT0}, {sW}, 10')
A(f'v_add_u32 v13, {sT0}, v3')
A('v_cmp_gt_u32 vcc, 1792, v13')
A('v_cndmask_b32 v12, v8, v13, vcc')
A('v_cndmask_b32 v13, 0, v13, vcc')
for w in range(4): A(f'ds_read_b128 v[{16+4*w}:{19+4*w}], v13 offset:{L_RED4+1792*w}')
A('s_waitcnt lgkmcnt(0)')
for e in range(4):
    A(f'v_add_f32 v{16+e}, v{16+e}, v{20+e}')
    A(f'v_add_f32 v{24+e}, v{24+e}, v{28+e}')
for e in range(4):
    A(f'v_add_f32 v{16+e}, v{16+e}, v{24+e}')
    A(f'v_min_u32 v{16+e}, 0xfffffffe, v{16+e}')
A(f's_mul_i32 {sT1}, {sF}, 1792')
A(f's_add_u32 {sT1}, {sT1}, {P3_OFF}')
A(f'buffer_store_dwordx4 v[16:19], v12, {sWS}, {sT1} offen sc1')
stamp(9)
A('s_branch L_end')

A.label('L_fin')
A(f's_cmp_lg_u32 {sW}, 0')
A('s_cbranch_scc1 L_end')
A('v_and_b32 v11, 15, v1')
A('v_lshlrev_b32 v12, 3, v11')
A(f's_lshl_b32 {sT0}, {sH}, 7')
A(f'buffer_load_dwordx2 v[48:49], v12, {sX}, {sT0} offen')
A('v_lshlrev_b32 v14, 4, v11')
A('v_mul_u32_u24 v10, 1792, v7')
A('v_add_u32 v14, v14, v10')
A(f's_lshl_b32 {sC0}, {sH}, 8')
A(f's_add_u32 {sC1}, {sC0}, {P3_OFF}')
A(f's_add_u32 {sC0}, {sC0}, {P2_OFF}')
A.label('L_f2poll')
A(f's_mov_b32 {sT0}, {sC0}')
for i in range(4):
    A(f'buffer_load_dwordx4 v[{16+4*i}:{19+4*i}], v14, {sWS}, {sT0} offen sc1')
    if i<3: A(f's_add_u32 {sT0}, {sT0}, 7168')
A('s_waitcnt vmcnt(0)')
sentinel_check(range(16,32), 9, 'L_f2re')
A('s_branch L_f2go')
A.label('L_f2re')
guard('L_f2go')
A('s_sleep 2')
A('s_branch L_f2poll')
A.label('L_f2go')
stamp(7)
unpack('v48',50); unpack('v49',52)
for st in (8,4):
    for k in range(st): A(f'v_add_f32 v{16+k}, v{16+k}, v{16+k+st}')
for e in range(4): allreduce('add',16+e,20+e,lo=False)
for e in range(4):
    bf16round(16+e)
    A(f'v_add_f32 v{16+e}, v{16+e}, v{50+e}')
    bf16round(16+e)
A.label('L_f3poll')
A(f's_mov_b32 {sT0}, {sC1}')
for i in range(14):
    A(f'buffer_load_dwordx4 v[{64+4*i}:{67+4*i}], v14, {sWS}, {sT0} offen sc1')
    if i<13: A(f's_add_u32 {sT0}, {sT0}, 7168')
A('s_waitcnt vmcnt(0)')
sentinel_check(range(64,120), 9, 'L_f3re')
A('s_branch L_f3go')
A.label('L_f3re')
guard('L_f3go')
A('s_sleep 1')
A('s_branch L_f3poll')
A.label('L_f3go')
stamp(8)
for i in range(7):
    for e in range(4): A(f'v_add_f32 v{64+4*i+e}, v{64+4*i+e}, v{92+4*i+e}')
for i in range(1,7):
    for e in range(4): A(f'v_add_f32 v{64+e}, v{64+e}, v{64+4*i+e}')
for e in range(4): allreduce('add',64+e,20+e,lo=False)
for e in range(4):
    bf16round(64+e)
    A(f'v_add_f32 v{64+e}, v{64+e}, v{16+e}')
A('v_cvt_pk_bf16_f32 v64, v64, v65')
A('v_cvt_pk_bf16_f32 v65, v66, v67')
A('v_cmp_gt_u32 vcc, 16, v1')
A('v_cndmask_b32 v12, v8, v12, vcc')
A(f's_lshl_b32 {sT0}, {sH}, 7')
A(f'buffer_store_dwordx2 v[64:65], v12, {sOUT}, {sT0} offen')
stamp(9)
A(f's_cmp_lg_u32 {sH}, 0')
A('s_cbranch_scc1 L_end')
A('v_mov_b32 v5, 0')
A('s_mov_b64 exec, 1')
for i in range(1,10):
    A(f's_sub_u32 s3, s{48+i}, s48')
    A('v_mov_b32 v6, s3')
    A(f'buffer_store_dword v6, v5, {sDB}, 0 offen offset:{4*i} sc1')
A('s_mov_b64 exec, -1')
A('s_branch L_end')

A.label('L_helper')
A(f'buffer_load_dwordx4 v[60:63], v3, {sX}, 0 offen')
A('v_lshrrev_b32 v9, 1, v1')
A('v_lshlrev_b32 v9, 13, v9')
A('v_and_b32 v10, 1, v1')
A('v_lshl_add_u32 v9, v10, 4, v9')
A(f's_lshl_b32 {sC0}, {sH}, 10')
A(f's_lshl_b32 {sT1}, {sS}, 5')
A(f's_add_u32 {sC0}, {sC0}, {sT1}')
A(f's_mov_b32 {sT0}, {sC0}')
for i in range(14):
    A(f'buffer_load_dwordx4 v[{64+4*i}:{67+4*i}], v9, {sWQ}, {sT0} offen nt')
    if i<13: A(f's_add_u32 {sT0}, {sT0}, 262144')
for i in range(4): A(f'v_mov_b32 v{12+i}, -1')
A(f's_lshl_b32 {sT0}, {sH}, 6')
A(f's_add_u32 {sT0}, {sT0}, {sS}')
A(f's_lshl_b32 {sT1}, {sT0}, 10')
A(f's_add_u32 {sT1}, {sT1}, {O1_OFF}')
A(f's_add_u32 {sT2}, {sT1}, 32768')
A(f'buffer_store_dwordx4 v[12:15], v3, {sWS}, {sT1} offen sc1')
A(f'buffer_store_dwordx4 v[12:15], v3, {sWS}, {sT2} offen sc1')
A(f's_lshl_b32 {sT1}, {sT0}, 3')
A(f's_add_u32 {sT1}, {sT1}, {S1_OFF}')
A('v_lshlrev_b32 v10, 8, v1')
A('v_cmp_gt_u32 vcc, 2, v1')
A('v_cndmask_b32 v10, v8, v10, vcc')
A(f'buffer_store_dwordx2 v[12:13], v10, {sWS}, {sT1} offen sc1')
A(f's_cmp_lg_u32 {sROLE}, 1')
A('s_cbranch_scc1 L_noclr2')
A(f's_mul_i32 {sT1}, {sJ}, 1792')
A(f's_lshl_b32 {sT2}, {sN}, 8')
A(f's_add_u32 {sT1}, {sT1}, {sT2}')
A(f's_add_u32 {sT1}, {sT1}, {P2_OFF}')
A('v_cmp_gt_u32 vcc, 16, v1')
A('v_cndmask_b32 v10, v8, v3, vcc')
A(f'buffer_store_dwordx4 v[12:15], v10, {sWS}, {sT1} offen sc1')
A.label('L_noclr2')
A(f's_cmp_lg_u32 {sROLE}, 2')
A('s_cbranch_scc1 L_noclear')
A(f's_mul_i32 {sT1}, {sF}, 1792')
A(f's_add_u32 {sT1}, {sT1}, {P3_OFF}')
A('v_cmp_gt_u32 vcc, 48, v1')
A('v_cndmask_b32 v10, v8, v3, vcc')
A(f'buffer_store_dwordx4 v[12:15], v3, {sWS}, {sT1} offen sc1')
A(f'buffer_store_dwordx4 v[12:15], v10, {sWS}, {sT1} offen offset:1024 sc1')
A.label('L_noclear')
A('s_waitcnt vmcnt(16)')
A('s_waitcnt vmcnt(14)')
for k in range(4): unpack(f'v{60+k}', 16+2*k)
A('v_add_f32 v9, v16, v17')
for k in range(2,8): A(f'v_add_f32 v9, v9, v{16+k}')
allreduce('add',9,10)
A(f'v_mul_f32 v9, {hex(f2u(1.0/448))}, v9')
A('v_mov_b32 v11, 0')
for k in range(8):
    A(f'v_sub_f32 v10, v{16+k}, v9')
    A(f'v_fmac_f32 v11, v10, v10')
A('v_cmp_gt_u32 vcc, 56, v1')
A('v_cndmask_b32 v11, 0, v11, vcc')
allreduce('add',11,10)
A(f'v_mul_f32 v11, {hex(f2u(1.0/448))}, v11')
layernorm_consts(9,11,10)
for k in range(8):
    A(f'v_sub_f32 v{16+k}, v{16+k}, v9')
    bf16round(16+k)
    fdiv(24+k,16+k,11,10,12)
    bf16round(24+k)
A('v_lshlrev_b32 v12, 5, v1')
A('v_cmp_gt_u32 vcc, 56, v1')
A('s_and_saveexec_b64 s[98:99], vcc')
A(f'ds_write_b128 v12, v[24:27] offset:{L_XN}')
A(f'ds_write_b128 v12, v[28:31] offset:{L_XN+16}')
A('s_mov_b64 exec, s[98:99]')
A('v_lshrrev_b32 v12, 1, v1')
A('v_lshlrev_b32 v12, 2, v12')
A('s_waitcnt lgkmcnt(0)')
for i in range(14): A(f'ds_read_b32 v{32+2*i}, v12 offset:{L_XN+128*i}')
for k in range(8): A(f'v_mov_b32 v{16+k}, 0')
A('s_waitcnt vmcnt(0) lgkmcnt(0)')
stamp(1)
for i in range(14): fma8(16, 64+4*i, 32+2*i, 24)
for m in ('quad_perm:[2,3,0,1]','row_ror:4','row_ror:8'):
    for k in range(8):
        A(f'v_add_f32_dpp v{16+k}, v{16+k}, v{16+k} {m} row_mask:0xf bank_mask:0xf')
for k in range(8): allreduce('add',16+k,24+k,lo=False)
for k in range(4): A(f'v_cvt_pk_bf16_f32 v{16+k}, v{16+2*k}, v{17+2*k}')
A('v_cmp_gt_u32 vcc, 2, v1')
A('v_cndmask_b32 v12, v8, v3, vcc')
A(f's_add_u32 {sT0}, {sC0}, {Q_OFF}')
A(f'buffer_store_dwordx4 v[16:19], v12, {sWS}, {sT0} offen sc1')
A('s_waitcnt vmcnt(0)')
A('v_mov_b32 v12, 1')
A('v_cmp_eq_u32 vcc, 0, v1')
A('v_cndmask_b32 v13, v8, v1, vcc')
A(f's_lshl_b32 {sT0}, {sH}, 5')
A(f's_add_u32 {sT1}, {sT0}, {sS}')
A(f'buffer_store_byte v12, v13, {sDB}, {sT1} offen sc1')
stamp(2)
A('v_and_b32 v13, 7, v1')
A('v_lshlrev_b32 v13, 2, v13')
A.label('L_fpoll')
A('s_sleep 8')
A(f'buffer_load_dword v12, v13, {sDB}, {sT0} offen sc1')
A('s_waitcnt vmcnt(0)')
A('v_cmp_ne_u32 vcc, 0x01010101, v12')
A('s_nop 1')
A('s_cbranch_vccz L_fok')
guard('L_fok')
A('s_branch L_fpoll')
A.label('L_fok')
stamp(3)
A(f's_lshl_b32 {sT0}, {sH}, 10')
A(f's_add_u32 {sT0}, {sT0}, {Q_OFF}')
A(f'buffer_load_dwordx4 v[16:19], v3, {sWS}, {sT0} offen sc1')
A('s_waitcnt vmcnt(0)')
A(f'ds_write_b128 v3, v[16:19] offset:{L_Q}')
A('v_mov_b32 v12, 0')
A('v_mov_b32 v13, 0')
A(f'ds_write_b64 v12, v[12:13] offset:{L_CNT}')
A('s_waitcnt lgkmcnt(0)')
stamp(4)
A('s_barrier')
A(f's_cmp_eq_u32 {sROLE}, 0')
A('s_cbranch_scc1 L_end')
A(f's_cmp_lg_u32 {sROLE}, 1')
A('s_cbranch_scc1 L_hnowo')
A('v_lshrrev_b32 v9, 3, v1')
A('v_mul_u32_u24 v9, 896, v9')
A('v_and_b32 v10, 7, v1')
A('v_lshl_add_u32 v9, v10, 4, v9')
A(f's_lshl_b32 {sT0}, {sJ}, 8')
A(f's_mul_i32 {sT0}, {sT0}, 896')
A(f's_lshl_b32 {sT1}, {sN}, 7')
A(f's_add_u32 {sT0}, {sT0}, {sT1}')
for i in range(32):
    A(f'buffer_load_dwordx4 a[{4*i}:{4*i+3}], v9, {sWO}, {sT0} offen nt')
    if i<31: A(f's_add_u32 {sT0}, {sT0}, {8*896}')
    if i%4==3: A('s_waitcnt vmcnt(8)')
A.label('L_hnowo')
A('v_mov_b32 v13, 0')
A.label('L_hcnt')
A(f'ds_read_b32 v14, v13 offset:{L_CNT}')
A('s_waitcnt lgkmcnt(0)')
A('v_cmp_ne_u32 vcc, 4, v14')
A('s_nop 1')
A('s_cbranch_vccz L_hcntok')
guard('L_hcntok')
A('s_sleep 1')
A('s_branch L_hcnt')
A.label('L_hcntok')
A(f's_cmp_lg_u32 {sROLE}, 1')
A('s_cbranch_scc1 L_hnowo2')
A('s_waitcnt vmcnt(0)')
A(f'v_add_u32 v9, {L_W}, v3')
for i in range(32):
    A(f'ds_write_b128 v9, a[{4*i}:{4*i+3}] offset:{1024*i}')
A.label('L_hnowo2')
A(f's_cmp_lg_u32 {sROLE}, 2')
A('s_cbranch_scc1 L_hnoffn')
A('v_lshrrev_b32 v9, 2, v1')
A('v_mul_u32_u24 v9, 3584, v9')
A('v_and_b32 v10, 3, v1')
A('v_lshl_add_u32 v9, v10, 4, v9')
A('v_cmp_gt_u32 vcc, 56, v1')
A('v_cndmask_b32 v10, v8, v3, vcc')
A(f's_lshl_b32 {sT0}, {sF}, 6')
A(f's_lshl_b32 {sT1}, {sF}, 5')
A(f's_mul_i32 {sT1}, {sT1}, 896')
for w in range(4):
    for i in range(7):
        A(f's_mov_b32 m0, {L_W+1024*(22*w+i)}')
        A('s_nop 0')
        A(f'buffer_load_dwordx4 v9, {sWG}, {sT0} offen nt lds')
        A(f's_mov_b32 m0, {L_W+1024*(22*w+7+i)}')
        A('s_nop 0')
        A(f'buffer_load_dwordx4 v9, {sWU}, {sT0} offen nt lds')
        A(f's_add_u32 {sT0}, {sT0}, {16*3584}')
    for i in range(8):
        A(f's_mov_b32 m0, {L_W+1024*(22*w+14+i)}')
        A('s_nop 0')
        A(f'buffer_load_dwordx4 v10, {sWD}, {sT1} offen nt lds')
        A(f's_add_u32 {sT1}, {sT1}, 896')
    A('s_waitcnt vmcnt(30)')
A.label('L_hnoffn')
A('v_lshlrev_b32 v13, 2, v1')
A.label('L_afpoll')
A(f'buffer_load_dword v12, v13, {sDB}, 0 offen sc1')
A('s_waitcnt vmcnt(0)')
A('v_cmp_ne_u32 vcc, 0x01010101, v12')
A('s_nop 1')
A('s_cbranch_vccz L_afok')
guard('L_afok')
A('s_sleep 8')
A('s_branch L_afpoll')
A.label('L_afok')
stamp(5)
A('v_mov_b32 v12, 0')
A('v_mov_b32 v13, 1')
A('s_waitcnt lgkmcnt(0)')
A(f'ds_write_b32 v12, v13 offset:{L_FLAG}')
A('s_waitcnt lgkmcnt(0)')
A.label('L_end')
if STAMP:
    stamp(10)
    A('s_cmp_ge_u32 s2, 256')
    A('s_cbranch_scc1 L_end2')
    A('v_mov_b32 v5, 0')
    A('s_mul_i32 s3, s2, 5')
    A(f's_add_u32 s3, s3, {sW}')
    A('s_lshl_b32 s3, s3, 6')
    A(f's_add_u32 s3, s3, {STAMP_OFF}')
    A('s_mov_b64 exec, 1')
    for i in range(16):
        A(f'v_mov_b32 v6, s{48+i}')
        A(f'buffer_store_dword v6, v5, {sWS}, s3 offen offset:{4*i}')
    A.label('L_end2')
A('s_endpgm')

hdr=open('cdna_kernels/'+NAME+'.s.ref').read().split('; @launch')[0]
out=hdr+f'; @launch grid=(256,1,1) block=(320,1,1) lds={LDS_SIZE}\n'
out+='.amdgcn_target "amdgcn-amd-amdhsa--gfx950"\n.text\n'
out+=f'.globl {NAME}_kernel\n.p2align 8\n.type {NAME}_kernel,@function\n'
out+=A.text()
out+=f'''.section .rodata,"a"
.p2align 6
.amdhsa_kernel {NAME}_kernel
  .amdhsa_next_free_vgpr 256
  .amdhsa_next_free_sgpr 102
  .amdhsa_accum_offset 128
  .amdhsa_group_segment_fixed_size 0
  .amdhsa_kernarg_size 96
  .amdhsa_user_sgpr_count 2
  .amdhsa_user_sgpr_kernarg_segment_ptr 1
  .amdhsa_system_sgpr_workgroup_id_x 1
.end_amdhsa_kernel
'''
open(sys.argv[1],'w').write(out)
print('lines',len(A.lines))
```

```python
import sys, os, struct
from asmlib import Asm

NAME='sequential_preLN__gqa_block_cached__geglu_ffn__decode'
D = int(sys.argv[2]) if len(sys.argv)>2 else 12
STAMP=int(os.environ.get('STAMP','0'))
P1=[int(x) for x in os.environ.get('P1','0,8,16,24').split(',')]
PZ=[int(x) for x in os.environ.get('PZ','16,24,32,40,48,56').split(',')]
SPIN=100000
SLF=int(os.environ.get('SLF','8'))
SLZ=int(os.environ.get('SLZ','8'))

Q_OFF=0x0; S1_OFF=0x2000; O1_OFF=0x4000; P2_OFF=0x84000; P3_OFF=0x8C000; WS_SIZE=0xBD000
STAMP_OFF=0x100000
if STAMP: WS_SIZE=0x200000
OOB=0x80000000
L_XN=0; L_Q=2048; L_P=4096; L_OW=6144; L_ST=14336; L_OV=14400; L_RED2=15424; L_ST3=19520; L_HN=19584
L_CNT=19552; L_FLAG=19556; L_GU=21376; L_RED3=21376; L_RED4=25472; L_W=32768; L_V=32768; LDS_SIZE=163840
LOG2E=1.4426950408889634
def f2u(x): return struct.unpack('<I',struct.pack('<f',x))[0]

A=Asm()
sK='s[4:7]'; sV='s[8:11]'; sWS='s[12:15]'; sDB='s[16:19]'; sX='s[20:23]'; sWQ='s[24:27]'; sWO='s[28:31]'
sWG='s[32:35]'; sWU='s[36:39]'; sWD='s[40:43]'; sOUT='s[44:47]'
sH='s72'; sS='s73'; sW='s74'; sT0='s75'; sT1='s76'; sT2='s77'; sT3='s78'; sKB='s79'; sVB='s80'; sJ='s81'; sN='s82'; sF='s83'
sOOB='s84'; sC0='s85'; sC1='s86'; sROLE='s87'; sC3='s88'
sA0=90

def srd(base, p, size):
    A(f's_mov_b32 s{base}, s{p}')
    A(f's_and_b32 s{base+1}, s{p+1}, 0xffff')
    A(f's_mov_b32 s{base+2}, {size}')
    A(f's_mov_b32 s{base+3}, 0x00020000')
def stamp(i):
    if not STAMP: return
    A('s_memrealtime s[100:101]')
    A('s_waitcnt lgkmcnt(0)')
    A(f's_mov_b32 s{48+i}, s100')
def guard(go):
    A('s_add_u32 s89, s89, 1')
    A(f's_cmp_gt_u32 s89, {SPIN}')
    A(f's_cbranch_scc1 {go}')
def allreduce(op, v, t, lo=True, x16=True, x32=True):
    ins = 'v_add_f32' if op=='add' else 'v_max_f32'
    if lo:
        for m in ('quad_perm:[1,0,3,2]','quad_perm:[2,3,0,1]','row_half_mirror','row_mirror'):
            A(f'{ins}_dpp v{v}, v{v}, v{v} {m} row_mask:0xf bank_mask:0xf')
    if x16:
        A(f'v_mov_b32 v{t}, v{v}'); A(f'v_permlane16_swap_b32 v{v}, v{t}'); A(f'{ins} v{v}, v{v}, v{t}')
    if x32:
        A(f'v_mov_b32 v{t}, v{v}'); A(f'v_permlane32_swap_b32 v{v}, v{t}'); A(f'{ins} v{v}, v{v}, v{t}')
def bf16round(v):
    A(f'v_cvt_pk_bf16_f32 v{v}, v{v}, v{v}')
    A(f'v_and_b32 v{v}, 0xffff0000, v{v}')
def unpack(src, dst):
    A(f'v_lshlrev_b32 v{dst}, 16, {src}')
    A(f'v_and_b32 v{dst+1}, 0xffff0000, {src}')
def fdiv(d, num, den, r, t):
    A(f'v_mul_f32 v{d}, v{num}, v{r}')
    A(f'v_fma_f32 v{t}, -v{d}, v{den}, v{num}')
    A(f'v_fma_f32 v{d}, v{t}, v{r}, v{d}')
def sentinel_check(regs, t, fail_label):
    regs=list(regs)
    A(f'v_max_u32 v{t}, v{regs[0]}, v{regs[1]}')
    i=2
    while i<len(regs):
        if i+1<len(regs):
            A(f'v_max3_u32 v{t}, v{t}, v{regs[i]}, v{regs[i+1]}'); i+=2
        else:
            A(f'v_max_u32 v{t}, v{t}, v{regs[i]}'); i+=1
    A(f'v_cmp_eq_u32 vcc, -1, v{t}')
    A('s_nop 1')
    A(f's_cbranch_vccnz {fail_label}')
def layernorm_consts(mean, var, t0):
    bf16round(mean); bf16round(var)
    A(f'v_add_f32 v{var}, {hex(f2u(1e-5))}, v{var}')
    bf16round(var)
    A(f'v_sqrt_f32 v{var}, v{var}')
    bf16round(var)
    A(f'v_rcp_f32 v{t0}, v{var}')
def fma8(acc, raw, mul, tmp):
    for k in range(4): unpack(f'v{raw+k}', tmp+2*k)
    for k in range(4):
        A(f'v_pk_fma_f32 v[{acc+2*k}:{acc+2*k+1}], v[{tmp+2*k}:{tmp+2*k+1}], v[{mul}:{mul+1}], v[{acc+2*k}:{acc+2*k+1}] op_sel_hi:[1,0,1]')

A.raw(f'{NAME}_kernel:')
A('s_cmp_ge_u32 s2, 256')
A('s_cbranch_scc1 L_end')
A('s_load_dwordx16 s[48:63], s[0:1], 0')
A('s_load_dwordx8 s[64:71], s[0:1], 64')
A('v_and_b32 v1, 63, v0')
A('v_lshrrev_b32 v6, 6, v0')
A(f'v_readfirstlane_b32 {sW}, v6')
A(f's_and_b32 {sH}, s2, 7')
A(f's_lshr_b32 {sS}, s2, 3')
A(f's_mov_b32 {sOOB}, {hex(OOB)}')
A('s_mov_b32 s89, 0')
A('v_and_b32 v6, 15, v1')
A('v_lshrrev_b32 v7, 4, v1')
A('v_lshlrev_b32 v2, 9, v6')
A('v_lshl_add_u32 v2, v7, 4, v2')
A('v_lshlrev_b32 v3, 4, v1')
A(f'v_mov_b32 v8, {sOOB}')
A('s_waitcnt lgkmcnt(0)')
srd(4,50,33554432); srd(8,52,33554432); srd(12,70,WS_SIZE); srd(16,68,256); srd(20,48,896)
srd(24,54,3670016); srd(28,56,3670016); srd(32,60,1605632); srd(36,62,1605632); srd(40,64,1605632); srd(44,66,896)
if STAMP:
    for i in range(1,16): A(f's_mov_b32 s{48+i}, 0')
stamp(0)
A(f's_mov_b32 {sROLE}, 0')
A(f's_cmp_lt_u32 {sS}, 14')
A(f's_cselect_b32 {sROLE}, 1, {sROLE}')
A(f's_sub_u32 {sT0}, {sS}, 16')
A(f's_cmp_lt_u32 {sT0}, 14')
A(f's_cselect_b32 {sROLE}, 2, {sROLE}')
A(f's_sub_u32 {sT0}, {sS}, 14')
A(f's_cmp_lt_u32 {sT0}, 2')
A(f's_cselect_b32 {sT1}, 1, 0')
A(f's_cmp_lt_u32 {sH}, 7')
A(f's_cselect_b32 {sT1}, {sT1}, 0')
A(f's_cmp_eq_u32 {sT1}, 1')
A(f's_cselect_b32 {sROLE}, 3, {sROLE}')
A(f's_cmp_ge_u32 {sS}, 7')
A(f's_cselect_b32 {sT0}, 1, 0')
A(f's_lshl_b32 {sJ}, {sH}, 1')
A(f's_add_u32 {sJ}, {sJ}, {sT0}')
A(f's_mul_i32 {sT0}, {sT0}, 7')
A(f's_sub_u32 {sN}, {sS}, {sT0}')
A(f's_mul_i32 {sF}, {sH}, 14')
A(f's_add_u32 {sF}, {sF}, {sS}')
A(f's_sub_u32 {sF}, {sF}, 16')
A(f's_cmp_eq_u32 {sW}, 4')
A('s_cbranch_scc1 L_helper')

A(f's_lshl_b32 {sKB}, {sH}, 22')
A(f's_lshl_b32 {sT0}, {sS}, 17')
A(f's_add_u32 {sKB}, {sKB}, {sT0}')
A(f's_lshl_b32 {sT0}, {sW}, 15')
A(f's_add_u32 {sKB}, {sKB}, {sT0}')
A(f's_mov_b32 {sVB}, {sKB}')
A(f's_mov_b32 {sC3}, {PZ[0]}')
for i in range(32):
    if PZ[i%len(PZ)]!=PZ[0]:
        A(f's_cmp_eq_u32 {sS}, {i}')
        A(f's_cselect_b32 {sC3}, {PZ[i%len(PZ)]}, {sC3}')
A(f's_mov_b32 s3, {P1[0]}')
for i in range(32):
    if P1[i%len(P1)]!=P1[0]:
        A(f's_cmp_eq_u32 {sS}, {i}')
        A(f's_cselect_b32 s3, {P1[i%len(P1)]}, s3')
def pausept(k):
    if k in P1:
        A(f's_cmp_lg_u32 s3, {k}')
        A(f's_cbranch_scc1 L_p1{k}')
        A('s_waitcnt vmcnt(0)')
        A('s_barrier')
        A('s_barrier')
        A.label(f'L_p1{k}')
    if k in PZ:
        A(f's_cmp_lg_u32 {sC3}, {k}')
        A(f's_cbranch_scc1 L_pz{k}')
        A('s_waitcnt vmcnt(0)')
        A('s_barrier')
        A('s_barrier')
        A.label(f'L_pz{k}')
def kload(n):
    blk,c=divmod(n,8)
    if c==0 and blk>0: A(f's_add_u32 {sKB}, {sKB}, 8192')
    A(f'buffer_load_dwordx4 a[{4*n}:{4*n+3}], v2, {sK}, {sKB} offen offset:{c*64} nt')
def pace(): A(f's_waitcnt vmcnt({D-1})')
cnt=0
for n in range(8):
    pausept(n)
    kload(n); cnt+=1
A('v_lshrrev_b32 v9, 5, v1')
A('v_and_b32 v10, 31, v1')
for m4 in range(4):
    A(f'v_add_u32 v11, {2*m4}, v9')
    A('v_lshlrev_b32 v11, 1, v11')
    A('v_xor_b32 v11, v11, v10')
    A('v_lshlrev_b32 v11, 4, v11')
    A(f'v_lshl_add_u32 v{120+m4}, v9, 9, v11')
A(f's_lshl_b32 {sT3}, {sW}, 15')
A(f's_add_u32 {sT3}, {sT3}, {L_V}')
def vload(n):
    A(f's_mov_b32 m0, {sT3}')
    A(f's_add_u32 {sT3}, {sT3}, 1024')
    A(f'buffer_load_dwordx4 v{120+n%4}, {sV}, {sVB} offen nt lds')
    A(f's_add_u32 {sVB}, {sVB}, 1024')
for n in range(8,32):
    pausept(n)
    if cnt>=D: pace()
    kload(n); cnt+=1
for n in range(32):
    pausept(32+n)
    pace(); vload(n)
for k in range(32): A(f'v_mov_b32 v{32+k}, 0')
A('v_and_b32 v9, 15, v1')
A('v_lshrrev_b32 v10, 2, v9')
A('v_lshl_add_u32 v10, v7, 2, v10')
A('v_and_b32 v11, 7, v10')
A('v_and_b32 v9, 3, v9')
A('v_lshlrev_b32 v10, 9, v10')
A('v_lshl_add_u32 v10, v9, 3, v10')
A(f's_lshl_b32 {sT0}, {sW}, 15')
A(f's_add_u32 {sT0}, {sT0}, {L_V}')
A(f'v_add_u32 v10, {sT0}, v10')
for b in range(8):
    A(f'v_xor_b32 v9, {b}, v11')
    A(f'v_lshl_add_u32 v{112+b}, v9, 5, v10')
A('v_and_b32 v6, 15, v1')
A('v_cmp_gt_u32 vcc, 2, v6')
stamp(1)
A('s_and_saveexec_b64 s[98:99], vcc')
for c in range(8): A(f'ds_read_b128 v[{32+4*c}:{35+4*c}], v2 offset:{L_Q+64*c}')
A('s_mov_b64 exec, s[98:99]')
A('s_waitcnt vmcnt(32) lgkmcnt(0)')
stamp(3)
for blk in range(4):
    for c in range(8):
        n=blk*8+c
        cin = '0' if c==0 else f'v[{16+4*blk}:{19+4*blk}]'
        A(f'v_mfma_f32_16x16x32_bf16 v[{16+4*blk}:{19+4*blk}], a[{4*n}:{4*n+3}], v[{32+4*c}:{35+4*c}], {cin}')
for k in range(0,16,2):
    A(f'v_cvt_pk_bf16_f32 v9, v{16+k}, v{17+k}')
    A(f'v_lshlrev_b32 v{16+k}, 16, v9')
    A(f'v_and_b32 v{17+k}, 0xffff0000, v9')
for k in range(16): A(f'v_mul_f32 v{16+k}, {hex(f2u(0.0625*LOG2E))}, v{16+k}')
A('v_max_f32 v9, v16, v17')
for k in range(2,16,2): A(f'v_max3_f32 v9, v9, v{16+k}, v{17+k}')
allreduce('max',9,10,lo=False)
for k in range(16): A(f'v_sub_f32 v{16+k}, v{16+k}, v9')
for k in range(16): A(f'v_exp_f32 v{16+k}, v{16+k}')
for k in range(8): A(f'v_cvt_pk_bf16_f32 v{104+k}, v{16+2*k}, v{17+2*k}')
stamp(4)
ACC=40
def pv_half(kb, first):
    def rd(t, buf):
        a,b=divmod(t,8)
        for u in range(2):
            A(f'ds_read_b64_tr_b16 v[{buf+2*u}:{buf+2*u+1}], v{112+b} offset:{a*256+kb*16384+u*8192}')
    rd(0,32)
    for t in range(16):
        buf=32+4*(t%2)
        if t<15: rd(t+1, 32+4*((t+1)%2))
        A(f's_waitcnt lgkmcnt({2 if t<15 else 0})')
        cin = '0' if first else f'v[{ACC+4*t}:{ACC+4*t+3}]'
        A(f'v_mfma_f32_16x16x32_bf16 v[{ACC+4*t}:{ACC+4*t+3}], v[{buf}:{buf+3}], v[{104+4*kb}:{107+4*kb}], {cin}')
A('v_lshlrev_b32 v11, 16, v104')
A('v_and_b32 v12, 0xffff0000, v104')
A('v_add_f32 v11, v11, v12')
for k in range(1,8):
    A(f'v_lshlrev_b32 v12, 16, v{104+k}')
    A('v_add_f32 v11, v11, v12')
    A(f'v_and_b32 v12, 0xffff0000, v{104+k}')
    A('v_add_f32 v11, v11, v12')
allreduce('add',11,10,lo=False)
A('v_and_b32 v12, 15, v1')
A('v_lshlrev_b32 v12, 2, v12')
A(f's_lshl_b32 {sT1}, {sW}, 4')
A(f'v_add_u32 v12, {sT1}, v12')
A('s_and_saveexec_b64 s[98:99], vcc')
A(f'ds_write_b32 v12, v9 offset:{L_ST}')
A(f'ds_write_b32 v12, v11 offset:{L_ST+8}')
A('s_mov_b64 exec, s[98:99]')
A('s_waitcnt vmcnt(16) lgkmcnt(0)')
pv_half(0, True)
A('s_waitcnt vmcnt(0)')
pv_half(1, False)
stamp(5)
A('v_and_b32 v12, 15, v1')
A('v_lshlrev_b32 v12, 10, v12')
A('v_lshl_add_u32 v12, v7, 4, v12')
A(f's_lshl_b32 {sT0}, {sW}, 11')
A(f'v_add_u32 v12, {sT0}, v12')
A('s_and_saveexec_b64 s[98:99], vcc')
for t in range(16):
    A(f'ds_write_b128 v12, v[{ACC+4*t}:{ACC+4*t+3}] offset:{L_OW+64*t}')
A('s_mov_b64 exec, s[98:99]')
A('v_mov_b32 v13, 0')
A('v_mov_b32 v14, 1')
A('s_waitcnt lgkmcnt(0)')
A('s_mov_b64 exec, 1')
A(f'ds_add_u32 v13, v14 offset:{L_CNT}')
A('s_mov_b64 exec, -1')
A(f's_cmp_ge_u32 {sW}, 2')
A('s_cbranch_scc1 L_nopub')
A.label('L_b3spin')
A(f'ds_read_b32 v14, v13 offset:{L_CNT}')
A('s_waitcnt lgkmcnt(0)')
A('v_cmp_gt_u32 vcc, 4, v14')
A('s_nop 1')
A('s_cbranch_vccz L_b3ok')
guard('L_b3ok')
A('s_branch L_b3spin')
A.label('L_b3ok')
A(f's_lshl_b32 {sT0}, {sW}, 2')
A(f'v_mov_b32 v12, {sT0}')
for w in range(4):
    A(f'ds_read_b32 v{16+w}, v12 offset:{L_ST+16*w}')
    A(f'ds_read_b32 v{20+w}, v12 offset:{L_ST+16*w+8}')
A(f's_lshl_b32 {sT0}, {sW}, 10')
A(f'v_add_u32 v13, {sT0}, v3')
for w in range(4): A(f'ds_read_b128 v[{32+4*w}:{35+4*w}], v13 offset:{L_OW+2048*w}')
A('s_waitcnt lgkmcnt(4)')
A('v_max_f32 v10, v16, v17')
A('v_max3_f32 v10, v10, v18, v19')
for w in range(4): A(f'v_sub_f32 v{16+w}, v{16+w}, v10')
for w in range(4): A(f'v_exp_f32 v{16+w}, v{16+w}')
A('v_mul_f32 v11, v16, v20')
for w in range(1,4): A(f'v_fmac_f32 v11, v{16+w}, v{20+w}')
A('s_waitcnt lgkmcnt(0)')
for e in range(4): A(f'v_mul_f32 v{24+e}, v{32+e}, v16')
for w in range(1,4):
    for e in range(4): A(f'v_fmac_f32 v{24+e}, v{32+4*w+e}, v{16+w}')
for e in range(4): A(f'v_min_u32 v{24+e}, 0xfffffffe, v{24+e}')
A('v_min_u32 v10, 0xfffffffe, v10')
A('v_min_u32 v11, 0xfffffffe, v11')
A(f's_lshl_b32 {sT0}, {sH}, 1')
A(f's_add_u32 {sT0}, {sT0}, {sW}')
A(f's_lshl_b32 {sT0}, {sT0}, 5')
A(f's_add_u32 {sT0}, {sT0}, {sS}')
A(f's_lshl_b32 {sT1}, {sT0}, 10')
A(f's_add_u32 {sT1}, {sT1}, {O1_OFF}')
A(f'buffer_store_dwordx4 v[24:27], v3, {sWS}, {sT1} offen sc1')
A(f's_lshl_b32 {sT1}, {sT0}, 3')
A(f's_add_u32 {sT1}, {sT1}, {S1_OFF}')
A('v_cmp_eq_u32 vcc, 0, v1')
A('v_cndmask_b32 v13, v8, v1, vcc')
A(f'buffer_store_dwordx2 v[10:11], v13, {sWS}, {sT1} offen sc1')
A('v_mov_b32 v13, 0')
A('v_mov_b32 v14, 1')
A('s_waitcnt vmcnt(0)')
A('s_mov_b64 exec, 1')
A(f'ds_add_u32 v13, v14 offset:{L_CNT}')
A('s_mov_b64 exec, -1')
A.label('L_nopub')
stamp(6)
A(f's_cmp_eq_u32 {sROLE}, 0')
A('s_cbranch_scc1 L_end')
A('v_mov_b32 v13, 0')
A.label('L_b4spin')
A(f'ds_read_b32 v14, v13 offset:{L_FLAG}')
A('s_waitcnt lgkmcnt(0)')
A('v_cmp_ne_u32 vcc, 1, v14')
A('s_nop 1')
A('s_cbranch_vccz L_b4ok')
guard('L_b4ok')
A('s_sleep 1')
A('s_branch L_b4spin')
A.label('L_b4ok')
A(f's_cmp_eq_u32 {sROLE}, 2')
A('s_cbranch_scc1 L_ffn')
A(f's_cmp_eq_u32 {sROLE}, 3')
A('s_cbranch_scc1 L_fin')

A('v_lshlrev_b32 v9, 3, v7')
A('v_and_b32 v10, 15, v1')
A('v_lshlrev_b32 v10, 4, v10')
A('v_lshl_add_u32 v10, v7, 10, v10')
A(f's_lshl_b32 {sC0}, {sJ}, 8')
A(f's_add_u32 {sC0}, {sC0}, {S1_OFF}')
A(f's_lshl_b32 {sC1}, {sJ}, 15')
A(f's_lshl_b32 {sT0}, {sW}, 8')
A(f's_add_u32 {sC1}, {sC1}, {sT0}')
A(f's_add_u32 {sC1}, {sC1}, {O1_OFF}')
SR=16; OR_=32; WR=64
def wo_poll_issue():
    for i in range(8):
        A(f'buffer_load_dwordx2 v[{SR+2*i}:{SR+1+2*i}], v9, {sWS}, {sC0} offen offset:{32*i} sc1')
    A(f's_mov_b32 {sT0}, {sC1}')
    for i in range(8):
        A(f'buffer_load_dwordx4 v[{OR_+4*i}:{OR_+3+4*i}], v10, {sWS}, {sT0} offen sc1')
        if i<7: A(f's_add_u32 {sT0}, {sT0}, 4096')
A(f's_lshl_b32 {sT0}, {sW}, 13')
A(f'v_add_u32 v12, {sT0}, v3')
for i in range(8): A(f'ds_read_b128 v[{WR+4*i}:{WR+3+4*i}], v12 offset:{L_W+1024*i}')
A('v_and_b32 v12, 31, v1')
A('v_lshlrev_b32 v12, 3, v12')
A.label('L_wopre')
A(f'buffer_load_dwordx2 v[{SR}:{SR+1}], v12, {sWS}, {sC0} offen sc1')
A('s_waitcnt vmcnt(0)')
sentinel_check([SR,SR+1], 11, 'L_wopre2')
A('s_branch L_wore3')
A.label('L_wopre2')
guard('L_wore3')
A('s_sleep 1')
A('s_branch L_wopre')
A.label('L_wore3')
wo_poll_issue()
A.label('L_wopoll')
A('s_waitcnt vmcnt(0)')
sentinel_check(range(16,64), 11, 'L_wore')
A('s_branch L_wogo')
A.label('L_wore')
guard('L_wogo')
A('s_sleep 1')
wo_poll_issue()
A('s_branch L_wopoll')
A.label('L_wogo')
stamp(8)
A(f'v_max_f32 v11, v{SR}, v{SR+2}')
for i in range(2,8,2): A(f'v_max3_f32 v11, v11, v{SR+2*i}, v{SR+2+2*i}')
allreduce('max',11,12,lo=False)
for i in range(8): A(f'v_sub_f32 v{SR+2*i}, v{SR+2*i}, v11')
for i in range(8): A(f'v_exp_f32 v{SR+2*i}, v{SR+2*i}')
A(f'v_mul_f32 v11, v{SR}, v{SR+1}')
for i in range(1,8): A(f'v_fmac_f32 v11, v{SR+2*i}, v{SR+1+2*i}')
allreduce('add',11,12,lo=False)
A('v_rcp_f32 v12, v11')
for e in range(4): A(f'v_mul_f32 v{96+e}, v{OR_+e}, v{SR}')
for i in range(1,8):
    for e in range(4): A(f'v_fmac_f32 v{96+e}, v{OR_+4*i+e}, v{SR+2*i}')
for e in range(4): allreduce('add',96+e,100+e,lo=False)
for e in range(4):
    fdiv(104+e,96+e,11,12,100+e)
    bf16round(104+e)
A('v_and_b32 v13, 15, v1')
A('v_lshlrev_b32 v13, 4, v13')
A(f's_lshl_b32 {sT0}, {sW}, 8')
A(f'v_add_u32 v13, {sT0}, v13')
A(f'ds_write_b128 v13, v[104:107] offset:{L_OV}')
A('v_lshrrev_b32 v13, 3, v1')
A('v_lshlrev_b32 v13, 2, v13')
A(f'v_add_u32 v13, {sT0}, v13')
A('s_waitcnt lgkmcnt(0)')
for i in range(8): A(f'ds_read_b32 v{32+2*i}, v13 offset:{L_OV+32*i}')
for k in range(8): A(f'v_mov_b32 v{16+k}, 0')
for i in range(8):
    for k in range(4): unpack(f'v{WR+4*i+k}', 96+2*k)
    A(f's_waitcnt lgkmcnt({7-i})')
    for k in range(4):
        A(f'v_pk_fma_f32 v[{16+2*k}:{17+2*k}], v[{96+2*k}:{97+2*k}], v[{32+2*i}:{33+2*i}], v[{16+2*k}:{17+2*k}] op_sel_hi:[1,0,1]')
for k in range(8):
    A(f'v_add_f32_dpp v{16+k}, v{16+k}, v{16+k} row_ror:8 row_mask:0xf bank_mask:0xf')
A('v_and_b32 v13, 7, v1')
A('v_lshlrev_b32 v13, 5, v13')
A('v_lshl_add_u32 v13, v7, 8, v13')
A(f's_lshl_b32 {sT0}, {sW}, 10')
A(f'v_add_u32 v13, {sT0}, v13')
A(f'ds_write_b128 v13, v[16:19] offset:{L_RED2}')
A(f'ds_write_b128 v13, v[20:23] offset:{L_RED2+16}')
A('s_waitcnt lgkmcnt(0)')
A('s_barrier')
A(f's_cmp_lg_u32 {sW}, 0')
A('s_cbranch_scc1 L_end')
A('v_lshlrev_b32 v13, 2, v1')
for k in range(16): A(f'ds_read_b32 v{16+k}, v13 offset:{L_RED2+256*k}')
A('s_waitcnt lgkmcnt(0)')
for st in (8,4,2,1):
    for k in range(st): A(f'v_add_f32 v{16+k}, v{16+k}, v{16+k+st}')
A('v_min_u32 v16, 0xfffffffe, v16')
A(f's_mul_i32 {sT1}, {sJ}, 1792')
A(f's_lshl_b32 {sT2}, {sN}, 8')
A(f's_add_u32 {sT1}, {sT1}, {sT2}')
A(f's_add_u32 {sT1}, {sT1}, {P2_OFF}')
A(f'buffer_store_dword v16, v13, {sWS}, {sT1} offen sc1')
stamp(9)
A('s_branch L_end')

A.label('L_ffn')
A('v_and_b32 v11, 31, v1')
A('v_cmp_gt_u32 vcc, 28, v11')
A('v_lshlrev_b32 v12, 3, v11')
A('v_cndmask_b32 v12, v8, v12, vcc')
A(f's_mul_i32 {sT0}, {sW}, 224')
A(f'buffer_load_dwordx2 v[4:5], v12, {sX}, {sT0} offen')
A('v_lshlrev_b32 v14, 4, v11')
A('v_lshrrev_b32 v12, 5, v1')
A('v_mul_u32_u24 v12, 1792, v12')
A('v_add_u32 v14, v14, v12')
A('v_cndmask_b32 v14, v8, v14, vcc')
A('v_and_b32 v9, 15, v1')
A('v_lshrrev_b32 v10, 2, v9')
A('v_and_b32 v9, 3, v9')
A('v_lshl_add_u32 v12, v7, 2, v10')
A('v_mul_u32_u24 v12, 896, v12')
A('v_lshl_add_u32 v12, v9, 3, v12')
A(f's_mul_i32 {sT0}, {sW}, 224')
A(f's_add_u32 {sT0}, {sT0}, {L_W+28672}')
A(f'v_add_u32 v12, {sT0}, v12')
for t in range(7): A(f'ds_read_b64_tr_b16 v[{48+2*t}:{49+2*t}], v12 offset:{32*t}')
A(f's_cmp_ge_u32 {sW}, 2')
A('s_cbranch_scc1 L_ffnogu')
A('v_lshl_add_u32 v12, v7, 3, v10')
A('v_lshlrev_b32 v12, 5, v12')
A('v_lshl_add_u32 v12, v9, 3, v12')
A(f's_mul_i32 {sT0}, {sW}, 14336')
A(f's_add_u32 {sT0}, {sT0}, {L_W}')
A(f'v_add_u32 v12, {sT0}, v12')
for ks in range(14):
    for u in range(2):
        A(f'ds_read_b64_tr_b16 v[{64+4*ks+2*u}:{65+4*ks+2*u}], v12 offset:{1024*ks+128*u}')
A.label('L_ffnogu')
stamp(7)
A(f's_mul_i32 {sC0}, {sW}, 448')
A(f's_add_u32 {sC0}, {sC0}, {P2_OFF}')
A(f's_add_u32 {sT1}, {sC0}, {7*3584}')
A.label('L_ffpre')
A(f'buffer_load_dwordx4 v[16:19], v14, {sWS}, {sT1} offen sc1')
A('s_waitcnt vmcnt(0)')
sentinel_check(range(16,20), 9, 'L_ffpre2')
A('s_branch L_ffpoll')
A.label('L_ffpre2')
guard('L_ffpoll')
A(f's_sleep {SLF}')
A('s_branch L_ffpre')
A.label('L_ffpoll')
A(f's_mov_b32 {sT0}, {sC0}')
for i in range(8):
    A(f'buffer_load_dwordx4 v[{16+4*i}:{19+4*i}], v14, {sWS}, {sT0} offen sc1')
    if i<7: A(f's_add_u32 {sT0}, {sT0}, 3584')
A('s_waitcnt vmcnt(0)')
sentinel_check(range(16,48), 9, 'L_ffre')
A('s_branch L_ffgo')
A.label('L_ffre')
guard('L_ffgo')
A('s_sleep 1')
A('s_branch L_ffpoll')
A.label('L_ffgo')
stamp(8)
for st in (16,8,4):
    for k in range(st): A(f'v_add_f32 v{16+k}, v{16+k}, v{16+k+st}')
unpack('v4',24); unpack('v5',26)
for e in range(4): allreduce('add',16+e,20+e,lo=False,x16=False)
for e in range(4):
    bf16round(16+e)
    A(f'v_add_f32 v{16+e}, v{16+e}, v{24+e}')
    bf16round(16+e)
A('v_add_f32 v9, v16, v17')
A('v_add_f32 v10, v18, v19')
A('v_add_f32 v9, v9, v10')
allreduce('add',9,10)
A(f'v_mul_f32 v9, {hex(f2u(1.0/224))}, v9')
A('v_mov_b32 v11, 0')
for e in range(4):
    A(f'v_sub_f32 v10, v{16+e}, v9')
    A('v_fmac_f32 v11, v10, v10')
A('v_and_b32 v12, 31, v1')
A('v_cmp_gt_u32 vcc, 28, v12')
A('v_cndmask_b32 v11, 0, v11, vcc')
allreduce('add',11,10)
A('v_mul_f32 v11, 0.5, v11')
A('v_mov_b32 v10, v9')
A(f's_lshl_b32 {sT0}, {sW}, 3')
A(f'v_mov_b32 v12, {sT0}')
A(f'ds_write_b64 v12, v[10:11] offset:{L_ST3}')
A('s_waitcnt lgkmcnt(0)')
A('s_barrier')
A('v_mov_b32 v12, 0')
A(f'ds_read_b128 v[20:23], v12 offset:{L_ST3}')
A(f'ds_read_b128 v[24:27], v12 offset:{L_ST3+16}')
A('s_waitcnt lgkmcnt(0)')
A('v_add_f32 v9, v20, v22')
A('v_add_f32 v10, v24, v26')
A('v_add_f32 v9, v9, v10')
A('v_mul_f32 v9, 0.25, v9')
A('v_add_f32 v11, v21, v23')
A('v_add_f32 v10, v25, v27')
A('v_add_f32 v11, v11, v10')
A('v_mov_b32 v13, 0')
for r in (20,22,24,26):
    A(f'v_sub_f32 v10, v{r}, v9')
    A('v_fmac_f32 v13, v10, v10')
A(f'v_mov_b32 v10, {hex(f2u(112.0))}')
A('v_fmac_f32 v11, v13, v10')
A(f'v_mul_f32 v11, {hex(f2u(1.0/448))}, v11')
layernorm_consts(9,11,10)
for e in range(4):
    A(f'v_sub_f32 v{20+e}, v{16+e}, v9')
    bf16round(20+e)
    fdiv(24+e,20+e,11,10,12)
A('v_cvt_pk_bf16_f32 v24, v24, v25')
A('v_cvt_pk_bf16_f32 v25, v26, v27')
A('v_and_b32 v12, 31, v1')
A('v_cmp_gt_u32 vcc, 28, v12')
A('v_lshlrev_b32 v12, 3, v12')
A(f's_mul_i32 {sT0}, {sW}, 224')
A(f'v_add_u32 v12, {sT0}, v12')
A('s_and_saveexec_b64 s[98:99], vcc')
A(f'ds_write_b64 v12, v[24:25] offset:{L_HN}')
A('s_mov_b64 exec, s[98:99]')
for k in range(28): A(f'v_mov_b32 v{16+k}, 0')
A('v_and_b32 v9, 15, v1')
A('v_cmp_eq_u32 vcc, 0, v9')
A('v_lshlrev_b32 v12, 4, v7')
A('s_waitcnt lgkmcnt(0)')
A('s_barrier')
A(f's_cmp_ge_u32 {sW}, 2')
A('s_cbranch_scc1 L_ffnomm')
for hb in range(2):
    A('s_and_saveexec_b64 s[98:99], vcc')
    for k in range(7): A(f'ds_read_b128 v[{16+4*k}:{19+4*k}], v12 offset:{L_HN+64*(7*hb+k)}')
    A('s_mov_b64 exec, s[98:99]')
    for k in range(7):
        ks=7*hb+k
        A(f's_waitcnt lgkmcnt({6-k})')
        cin='0' if ks==0 else 'v[44:47]'
        A(f'v_mfma_f32_16x16x32_bf16 v[44:47], v[{64+4*ks}:{67+4*ks}], v[{16+4*k}:{19+4*k}], {cin}')
for e in range(4): bf16round(44+e)
A(f's_lshl_b32 {sT0}, {sW}, 6')
A(f'v_add_u32 v13, {sT0}, v12')
A('s_and_saveexec_b64 s[98:99], vcc')
A(f'ds_write_b128 v13, v[44:47] offset:{L_GU}')
A('s_mov_b64 exec, s[98:99]')
A.label('L_ffnomm')
A('s_waitcnt lgkmcnt(0)')
A('s_barrier')
A(f'ds_read_b128 v[16:19], v12 offset:{L_GU}')
A(f'ds_read_b128 v[20:23], v12 offset:{L_GU+64}')
A(f'v_mov_b32 v28, {hex(f2u(0.044715))}')
A('s_waitcnt lgkmcnt(0)')
for e in range(4): A(f'v_mul_f32 v{24+e}, v{16+e}, v{16+e}')
for e in range(4): A(f'v_fma_f32 v{24+e}, v{24+e}, v28, 1.0')
for e in range(4): A(f'v_mul_f32 v{24+e}, v{24+e}, v{16+e}')
for e in range(4): A(f'v_mul_f32 v{24+e}, {hex(f2u(2.0*0.7978845608028654*LOG2E))}, v{24+e}')
for e in range(4): A(f'v_exp_f32 v{24+e}, v{24+e}')
for e in range(4): A(f'v_add_f32 v{24+e}, 1.0, v{24+e}')
for e in range(4): A(f'v_rcp_f32 v{24+e}, v{24+e}')
for e in range(4): A(f'v_fma_f32 v{24+e}, v{24+e}, -2.0, 2.0')
for e in range(4): A(f'v_mul_f32 v{24+e}, v{24+e}, v{16+e}')
for e in range(4): A(f'v_mul_f32 v{24+e}, 0.5, v{24+e}')
for e in range(4): bf16round(24+e)
for e in range(4): A(f'v_mul_f32 v{24+e}, v{24+e}, v{20+e}')
A('v_cvt_pk_bf16_f32 v24, v24, v25')
A('v_cvt_pk_bf16_f32 v25, v26, v27')
A('v_cndmask_b32 v24, 0, v24, vcc')
A('v_cndmask_b32 v25, 0, v25, vcc')
for t in range(7):
    A(f'v_mfma_f32_16x16x16_bf16 v[{64+4*t}:{67+4*t}], v[{48+2*t}:{49+2*t}], v[24:25], 0')
A('v_cndmask_b32 v13, v8, v12, vcc')
A(f's_mul_i32 {sT1}, {sF}, 1792')
A(f's_mul_i32 {sT0}, {sW}, 448')
A(f's_add_u32 {sT1}, {sT1}, {sT0}')
A(f's_add_u32 {sT1}, {sT1}, {P3_OFF}')
for t in range(7):
    for e in range(4): A(f'v_min_u32 v{64+4*t+e}, 0xfffffffe, v{64+4*t+e}')
    A(f'buffer_store_dwordx4 v[{64+4*t}:{67+4*t}], v13, {sWS}, {sT1} offen offset:{64*t} sc1')
stamp(9)
A('s_branch L_end')

A.label('L_fin')
A(f's_cmp_lg_u32 {sW}, 0')
A('s_cbranch_scc1 L_end')
A(f's_sub_u32 {sN}, {sS}, 14')
A(f's_mul_i32 {sN}, {sN}, 7')
A(f's_add_u32 {sN}, {sN}, {sH}')
A('v_and_b32 v11, 7, v1')
A('v_lshlrev_b32 v12, 3, v11')
A(f's_lshl_b32 {sT0}, {sN}, 6')
A(f'buffer_load_dwordx2 v[48:49], v12, {sX}, {sT0} offen')
A('v_lshlrev_b32 v14, 4, v11')
A('v_lshrrev_b32 v10, 3, v1')
A('v_mul_u32_u24 v10, 1792, v10')
A('v_add_u32 v14, v14, v10')
A(f's_lshl_b32 {sC0}, {sN}, 7')
A(f's_add_u32 {sC1}, {sC0}, {P3_OFF}')
A(f's_add_u32 {sC0}, {sC0}, {P2_OFF}')
A(f's_add_u32 {sT1}, {sC0}, 14336')
def red8(v,t):
    A(f'v_add_f32_dpp v{v}, v{v}, v{v} row_ror:8 row_mask:0xf bank_mask:0xf')
    allreduce('add',v,t,lo=False)
A.label('L_f2poll')
A(f'buffer_load_dwordx4 v[16:19], v14, {sWS}, {sC0} offen sc1')
A(f'buffer_load_dwordx4 v[20:23], v14, {sWS}, {sT1} offen sc1')
A('s_waitcnt vmcnt(0)')
sentinel_check(range(16,24), 9, 'L_f2re')
A('s_branch L_f2go')
A.label('L_f2re')
guard('L_f2go')
A(f's_sleep {SLZ}')
A('s_branch L_f2poll')
A.label('L_f2go')
stamp(7)
unpack('v48',50); unpack('v49',52)
for k in range(4): A(f'v_add_f32 v{16+k}, v{16+k}, v{20+k}')
for e in range(4): red8(16+e,20+e)
for e in range(4):
    bf16round(16+e)
    A(f'v_add_f32 v{16+e}, v{16+e}, v{50+e}')
    bf16round(16+e)
A(f's_add_u32 {sT1}, {sC1}, {13*14336}')
A.label('L_f3pre')
A(f'buffer_load_dwordx4 v[64:67], v14, {sWS}, {sT1} offen sc1')
A('s_waitcnt vmcnt(0)')
sentinel_check(range(64,68), 9, 'L_f3pre2')
A('s_branch L_f3poll')
A.label('L_f3pre2')
guard('L_f3poll')
A('s_sleep 2')
A('s_branch L_f3pre')
A.label('L_f3poll')
A(f's_mov_b32 {sT0}, {sC1}')
for i in range(14):
    A(f'buffer_load_dwordx4 v[{64+4*i}:{67+4*i}], v14, {sWS}, {sT0} offen sc1')
    if i<13: A(f's_add_u32 {sT0}, {sT0}, 14336')
A('s_waitcnt vmcnt(0)')
sentinel_check(range(64,120), 9, 'L_f3re')
A('s_branch L_f3go')
A.label('L_f3re')
guard('L_f3go')
A('s_branch L_f3poll')
A.label('L_f3go')
stamp(8)
for i in range(7):
    for e in range(4): A(f'v_add_f32 v{64+4*i+e}, v{64+4*i+e}, v{92+4*i+e}')
for i in range(3):
    for e in range(4): A(f'v_add_f32 v{64+4*i+e}, v{64+4*i+e}, v{80+4*i+e}')
for e in range(4): A(f'v_add_f32 v{64+e}, v{64+e}, v{68+e}')
for e in range(4): A(f'v_add_f32 v{72+e}, v{72+e}, v{76+e}')
for e in range(4): A(f'v_add_f32 v{64+e}, v{64+e}, v{72+e}')
for e in range(4): red8(64+e,20+e)
for e in range(4):
    bf16round(64+e)
    A(f'v_add_f32 v{64+e}, v{64+e}, v{16+e}')
A('v_cvt_pk_bf16_f32 v64, v64, v65')
A('v_cvt_pk_bf16_f32 v65, v66, v67')
A('v_cmp_gt_u32 vcc, 8, v1')
A('v_cndmask_b32 v12, v8, v12, vcc')
A(f's_lshl_b32 {sT0}, {sN}, 6')
A(f'buffer_store_dwordx2 v[64:65], v12, {sOUT}, {sT0} offen')
A('s_branch L_end')

A.label('L_helper')
A('s_barrier')
stamp(7)
A(f'buffer_load_dwordx4 v[60:63], v3, {sX}, 0 offen')
A('v_lshrrev_b32 v9, 1, v1')
A('v_lshlrev_b32 v9, 13, v9')
A('v_and_b32 v10, 1, v1')
A('v_lshl_add_u32 v9, v10, 4, v9')
A(f's_lshl_b32 {sC0}, {sH}, 10')
A(f's_lshl_b32 {sT1}, {sS}, 5')
A(f's_add_u32 {sC0}, {sC0}, {sT1}')
A(f's_mov_b32 {sT0}, {sC0}')
for i in range(14):
    A(f'buffer_load_dwordx4 v[{64+4*i}:{67+4*i}], v9, {sWQ}, {sT0} offen nt')
    if i<13: A(f's_add_u32 {sT0}, {sT0}, 262144')
A(f's_cmp_lg_u32 {sROLE}, 1')
A('s_cbranch_scc1 L_hnowo')
A('v_lshrrev_b32 v10, 3, v1')
A('v_mul_u32_u24 v10, 896, v10')
A('v_and_b32 v11, 7, v1')
A('v_lshl_add_u32 v10, v11, 4, v10')
A(f's_lshl_b32 {sT0}, {sJ}, 8')
A(f's_mul_i32 {sT0}, {sT0}, 896')
A(f's_lshl_b32 {sT1}, {sN}, 7')
A(f's_add_u32 {sT0}, {sT0}, {sT1}')
for i in range(32):
    A(f'buffer_load_dwordx4 a[{4*i}:{4*i+3}], v10, {sWO}, {sT0} offen nt')
    if i<31: A(f's_add_u32 {sT0}, {sT0}, {8*896}')
A.label('L_hnowo')
for i in range(4): A(f'v_mov_b32 v{12+i}, -1')
A(f's_lshl_b32 {sT0}, {sH}, 6')
A(f's_add_u32 {sT0}, {sT0}, {sS}')
A(f's_lshl_b32 {sT1}, {sT0}, 10')
A(f's_add_u32 {sT1}, {sT1}, {O1_OFF}')
A(f's_add_u32 {sT2}, {sT1}, 32768')
A(f'buffer_store_dwordx4 v[12:15], v3, {sWS}, {sT1} offen sc1')
A(f'buffer_store_dwordx4 v[12:15], v3, {sWS}, {sT2} offen sc1')
A(f's_lshl_b32 {sT1}, {sT0}, 3')
A(f's_add_u32 {sT1}, {sT1}, {S1_OFF}')
A('v_lshlrev_b32 v10, 8, v1')
A('v_cmp_gt_u32 vcc, 2, v1')
A('v_cndmask_b32 v10, v8, v10, vcc')
A(f'buffer_store_dwordx2 v[12:13], v10, {sWS}, {sT1} offen sc1')
A(f's_cmp_lg_u32 {sROLE}, 1')
A('s_cbranch_scc1 L_noclr2')
A(f's_mul_i32 {sT1}, {sJ}, 1792')
A(f's_lshl_b32 {sT2}, {sN}, 8')
A(f's_add_u32 {sT1}, {sT1}, {sT2}')
A(f's_add_u32 {sT1}, {sT1}, {P2_OFF}')
A('v_cmp_gt_u32 vcc, 16, v1')
A('v_cndmask_b32 v10, v8, v3, vcc')
A(f'buffer_store_dwordx4 v[12:15], v10, {sWS}, {sT1} offen sc1')
A.label('L_noclr2')
A(f's_cmp_lg_u32 {sROLE}, 2')
A('s_cbranch_scc1 L_noclear')
A(f's_mul_i32 {sT1}, {sF}, 1792')
A(f's_add_u32 {sT1}, {sT1}, {P3_OFF}')
A('v_cmp_gt_u32 vcc, 48, v1')
A('v_cndmask_b32 v10, v8, v3, vcc')
A(f'buffer_store_dwordx4 v[12:15], v3, {sWS}, {sT1} offen sc1')
A(f'buffer_store_dwordx4 v[12:15], v10, {sWS}, {sT1} offen offset:1024 sc1')
A.label('L_noclear')
def rolewait(extra, tag):
    A(f's_cmp_lg_u32 {sROLE}, 1')
    A(f's_cbranch_scc1 L_rw{tag}a')
    A(f's_waitcnt vmcnt({36+extra})')
    A(f's_branch L_rw{tag}z')
    A.label(f'L_rw{tag}a')
    A(f's_cmp_lg_u32 {sROLE}, 2')
    A(f's_cbranch_scc1 L_rw{tag}b')
    A(f's_waitcnt vmcnt({5+extra})')
    A(f's_branch L_rw{tag}z')
    A.label(f'L_rw{tag}b')
    A(f's_waitcnt vmcnt({3+extra})')
    A.label(f'L_rw{tag}z')
rolewait(14,'x')
for k in range(4): unpack(f'v{60+k}', 16+2*k)
A('v_add_f32 v9, v16, v17')
for k in range(2,8): A(f'v_add_f32 v9, v9, v{16+k}')
allreduce('add',9,10)
A(f'v_mul_f32 v9, {hex(f2u(1.0/448))}, v9')
A('v_mov_b32 v11, 0')
for k in range(8):
    A(f'v_sub_f32 v10, v{16+k}, v9')
    A(f'v_fmac_f32 v11, v10, v10')
A('v_cmp_gt_u32 vcc, 56, v1')
A('v_cndmask_b32 v11, 0, v11, vcc')
allreduce('add',11,10)
A(f'v_mul_f32 v11, {hex(f2u(1.0/448))}, v11')
layernorm_consts(9,11,10)
for k in range(8):
    A(f'v_sub_f32 v{16+k}, v{16+k}, v9')
    bf16round(16+k)
    fdiv(24+k,16+k,11,10,12)
    bf16round(24+k)
A('v_lshlrev_b32 v12, 5, v1')
A('v_cmp_gt_u32 vcc, 56, v1')
A('s_and_saveexec_b64 s[98:99], vcc')
A(f'ds_write_b128 v12, v[24:27] offset:{L_XN}')
A(f'ds_write_b128 v12, v[28:31] offset:{L_XN+16}')
A('s_mov_b64 exec, s[98:99]')
A('v_lshrrev_b32 v12, 1, v1')
A('v_lshlrev_b32 v12, 2, v12')
A('s_waitcnt lgkmcnt(0)')
for i in range(14): A(f'ds_read_b32 v{32+2*i}, v12 offset:{L_XN+128*i}')
for k in range(8): A(f'v_mov_b32 v{16+k}, 0')
A('s_waitcnt lgkmcnt(0)')
rolewait(0,'w')
stamp(1)
for i in range(14): fma8(16, 64+4*i, 32+2*i, 24)
for m in ('quad_perm:[2,3,0,1]','row_ror:4','row_ror:8'):
    for k in range(8):
        A(f'v_add_f32_dpp v{16+k}, v{16+k}, v{16+k} {m} row_mask:0xf bank_mask:0xf')
for k in range(8): allreduce('add',16+k,24+k,lo=False)
for k in range(4): A(f'v_cvt_pk_bf16_f32 v{16+k}, v{16+2*k}, v{17+2*k}')
A('v_cmp_gt_u32 vcc, 2, v1')
A('v_cndmask_b32 v12, v8, v3, vcc')
A(f's_add_u32 {sT0}, {sC0}, {Q_OFF}')
A(f'buffer_store_dwordx4 v[16:19], v12, {sWS}, {sT0} offen sc1')
A('s_waitcnt vmcnt(0)')
A('v_mov_b32 v12, 1')
A('v_cmp_eq_u32 vcc, 0, v1')
A('v_cndmask_b32 v13, v8, v1, vcc')
A(f's_lshl_b32 {sT0}, {sH}, 5')
A(f's_add_u32 {sT1}, {sT0}, {sS}')
A(f'buffer_store_byte v12, v13, {sDB}, {sT1} offen sc1')
stamp(2)
A('s_barrier')
A('s_barrier')
stamp(6)
A('v_and_b32 v13, 7, v1')
A('v_lshlrev_b32 v13, 2, v13')
A.label('L_fpoll')
A(f'buffer_load_dword v12, v13, {sDB}, {sT0} offen sc1')
A('s_waitcnt vmcnt(0)')
A('v_cmp_ne_u32 vcc, 0x01010101, v12')
A('s_nop 1')
A('s_cbranch_vccz L_fok')
guard('L_fok')
A('s_sleep 2')
A('s_branch L_fpoll')
A.label('L_fok')
stamp(3)
A(f's_lshl_b32 {sT0}, {sH}, 10')
A(f's_add_u32 {sT0}, {sT0}, {Q_OFF}')
A(f'buffer_load_dwordx4 v[16:19], v3, {sWS}, {sT0} offen sc1')
A('s_waitcnt vmcnt(0)')
A(f'ds_write_b128 v3, v[16:19] offset:{L_Q}')
A('v_mov_b32 v12, 0')
A('v_mov_b32 v13, 0')
A(f'ds_write_b64 v12, v[12:13] offset:{L_CNT}')
A('s_waitcnt lgkmcnt(0)')
stamp(4)
A('s_barrier')
A(f's_cmp_eq_u32 {sROLE}, 0')
A('s_cbranch_scc1 L_end')
A('v_mov_b32 v13, 0')
A(f's_cmp_eq_u32 {sROLE}, 2')
A(f's_cselect_b32 {sT2}, 6, 4')
A.label('L_hcnt')
A(f'ds_read_b32 v14, v13 offset:{L_CNT}')
A('s_waitcnt lgkmcnt(0)')
A(f'v_cmp_gt_u32 vcc, {sT2}, v14')
A('s_nop 1')
A('s_cbranch_vccz L_hcntok')
guard('L_hcntok')
A('s_sleep 1')
A('s_branch L_hcnt')
A.label('L_hcntok')
A(f's_cmp_lg_u32 {sROLE}, 1')
A('s_cbranch_scc1 L_hnowo2')
A('s_waitcnt vmcnt(0)')
A(f'v_add_u32 v9, {L_W}, v3')
for i in range(32):
    A(f'ds_write_b128 v9, a[{4*i}:{4*i+3}] offset:{1024*i}')
A.label('L_hnowo2')
A(f's_cmp_lg_u32 {sROLE}, 2')
A('s_cbranch_scc1 L_hnoffn')
A('v_lshrrev_b32 v10, 1, v1')
A('v_mul_u32_u24 v10, 3584, v10')
A('v_and_b32 v11, 1, v1')
A('v_lshl_add_u32 v10, v11, 4, v10')
A(f's_lshl_b32 {sT0}, {sF}, 5')
for i in range(14):
    A(f's_mov_b32 m0, {L_W+1024*i}')
    A('s_nop 0')
    A(f'buffer_load_dwordx4 v10, {sWG}, {sT0} offen nt lds')
    A(f's_mov_b32 m0, {L_W+1024*(14+i)}')
    A('s_nop 0')
    A(f'buffer_load_dwordx4 v10, {sWU}, {sT0} offen nt lds')
    if i<13: A(f's_add_u32 {sT0}, {sT0}, {32*3584}')
A(f's_mul_i32 {sC1}, {sF}, 14336')
for i in range(14):
    A(f's_mov_b32 m0, {L_W+1024*(28+i)}')
    A('s_nop 0')
    A(f'buffer_load_dwordx4 v3, {sWD}, {sC1} offen nt lds')
    if i<13: A(f's_add_u32 {sC1}, {sC1}, 1024')
A.label('L_hnoffn')
A('v_lshlrev_b32 v13, 2, v1')
A.label('L_afpoll')
A(f'buffer_load_dword v12, v13, {sDB}, 0 offen sc1')
A('s_waitcnt vmcnt(0)')
A('v_cmp_ne_u32 vcc, 0x01010101, v12')
A('s_nop 1')
A('s_cbranch_vccz L_afok')
guard('L_afok')
A('s_sleep 8')
A('s_branch L_afpoll')
A.label('L_afok')
stamp(5)
A('v_mov_b32 v12, 0')
A('v_mov_b32 v13, 1')
A('s_waitcnt lgkmcnt(0)')
A(f'ds_write_b32 v12, v13 offset:{L_FLAG}')
A('s_waitcnt lgkmcnt(0)')
A.label('L_end')
if STAMP:
    stamp(10)
    A('s_cmp_ge_u32 s2, 256')
    A('s_cbranch_scc1 L_end2')
    A('v_mov_b32 v5, 0')
    A('s_mul_i32 s3, s2, 5')
    A(f's_add_u32 s3, s3, {sW}')
    A('s_lshl_b32 s3, s3, 6')
    A(f's_add_u32 s3, s3, {STAMP_OFF}')
    A('s_mov_b64 exec, 1')
    for i in range(16):
        A(f'v_mov_b32 v6, s{48+i}')
        A(f'buffer_store_dword v6, v5, {sWS}, s3 offen offset:{4*i}')
    A.label('L_end2')
A('s_endpgm')

hdr=open('cdna_kernels/'+NAME+'.s.ref').read().split('; @launch')[0]
out=hdr+f'; @launch grid=(256,1,1) block=(320,1,1) lds={LDS_SIZE}\n'
out+='.amdgcn_target "amdgcn-amd-amdhsa--gfx950"\n.text\n'
out+=f'.globl {NAME}_kernel\n.p2align 8\n.type {NAME}_kernel,@function\n'
out+=A.text()
out+=f'''.section .rodata,"a"
.p2align 6
.amdhsa_kernel {NAME}_kernel
  .amdhsa_next_free_vgpr 256
  .amdhsa_next_free_sgpr 102
  .amdhsa_accum_offset 128
  .amdhsa_group_segment_fixed_size 0
  .amdhsa_kernarg_size 96
  .amdhsa_user_sgpr_count 2
  .amdhsa_user_sgpr_kernarg_segment_ptr 1
  .amdhsa_system_sgpr_workgroup_id_x 1
.end_amdhsa_kernel
'''
open(sys.argv[1],'w').write(out)
print('lines',len(A.lines))
```

```python
import sys, os, struct
from asmlib import Asm

NAME='sequential_preLN__gqa_block_cached__geglu_ffn__decode'
D = int(sys.argv[2]) if len(sys.argv)>2 else 12
STAMP=int(os.environ.get('STAMP','0'))
P1=[int(x) for x in os.environ.get('P1','0,8,16,24').split(',')]
PZ=[int(x) for x in os.environ.get('PZ','16,24,32,40,48,56').split(',')]
SPIN=100000
SLF=int(os.environ.get('SLF','8'))
SLZ=int(os.environ.get('SLZ','8'))

Q_OFF=0x0; S1_OFF=0x2000; O1_OFF=0x4000; P2_OFF=0x84000; P3_OFF=0x8C000; WS_SIZE=0xBD000
STAMP_OFF=0x100000
if STAMP: WS_SIZE=0x200000
OOB=0x80000000
L_XN=0; L_Q=2048; L_P=4096; L_OW=6144; L_ST=14336; L_OV=14400; L_RED2=15424; L_ST3=19520; L_HN=19584
L_CNT=19552; L_FLAG=19556; L_GU=21376; L_RED3=21376; L_RED4=25472; L_W=32768; L_V=32768; LDS_SIZE=163840
LOG2E=1.4426950408889634
def f2u(x): return struct.unpack('<I',struct.pack('<f',x))[0]

A=Asm()
sK='s[4:7]'; sV='s[8:11]'; sWS='s[12:15]'; sDB='s[16:19]'; sX='s[20:23]'; sWQ='s[24:27]'; sWO='s[28:31]'
sWG='s[32:35]'; sWU='s[36:39]'; sWD='s[40:43]'; sOUT='s[44:47]'
sH='s72'; sS='s73'; sW='s74'; sT0='s75'; sT1='s76'; sT2='s77'; sT3='s78'; sKB='s79'; sVB='s80'; sJ='s81'; sN='s82'; sF='s83'
sOOB='s84'; sC0='s85'; sC1='s86'; sROLE='s87'; sC3='s88'
sA0=90

def srd(base, p, size):
    A(f's_mov_b32 s{base}, s{p}')
    A(f's_and_b32 s{base+1}, s{p+1}, 0xffff')
    A(f's_mov_b32 s{base+2}, {size}')
    A(f's_mov_b32 s{base+3}, 0x00020000')
def stamp(i):
    if not STAMP: return
    A('s_memrealtime s[100:101]')
    A('s_waitcnt lgkmcnt(0)')
    A(f's_mov_b32 s{48+i}, s100')
def guard(go):
    A('s_add_u32 s89, s89, 1')
    A(f's_cmp_gt_u32 s89, {SPIN}')
    A(f's_cbranch_scc1 {go}')
def allreduce(op, v, t, lo=True, x16=True, x32=True):
    ins = 'v_add_f32' if op=='add' else 'v_max_f32'
    if lo:
        for m in ('quad_perm:[1,0,3,2]','quad_perm:[2,3,0,1]','row_half_mirror','row_mirror'):
            A(f'{ins}_dpp v{v}, v{v}, v{v} {m} row_mask:0xf bank_mask:0xf')
    if x16:
        A(f'v_mov_b32 v{t}, v{v}'); A(f'v_permlane16_swap_b32 v{v}, v{t}'); A(f'{ins} v{v}, v{v}, v{t}')
    if x32:
        A(f'v_mov_b32 v{t}, v{v}'); A(f'v_permlane32_swap_b32 v{v}, v{t}'); A(f'{ins} v{v}, v{v}, v{t}')
def bf16round(v):
    A(f'v_cvt_pk_bf16_f32 v{v}, v{v}, v{v}')
    A(f'v_and_b32 v{v}, 0xffff0000, v{v}')
def unpack(src, dst):
    A(f'v_lshlrev_b32 v{dst}, 16, {src}')
    A(f'v_and_b32 v{dst+1}, 0xffff0000, {src}')
def fdiv(d, num, den, r, t):
    A(f'v_mul_f32 v{d}, v{num}, v{r}')
    A(f'v_fma_f32 v{t}, -v{d}, v{den}, v{num}')
    A(f'v_fma_f32 v{d}, v{t}, v{r}, v{d}')
def sentinel_check(regs, t, fail_label):
    regs=list(regs)
    A(f'v_max_u32 v{t}, v{regs[0]}, v{regs[1]}')
    i=2
    while i<len(regs):
        if i+1<len(regs):
            A(f'v_max3_u32 v{t}, v{t}, v{regs[i]}, v{regs[i+1]}'); i+=2
        else:
            A(f'v_max_u32 v{t}, v{t}, v{regs[i]}'); i+=1
    A(f'v_cmp_eq_u32 vcc, -1, v{t}')
    A('s_nop 1')
    A(f's_cbranch_vccnz {fail_label}')
def layernorm_consts(mean, var, t0):
    bf16round(mean); bf16round(var)
    A(f'v_add_f32 v{var}, {hex(f2u(1e-5))}, v{var}')
    bf16round(var)
    A(f'v_sqrt_f32 v{var}, v{var}')
    bf16round(var)
    A(f'v_rcp_f32 v{t0}, v{var}')
def fma8(acc, raw, mul, tmp):
    for k in range(4): unpack(f'v{raw+k}', tmp+2*k)
    for k in range(4):
        A(f'v_pk_fma_f32 v[{acc+2*k}:{acc+2*k+1}], v[{tmp+2*k}:{tmp+2*k+1}], v[{mul}:{mul+1}], v[{acc+2*k}:{acc+2*k+1}] op_sel_hi:[1,0,1]')

A.raw(f'{NAME}_kernel:')
A('s_cmp_ge_u32 s2, 256')
A('s_cbranch_scc1 L_end')
A('s_load_dwordx16 s[48:63], s[0:1], 0')
A('s_load_dwordx8 s[64:71], s[0:1], 64')
A('v_and_b32 v1, 63, v0')
A('v_lshrrev_b32 v6, 6, v0')
A(f'v_readfirstlane_b32 {sW}, v6')
A(f's_and_b32 {sH}, s2, 7')
A(f's_lshr_b32 {sS}, s2, 3')
A(f's_mov_b32 {sOOB}, {hex(OOB)}')
A('s_mov_b32 s89, 0')
A('v_and_b32 v6, 15, v1')
A('v_lshrrev_b32 v7, 4, v1')
A('v_lshlrev_b32 v2, 9, v6')
A('v_lshl_add_u32 v2, v7, 4, v2')
A('v_lshlrev_b32 v3, 4, v1')
A(f'v_mov_b32 v8, {sOOB}')
A('s_waitcnt lgkmcnt(0)')
srd(4,50,33554432); srd(8,52,33554432); srd(12,70,WS_SIZE); srd(16,68,256); srd(20,48,896)
srd(24,54,3670016); srd(28,56,3670016); srd(32,60,1605632); srd(36,62,1605632); srd(40,64,1605632); srd(44,66,896)
if STAMP:
    for i in range(1,16): A(f's_mov_b32 s{48+i}, 0')
stamp(0)
A(f's_mov_b32 {sROLE}, 0')
A(f's_cmp_lt_u32 {sS}, 14')
A(f's_cselect_b32 {sROLE}, 1, {sROLE}')
A(f's_sub_u32 {sT0}, {sS}, 16')
A(f's_cmp_lt_u32 {sT0}, 14')
A(f's_cselect_b32 {sROLE}, 2, {sROLE}')
A(f's_sub_u32 {sT0}, {sS}, 14')
A(f's_cmp_lt_u32 {sT0}, 2')
A(f's_cselect_b32 {sT1}, 1, 0')
A(f's_cmp_lt_u32 {sH}, 7')
A(f's_cselect_b32 {sT1}, {sT1}, 0')
A(f's_cmp_eq_u32 {sT1}, 1')
A(f's_cselect_b32 {sROLE}, 3, {sROLE}')
A(f's_cmp_ge_u32 {sS}, 7')
A(f's_cselect_b32 {sT0}, 1, 0')
A(f's_lshl_b32 {sJ}, {sH}, 1')
A(f's_add_u32 {sJ}, {sJ}, {sT0}')
A(f's_mul_i32 {sT0}, {sT0}, 7')
A(f's_sub_u32 {sN}, {sS}, {sT0}')
A(f's_mul_i32 {sF}, {sH}, 14')
A(f's_add_u32 {sF}, {sF}, {sS}')
A(f's_sub_u32 {sF}, {sF}, 16')
A(f's_cmp_eq_u32 {sW}, 4')
A('s_cbranch_scc1 L_helper')

A(f's_lshl_b32 {sKB}, {sH}, 22')
A(f's_lshl_b32 {sT0}, {sS}, 17')
A(f's_add_u32 {sKB}, {sKB}, {sT0}')
A(f's_lshl_b32 {sT0}, {sW}, 15')
A(f's_add_u32 {sKB}, {sKB}, {sT0}')
A(f's_mov_b32 {sVB}, {sKB}')
A(f's_mov_b32 {sC3}, {PZ[0]}')
for i in range(32):
    if PZ[i%len(PZ)]!=PZ[0]:
        A(f's_cmp_eq_u32 {sS}, {i}')
        A(f's_cselect_b32 {sC3}, {PZ[i%len(PZ)]}, {sC3}')
A(f's_mov_b32 s3, {P1[0]}')
for i in range(32):
    if P1[i%len(P1)]!=P1[0]:
        A(f's_cmp_eq_u32 {sS}, {i}')
        A(f's_cselect_b32 s3, {P1[i%len(P1)]}, s3')
def pausept(k):
    if k in P1:
        A(f's_cmp_lg_u32 s3, {k}')
        A(f's_cbranch_scc1 L_p1{k}')
        A('s_waitcnt vmcnt(0)')
        A('s_barrier')
        A('s_barrier')
        A.label(f'L_p1{k}')
    if k in PZ:
        A(f's_cmp_lg_u32 {sC3}, {k}')
        A(f's_cbranch_scc1 L_pz{k}')
        A('s_waitcnt vmcnt(0)')
        A('s_barrier')
        A('s_barrier')
        A.label(f'L_pz{k}')
def kload(n):
    blk,c=divmod(n,8)
    if c==0 and blk>0: A(f's_add_u32 {sKB}, {sKB}, 8192')
    A(f'buffer_load_dwordx4 a[{4*n}:{4*n+3}], v2, {sK}, {sKB} offen offset:{c*64}')
def pace(): A(f's_waitcnt vmcnt({D-1})')
cnt=0
for n in range(8):
    pausept(n)
    kload(n); cnt+=1
A('v_lshrrev_b32 v9, 5, v1')
A('v_and_b32 v10, 31, v1')
for m4 in range(4):
    A(f'v_add_u32 v11, {2*m4}, v9')
    A('v_lshlrev_b32 v11, 1, v11')
    A('v_xor_b32 v11, v11, v10')
    A('v_lshlrev_b32 v11, 4, v11')
    A(f'v_lshl_add_u32 v{120+m4}, v9, 9, v11')
A(f's_lshl_b32 {sT3}, {sW}, 15')
A(f's_add_u32 {sT3}, {sT3}, {L_V}')
def vload(n):
    A(f's_mov_b32 m0, {sT3}')
    A(f's_add_u32 {sT3}, {sT3}, 1024')
    A(f'buffer_load_dwordx4 v{120+n%4}, {sV}, {sVB} offen lds')
    A(f's_add_u32 {sVB}, {sVB}, 1024')
for n in range(8,32):
    pausept(n)
    if cnt>=D: pace()
    kload(n); cnt+=1
for n in range(32):
    pausept(32+n)
    pace(); vload(n)
for k in range(32): A(f'v_mov_b32 v{32+k}, 0')
A('v_and_b32 v9, 15, v1')
A('v_lshrrev_b32 v10, 2, v9')
A('v_lshl_add_u32 v10, v7, 2, v10')
A('v_and_b32 v11, 7, v10')
A('v_and_b32 v9, 3, v9')
A('v_lshlrev_b32 v10, 9, v10')
A('v_lshl_add_u32 v10, v9, 3, v10')
A(f's_lshl_b32 {sT0}, {sW}, 15')
A(f's_add_u32 {sT0}, {sT0}, {L_V}')
A(f'v_add_u32 v10, {sT0}, v10')
for b in range(8):
    A(f'v_xor_b32 v9, {b}, v11')
    A(f'v_lshl_add_u32 v{112+b}, v9, 5, v10')
A('v_and_b32 v6, 15, v1')
A('v_cmp_gt_u32 vcc, 2, v6')
stamp(1)
A('s_and_saveexec_b64 s[98:99], vcc')
for c in range(8): A(f'ds_read_b128 v[{32+4*c}:{35+4*c}], v2 offset:{L_Q+64*c}')
A('s_mov_b64 exec, s[98:99]')
A('s_waitcnt vmcnt(32) lgkmcnt(0)')
stamp(3)
for blk in range(4):
    for c in range(8):
        n=blk*8+c
        cin = '0' if c==0 else f'v[{16+4*blk}:{19+4*blk}]'
        A(f'v_mfma_f32_16x16x32_bf16 v[{16+4*blk}:{19+4*blk}], a[{4*n}:{4*n+3}], v[{32+4*c}:{35+4*c}], {cin}')
for k in range(0,16,2):
    A(f'v_cvt_pk_bf16_f32 v9, v{16+k}, v{17+k}')
    A(f'v_lshlrev_b32 v{16+k}, 16, v9')
    A(f'v_and_b32 v{17+k}, 0xffff0000, v9')
for k in range(16): A(f'v_mul_f32 v{16+k}, {hex(f2u(0.0625*LOG2E))}, v{16+k}')
A('v_max_f32 v9, v16, v17')
for k in range(2,16,2): A(f'v_max3_f32 v9, v9, v{16+k}, v{17+k}')
allreduce('max',9,10,lo=False)
for k in range(16): A(f'v_sub_f32 v{16+k}, v{16+k}, v9')
for k in range(16): A(f'v_exp_f32 v{16+k}, v{16+k}')
for k in range(8): A(f'v_cvt_pk_bf16_f32 v{104+k}, v{16+2*k}, v{17+2*k}')
stamp(4)
ACC=40
def pv_half(kb, first):
    def rd(t, buf):
        a,b=divmod(t,8)
        for u in range(2):
            A(f'ds_read_b64_tr_b16 v[{buf+2*u}:{buf+2*u+1}], v{112+b} offset:{a*256+kb*16384+u*8192}')
    rd(0,32)
    for t in range(16):
        buf=32+4*(t%2)
        if t<15: rd(t+1, 32+4*((t+1)%2))
        A(f's_waitcnt lgkmcnt({2 if t<15 else 0})')
        cin = '0' if first else f'v[{ACC+4*t}:{ACC+4*t+3}]'
        A(f'v_mfma_f32_16x16x32_bf16 v[{ACC+4*t}:{ACC+4*t+3}], v[{buf}:{buf+3}], v[{104+4*kb}:{107+4*kb}], {cin}')
A('v_lshlrev_b32 v11, 16, v104')
A('v_and_b32 v12, 0xffff0000, v104')
A('v_add_f32 v11, v11, v12')
for k in range(1,8):
    A(f'v_lshlrev_b32 v12, 16, v{104+k}')
    A('v_add_f32 v11, v11, v12')
    A(f'v_and_b32 v12, 0xffff0000, v{104+k}')
    A('v_add_f32 v11, v11, v12')
allreduce('add',11,10,lo=False)
A('v_and_b32 v12, 15, v1')
A('v_lshlrev_b32 v12, 2, v12')
A(f's_lshl_b32 {sT1}, {sW}, 4')
A(f'v_add_u32 v12, {sT1}, v12')
A('s_and_saveexec_b64 s[98:99], vcc')
A(f'ds_write_b32 v12, v9 offset:{L_ST}')
A(f'ds_write_b32 v12, v11 offset:{L_ST+8}')
A('s_mov_b64 exec, s[98:99]')
A('s_waitcnt vmcnt(16) lgkmcnt(0)')
pv_half(0, True)
A('s_waitcnt vmcnt(0)')
pv_half(1, False)
stamp(5)
A('v_and_b32 v12, 15, v1')
A('v_lshlrev_b32 v12, 10, v12')
A('v_lshl_add_u32 v12, v7, 4, v12')
A(f's_lshl_b32 {sT0}, {sW}, 11')
A(f'v_add_u32 v12, {sT0}, v12')
A('s_and_saveexec_b64 s[98:99], vcc')
for t in range(16):
    A(f'ds_write_b128 v12, v[{ACC+4*t}:{ACC+4*t+3}] offset:{L_OW+64*t}')
A('s_mov_b64 exec, s[98:99]')
A('v_mov_b32 v13, 0')
A('v_mov_b32 v14, 1')
A('s_waitcnt lgkmcnt(0)')
A('s_mov_b64 exec, 1')
A(f'ds_add_u32 v13, v14 offset:{L_CNT}')
A('s_mov_b64 exec, -1')
A(f's_cmp_ge_u32 {sW}, 2')
A('s_cbranch_scc1 L_nopub')
A.label('L_b3spin')
A(f'ds_read_b32 v14, v13 offset:{L_CNT}')
A('s_waitcnt lgkmcnt(0)')
A('v_cmp_gt_u32 vcc, 4, v14')
A('s_nop 1')
A('s_cbranch_vccz L_b3ok')
guard('L_b3ok')
A('s_branch L_b3spin')
A.label('L_b3ok')
A(f's_lshl_b32 {sT0}, {sW}, 2')
A(f'v_mov_b32 v12, {sT0}')
for w in range(4):
    A(f'ds_read_b32 v{16+w}, v12 offset:{L_ST+16*w}')
    A(f'ds_read_b32 v{20+w}, v12 offset:{L_ST+16*w+8}')
A(f's_lshl_b32 {sT0}, {sW}, 10')
A(f'v_add_u32 v13, {sT0}, v3')
for w in range(4): A(f'ds_read_b128 v[{32+4*w}:{35+4*w}], v13 offset:{L_OW+2048*w}')
A('s_waitcnt lgkmcnt(4)')
A('v_max_f32 v10, v16, v17')
A('v_max3_f32 v10, v10, v18, v19')
for w in range(4): A(f'v_sub_f32 v{16+w}, v{16+w}, v10')
for w in range(4): A(f'v_exp_f32 v{16+w}, v{16+w}')
A('v_mul_f32 v11, v16, v20')
for w in range(1,4): A(f'v_fmac_f32 v11, v{16+w}, v{20+w}')
A('s_waitcnt lgkmcnt(0)')
for e in range(4): A(f'v_mul_f32 v{24+e}, v{32+e}, v16')
for w in range(1,4):
    for e in range(4): A(f'v_fmac_f32 v{24+e}, v{32+4*w+e}, v{16+w}')
for e in range(4): A(f'v_min_u32 v{24+e}, 0xfffffffe, v{24+e}')
A('v_min_u32 v10, 0xfffffffe, v10')
A('v_min_u32 v11, 0xfffffffe, v11')
A(f's_lshl_b32 {sT0}, {sH}, 1')
A(f's_add_u32 {sT0}, {sT0}, {sW}')
A(f's_lshl_b32 {sT0}, {sT0}, 5')
A(f's_add_u32 {sT0}, {sT0}, {sS}')
A(f's_lshl_b32 {sT1}, {sT0}, 10')
A(f's_add_u32 {sT1}, {sT1}, {O1_OFF}')
A(f'buffer_store_dwordx4 v[24:27], v3, {sWS}, {sT1} offen sc1')
A(f's_lshl_b32 {sT1}, {sT0}, 3')
A(f's_add_u32 {sT1}, {sT1}, {S1_OFF}')
A('v_cmp_eq_u32 vcc, 0, v1')
A('v_cndmask_b32 v13, v8, v1, vcc')
A(f'buffer_store_dwordx2 v[10:11], v13, {sWS}, {sT1} offen sc1')
A('v_mov_b32 v13, 0')
A('v_mov_b32 v14, 1')
A('s_waitcnt vmcnt(0)')
A('s_mov_b64 exec, 1')
A(f'ds_add_u32 v13, v14 offset:{L_CNT}')
A('s_mov_b64 exec, -1')
A.label('L_nopub')
stamp(6)
A(f's_cmp_eq_u32 {sROLE}, 0')
A('s_cbranch_scc1 L_end')
A('v_mov_b32 v13, 0')
A.label('L_b4spin')
A(f'ds_read_b32 v14, v13 offset:{L_FLAG}')
A('s_waitcnt lgkmcnt(0)')
A('v_cmp_ne_u32 vcc, 1, v14')
A('s_nop 1')
A('s_cbranch_vccz L_b4ok')
guard('L_b4ok')
A('s_sleep 1')
A('s_branch L_b4spin')
A.label('L_b4ok')
A(f's_cmp_eq_u32 {sROLE}, 2')
A('s_cbranch_scc1 L_ffn')
A(f's_cmp_eq_u32 {sROLE}, 3')
A('s_cbranch_scc1 L_fin')

A('v_lshlrev_b32 v9, 3, v7')
A('v_and_b32 v10, 15, v1')
A('v_lshlrev_b32 v10, 4, v10')
A('v_lshl_add_u32 v10, v7, 10, v10')
A(f's_lshl_b32 {sC0}, {sJ}, 8')
A(f's_add_u32 {sC0}, {sC0}, {S1_OFF}')
A(f's_lshl_b32 {sC1}, {sJ}, 15')
A(f's_lshl_b32 {sT0}, {sW}, 8')
A(f's_add_u32 {sC1}, {sC1}, {sT0}')
A(f's_add_u32 {sC1}, {sC1}, {O1_OFF}')
SR=16; OR_=32; WR=64
def wo_poll_issue():
    for i in range(8):
        A(f'buffer_load_dwordx2 v[{SR+2*i}:{SR+1+2*i}], v9, {sWS}, {sC0} offen offset:{32*i} sc1')
    A(f's_mov_b32 {sT0}, {sC1}')
    for i in range(8):
        A(f'buffer_load_dwordx4 v[{OR_+4*i}:{OR_+3+4*i}], v10, {sWS}, {sT0} offen sc1')
        if i<7: A(f's_add_u32 {sT0}, {sT0}, 4096')
A(f's_lshl_b32 {sT0}, {sW}, 13')
A(f'v_add_u32 v12, {sT0}, v3')
for i in range(8): A(f'ds_read_b128 v[{WR+4*i}:{WR+3+4*i}], v12 offset:{L_W+1024*i}')
A('v_and_b32 v12, 31, v1')
A('v_lshlrev_b32 v12, 3, v12')
A.label('L_wopre')
A(f'buffer_load_dwordx2 v[{SR}:{SR+1}], v12, {sWS}, {sC0} offen sc1')
A('s_waitcnt vmcnt(0)')
sentinel_check([SR,SR+1], 11, 'L_wopre2')
A('s_branch L_wore3')
A.label('L_wopre2')
guard('L_wore3')
A('s_sleep 1')
A('s_branch L_wopre')
A.label('L_wore3')
wo_poll_issue()
A.label('L_wopoll')
A('s_waitcnt vmcnt(0)')
sentinel_check(range(16,64), 11, 'L_wore')
A('s_branch L_wogo')
A.label('L_wore')
guard('L_wogo')
A('s_sleep 1')
wo_poll_issue()
A('s_branch L_wopoll')
A.label('L_wogo')
stamp(8)
A(f'v_max_f32 v11, v{SR}, v{SR+2}')
for i in range(2,8,2): A(f'v_max3_f32 v11, v11, v{SR+2*i}, v{SR+2+2*i}')
allreduce('max',11,12,lo=False)
for i in range(8): A(f'v_sub_f32 v{SR+2*i}, v{SR+2*i}, v11')
for i in range(8): A(f'v_exp_f32 v{SR+2*i}, v{SR+2*i}')
A(f'v_mul_f32 v11, v{SR}, v{SR+1}')
for i in range(1,8): A(f'v_fmac_f32 v11, v{SR+2*i}, v{SR+1+2*i}')
allreduce('add',11,12,lo=False)
A('v_rcp_f32 v12, v11')
for e in range(4): A(f'v_mul_f32 v{96+e}, v{OR_+e}, v{SR}')
for i in range(1,8):
    for e in range(4): A(f'v_fmac_f32 v{96+e}, v{OR_+4*i+e}, v{SR+2*i}')
for e in range(4): allreduce('add',96+e,100+e,lo=False)
for e in range(4):
    fdiv(104+e,96+e,11,12,100+e)
    bf16round(104+e)
A('v_and_b32 v13, 15, v1')
A('v_lshlrev_b32 v13, 4, v13')
A(f's_lshl_b32 {sT0}, {sW}, 8')
A(f'v_add_u32 v13, {sT0}, v13')
A(f'ds_write_b128 v13, v[104:107] offset:{L_OV}')
A('v_lshrrev_b32 v13, 3, v1')
A('v_lshlrev_b32 v13, 2, v13')
A(f'v_add_u32 v13, {sT0}, v13')
A('s_waitcnt lgkmcnt(0)')
for i in range(8): A(f'ds_read_b32 v{32+2*i}, v13 offset:{L_OV+32*i}')
for k in range(8): A(f'v_mov_b32 v{16+k}, 0')
for i in range(8):
    for k in range(4): unpack(f'v{WR+4*i+k}', 96+2*k)
    A(f's_waitcnt lgkmcnt({7-i})')
    for k in range(4):
        A(f'v_pk_fma_f32 v[{16+2*k}:{17+2*k}], v[{96+2*k}:{97+2*k}], v[{32+2*i}:{33+2*i}], v[{16+2*k}:{17+2*k}] op_sel_hi:[1,0,1]')
for k in range(8):
    A(f'v_add_f32_dpp v{16+k}, v{16+k}, v{16+k} row_ror:8 row_mask:0xf bank_mask:0xf')
A('v_and_b32 v13, 7, v1')
A('v_lshlrev_b32 v13, 5, v13')
A('v_lshl_add_u32 v13, v7, 8, v13')
A(f's_lshl_b32 {sT0}, {sW}, 10')
A(f'v_add_u32 v13, {sT0}, v13')
A(f'ds_write_b128 v13, v[16:19] offset:{L_RED2}')
A(f'ds_write_b128 v13, v[20:23] offset:{L_RED2+16}')
A('s_waitcnt lgkmcnt(0)')
A('s_barrier')
A(f's_cmp_lg_u32 {sW}, 0')
A('s_cbranch_scc1 L_end')
A('v_lshlrev_b32 v13, 2, v1')
for k in range(16): A(f'ds_read_b32 v{16+k}, v13 offset:{L_RED2+256*k}')
A('s_waitcnt lgkmcnt(0)')
for st in (8,4,2,1):
    for k in range(st): A(f'v_add_f32 v{16+k}, v{16+k}, v{16+k+st}')
A('v_min_u32 v16, 0xfffffffe, v16')
A(f's_mul_i32 {sT1}, {sJ}, 1792')
A(f's_lshl_b32 {sT2}, {sN}, 8')
A(f's_add_u32 {sT1}, {sT1}, {sT2}')
A(f's_add_u32 {sT1}, {sT1}, {P2_OFF}')
A(f'buffer_store_dword v16, v13, {sWS}, {sT1} offen sc1')
stamp(9)
A('s_branch L_end')

A.label('L_ffn')
A('v_and_b32 v11, 31, v1')
A('v_cmp_gt_u32 vcc, 28, v11')
A('v_lshlrev_b32 v12, 3, v11')
A('v_cndmask_b32 v12, v8, v12, vcc')
A(f's_mul_i32 {sT0}, {sW}, 224')
A(f'buffer_load_dwordx2 v[4:5], v12, {sX}, {sT0} offen')
A('v_lshlrev_b32 v14, 4, v11')
A('v_lshrrev_b32 v12, 5, v1')
A('v_mul_u32_u24 v12, 1792, v12')
A('v_add_u32 v14, v14, v12')
A('v_cndmask_b32 v14, v8, v14, vcc')
A('v_and_b32 v9, 15, v1')
A('v_lshrrev_b32 v10, 2, v9')
A('v_and_b32 v9, 3, v9')
A('v_lshl_add_u32 v12, v7, 2, v10')
A('v_mul_u32_u24 v12, 896, v12')
A('v_lshl_add_u32 v12, v9, 3, v12')
A(f's_mul_i32 {sT0}, {sW}, 224')
A(f's_add_u32 {sT0}, {sT0}, {L_W+28672}')
A(f'v_add_u32 v12, {sT0}, v12')
for t in range(7): A(f'ds_read_b64_tr_b16 v[{48+2*t}:{49+2*t}], v12 offset:{32*t}')
A(f's_cmp_ge_u32 {sW}, 2')
A('s_cbranch_scc1 L_ffnogu')
A('v_lshl_add_u32 v12, v7, 3, v10')
A('v_lshlrev_b32 v12, 5, v12')
A('v_lshl_add_u32 v12, v9, 3, v12')
A(f's_mul_i32 {sT0}, {sW}, 14336')
A(f's_add_u32 {sT0}, {sT0}, {L_W}')
A(f'v_add_u32 v12, {sT0}, v12')
for ks in range(14):
    for u in range(2):
        A(f'ds_read_b64_tr_b16 v[{64+4*ks+2*u}:{65+4*ks+2*u}], v12 offset:{1024*ks+128*u}')
A.label('L_ffnogu')
stamp(7)
A(f's_mul_i32 {sC0}, {sW}, 448')
A(f's_add_u32 {sC0}, {sC0}, {P2_OFF}')
A(f's_add_u32 {sT1}, {sC0}, {7*3584}')
A.label('L_ffpre')
A(f'buffer_load_dwordx4 v[16:19], v14, {sWS}, {sT1} offen sc1')
A('s_waitcnt vmcnt(0)')
sentinel_check(range(16,20), 9, 'L_ffpre2')
A('s_branch L_ffpoll')
A.label('L_ffpre2')
guard('L_ffpoll')
A(f's_sleep {SLF}')
A('s_branch L_ffpre')
A.label('L_ffpoll')
A(f's_mov_b32 {sT0}, {sC0}')
for i in range(8):
    A(f'buffer_load_dwordx4 v[{16+4*i}:{19+4*i}], v14, {sWS}, {sT0} offen sc1')
    if i<7: A(f's_add_u32 {sT0}, {sT0}, 3584')
A('s_waitcnt vmcnt(0)')
sentinel_check(range(16,48), 9, 'L_ffre')
A('s_branch L_ffgo')
A.label('L_ffre')
guard('L_ffgo')
A('s_sleep 1')
A('s_branch L_ffpoll')
A.label('L_ffgo')
stamp(8)
for st in (16,8,4):
    for k in range(st): A(f'v_add_f32 v{16+k}, v{16+k}, v{16+k+st}')
unpack('v4',24); unpack('v5',26)
for e in range(4): allreduce('add',16+e,20+e,lo=False,x16=False)
for e in range(4):
    bf16round(16+e)
    A(f'v_add_f32 v{16+e}, v{16+e}, v{24+e}')
    bf16round(16+e)
A('v_add_f32 v9, v16, v17')
A('v_add_f32 v10, v18, v19')
A('v_add_f32 v9, v9, v10')
allreduce('add',9,10)
A(f'v_mul_f32 v9, {hex(f2u(1.0/224))}, v9')
A('v_mov_b32 v11, 0')
for e in range(4):
    A(f'v_sub_f32 v10, v{16+e}, v9')
    A('v_fmac_f32 v11, v10, v10')
A('v_and_b32 v12, 31, v1')
A('v_cmp_gt_u32 vcc, 28, v12')
A('v_cndmask_b32 v11, 0, v11, vcc')
allreduce('add',11,10)
A('v_mul_f32 v11, 0.5, v11')
A('v_mov_b32 v10, v9')
A(f's_lshl_b32 {sT0}, {sW}, 3')
A(f'v_mov_b32 v12, {sT0}')
A(f'ds_write_b64 v12, v[10:11] offset:{L_ST3}')
A('s_waitcnt lgkmcnt(0)')
A('s_barrier')
A('v_mov_b32 v12, 0')
A(f'ds_read_b128 v[20:23], v12 offset:{L_ST3}')
A(f'ds_read_b128 v[24:27], v12 offset:{L_ST3+16}')
A('s_waitcnt lgkmcnt(0)')
A('v_add_f32 v9, v20, v22')
A('v_add_f32 v10, v24, v26')
A('v_add_f32 v9, v9, v10')
A('v_mul_f32 v9, 0.25, v9')
A('v_add_f32 v11, v21, v23')
A('v_add_f32 v10, v25, v27')
A('v_add_f32 v11, v11, v10')
A('v_mov_b32 v13, 0')
for r in (20,22,24,26):
    A(f'v_sub_f32 v10, v{r}, v9')
    A('v_fmac_f32 v13, v10, v10')
A(f'v_mov_b32 v10, {hex(f2u(112.0))}')
A('v_fmac_f32 v11, v13, v10')
A(f'v_mul_f32 v11, {hex(f2u(1.0/448))}, v11')
layernorm_consts(9,11,10)
for e in range(4):
    A(f'v_sub_f32 v{20+e}, v{16+e}, v9')
    bf16round(20+e)
    fdiv(24+e,20+e,11,10,12)
A('v_cvt_pk_bf16_f32 v24, v24, v25')
A('v_cvt_pk_bf16_f32 v25, v26, v27')
A('v_and_b32 v12, 31, v1')
A('v_cmp_gt_u32 vcc, 28, v12')
A('v_lshlrev_b32 v12, 3, v12')
A(f's_mul_i32 {sT0}, {sW}, 224')
A(f'v_add_u32 v12, {sT0}, v12')
A('s_and_saveexec_b64 s[98:99], vcc')
A(f'ds_write_b64 v12, v[24:25] offset:{L_HN}')
A('s_mov_b64 exec, s[98:99]')
for k in range(28): A(f'v_mov_b32 v{16+k}, 0')
A('v_and_b32 v9, 15, v1')
A('v_cmp_eq_u32 vcc, 0, v9')
A('v_lshlrev_b32 v12, 4, v7')
A('s_waitcnt lgkmcnt(0)')
A('s_barrier')
A(f's_cmp_ge_u32 {sW}, 2')
A('s_cbranch_scc1 L_ffnomm')
for hb in range(2):
    A('s_and_saveexec_b64 s[98:99], vcc')
    for k in range(7): A(f'ds_read_b128 v[{16+4*k}:{19+4*k}], v12 offset:{L_HN+64*(7*hb+k)}')
    A('s_mov_b64 exec, s[98:99]')
    for k in range(7):
        ks=7*hb+k
        A(f's_waitcnt lgkmcnt({6-k})')
        cin='0' if ks==0 else 'v[44:47]'
        A(f'v_mfma_f32_16x16x32_bf16 v[44:47], v[{64+4*ks}:{67+4*ks}], v[{16+4*k}:{19+4*k}], {cin}')
for e in range(4): bf16round(44+e)
A(f's_lshl_b32 {sT0}, {sW}, 6')
A(f'v_add_u32 v13, {sT0}, v12')
A('s_and_saveexec_b64 s[98:99], vcc')
A(f'ds_write_b128 v13, v[44:47] offset:{L_GU}')
A('s_mov_b64 exec, s[98:99]')
A.label('L_ffnomm')
A('s_waitcnt lgkmcnt(0)')
A('s_barrier')
A(f'ds_read_b128 v[16:19], v12 offset:{L_GU}')
A(f'ds_read_b128 v[20:23], v12 offset:{L_GU+64}')
A(f'v_mov_b32 v28, {hex(f2u(0.044715))}')
A('s_waitcnt lgkmcnt(0)')
for e in range(4): A(f'v_mul_f32 v{24+e}, v{16+e}, v{16+e}')
for e in range(4): A(f'v_fma_f32 v{24+e}, v{24+e}, v28, 1.0')
for e in range(4): A(f'v_mul_f32 v{24+e}, v{24+e}, v{16+e}')
for e in range(4): A(f'v_mul_f32 v{24+e}, {hex(f2u(2.0*0.7978845608028654*LOG2E))}, v{24+e}')
for e in range(4): A(f'v_exp_f32 v{24+e}, v{24+e}')
for e in range(4): A(f'v_add_f32 v{24+e}, 1.0, v{24+e}')
for e in range(4): A(f'v_rcp_f32 v{24+e}, v{24+e}')
for e in range(4): A(f'v_fma_f32 v{24+e}, v{24+e}, -2.0, 2.0')
for e in range(4): A(f'v_mul_f32 v{24+e}, v{24+e}, v{16+e}')
for e in range(4): A(f'v_mul_f32 v{24+e}, 0.5, v{24+e}')
for e in range(4): bf16round(24+e)
for e in range(4): A(f'v_mul_f32 v{24+e}, v{24+e}, v{20+e}')
A('v_cvt_pk_bf16_f32 v24, v24, v25')
A('v_cvt_pk_bf16_f32 v25, v26, v27')
A('v_cndmask_b32 v24, 0, v24, vcc')
A('v_cndmask_b32 v25, 0, v25, vcc')
for t in range(7):
    A(f'v_mfma_f32_16x16x16_bf16 v[{64+4*t}:{67+4*t}], v[{48+2*t}:{49+2*t}], v[24:25], 0')
A('v_cndmask_b32 v13, v8, v12, vcc')
A(f's_mul_i32 {sT1}, {sF}, 1792')
A(f's_mul_i32 {sT0}, {sW}, 448')
A(f's_add_u32 {sT1}, {sT1}, {sT0}')
A(f's_add_u32 {sT1}, {sT1}, {P3_OFF}')
for t in range(7):
    for e in range(4): A(f'v_min_u32 v{64+4*t+e}, 0xfffffffe, v{64+4*t+e}')
    A(f'buffer_store_dwordx4 v[{64+4*t}:{67+4*t}], v13, {sWS}, {sT1} offen offset:{64*t} sc1')
stamp(9)
A('s_branch L_end')

A.label('L_fin')
A(f's_cmp_lg_u32 {sW}, 0')
A('s_cbranch_scc1 L_end')
A(f's_sub_u32 {sN}, {sS}, 14')
A(f's_mul_i32 {sN}, {sN}, 7')
A(f's_add_u32 {sN}, {sN}, {sH}')
A('v_and_b32 v11, 7, v1')
A('v_lshlrev_b32 v12, 3, v11')
A(f's_lshl_b32 {sT0}, {sN}, 6')
A(f'buffer_load_dwordx2 v[48:49], v12, {sX}, {sT0} offen')
A('v_lshlrev_b32 v14, 4, v11')
A('v_lshrrev_b32 v10, 3, v1')
A('v_mul_u32_u24 v10, 1792, v10')
A('v_add_u32 v14, v14, v10')
A(f's_lshl_b32 {sC0}, {sN}, 7')
A(f's_add_u32 {sC1}, {sC0}, {P3_OFF}')
A(f's_add_u32 {sC0}, {sC0}, {P2_OFF}')
A(f's_add_u32 {sT1}, {sC0}, 14336')
def red8(v,t):
    A(f'v_add_f32_dpp v{v}, v{v}, v{v} row_ror:8 row_mask:0xf bank_mask:0xf')
    allreduce('add',v,t,lo=False)
A.label('L_f2poll')
A(f'buffer_load_dwordx4 v[16:19], v14, {sWS}, {sC0} offen sc1')
A(f'buffer_load_dwordx4 v[20:23], v14, {sWS}, {sT1} offen sc1')
A('s_waitcnt vmcnt(0)')
sentinel_check(range(16,24), 9, 'L_f2re')
A('s_branch L_f2go')
A.label('L_f2re')
guard('L_f2go')
A(f's_sleep {SLZ}')
A('s_branch L_f2poll')
A.label('L_f2go')
stamp(7)
unpack('v48',50); unpack('v49',52)
for k in range(4): A(f'v_add_f32 v{16+k}, v{16+k}, v{20+k}')
for e in range(4): red8(16+e,20+e)
for e in range(4):
    bf16round(16+e)
    A(f'v_add_f32 v{16+e}, v{16+e}, v{50+e}')
    bf16round(16+e)
A(f's_add_u32 {sT1}, {sC1}, {13*14336}')
A.label('L_f3pre')
A(f'buffer_load_dwordx4 v[64:67], v14, {sWS}, {sT1} offen sc1')
A('s_waitcnt vmcnt(0)')
sentinel_check(range(64,68), 9, 'L_f3pre2')
A('s_branch L_f3poll')
A.label('L_f3pre2')
guard('L_f3poll')
A('s_sleep 2')
A('s_branch L_f3pre')
A.label('L_f3poll')
A(f's_mov_b32 {sT0}, {sC1}')
for i in range(14):
    A(f'buffer_load_dwordx4 v[{64+4*i}:{67+4*i}], v14, {sWS}, {sT0} offen sc1')
    if i<13: A(f's_add_u32 {sT0}, {sT0}, 14336')
A('s_waitcnt vmcnt(0)')
sentinel_check(range(64,120), 9, 'L_f3re')
A('s_branch L_f3go')
A.label('L_f3re')
guard('L_f3go')
A('s_branch L_f3poll')
A.label('L_f3go')
stamp(8)
for i in range(7):
    for e in range(4): A(f'v_add_f32 v{64+4*i+e}, v{64+4*i+e}, v{92+4*i+e}')
for i in range(3):
    for e in range(4): A(f'v_add_f32 v{64+4*i+e}, v{64+4*i+e}, v{80+4*i+e}')
for e in range(4): A(f'v_add_f32 v{64+e}, v{64+e}, v{68+e}')
for e in range(4): A(f'v_add_f32 v{72+e}, v{72+e}, v{76+e}')
for e in range(4): A(f'v_add_f32 v{64+e}, v{64+e}, v{72+e}')
for e in range(4): red8(64+e,20+e)
for e in range(4):
    bf16round(64+e)
    A(f'v_add_f32 v{64+e}, v{64+e}, v{16+e}')
A('v_cvt_pk_bf16_f32 v64, v64, v65')
A('v_cvt_pk_bf16_f32 v65, v66, v67')
A('v_cmp_gt_u32 vcc, 8, v1')
A('v_cndmask_b32 v12, v8, v12, vcc')
A(f's_lshl_b32 {sT0}, {sN}, 6')
A(f'buffer_store_dwordx2 v[64:65], v12, {sOUT}, {sT0} offen')
A('s_branch L_end')

A.label('L_helper')
A('s_barrier')
stamp(7)
A(f'buffer_load_dwordx4 v[60:63], v3, {sX}, 0 offen')
A('v_lshrrev_b32 v9, 1, v1')
A('v_lshlrev_b32 v9, 13, v9')
A('v_and_b32 v10, 1, v1')
A('v_lshl_add_u32 v9, v10, 4, v9')
A(f's_lshl_b32 {sC0}, {sH}, 10')
A(f's_lshl_b32 {sT1}, {sS}, 5')
A(f's_add_u32 {sC0}, {sC0}, {sT1}')
A(f's_mov_b32 {sT0}, {sC0}')
for i in range(14):
    A(f'buffer_load_dwordx4 v[{64+4*i}:{67+4*i}], v9, {sWQ}, {sT0} offen nt')
    if i<13: A(f's_add_u32 {sT0}, {sT0}, 262144')
A(f's_cmp_lg_u32 {sROLE}, 1')
A('s_cbranch_scc1 L_hnowo')
A('v_lshrrev_b32 v10, 3, v1')
A('v_mul_u32_u24 v10, 896, v10')
A('v_and_b32 v11, 7, v1')
A('v_lshl_add_u32 v10, v11, 4, v10')
A(f's_lshl_b32 {sT0}, {sJ}, 8')
A(f's_mul_i32 {sT0}, {sT0}, 896')
A(f's_lshl_b32 {sT1}, {sN}, 7')
A(f's_add_u32 {sT0}, {sT0}, {sT1}')
for i in range(32):
    A(f'buffer_load_dwordx4 a[{4*i}:{4*i+3}], v10, {sWO}, {sT0} offen nt')
    if i<31: A(f's_add_u32 {sT0}, {sT0}, {8*896}')
A.label('L_hnowo')
for i in range(4): A(f'v_mov_b32 v{12+i}, -1')
A(f's_lshl_b32 {sT0}, {sH}, 6')
A(f's_add_u32 {sT0}, {sT0}, {sS}')
A(f's_lshl_b32 {sT1}, {sT0}, 10')
A(f's_add_u32 {sT1}, {sT1}, {O1_OFF}')
A(f's_add_u32 {sT2}, {sT1}, 32768')
A(f'buffer_store_dwordx4 v[12:15], v3, {sWS}, {sT1} offen sc1')
A(f'buffer_store_dwordx4 v[12:15], v3, {sWS}, {sT2} offen sc1')
A(f's_lshl_b32 {sT1}, {sT0}, 3')
A(f's_add_u32 {sT1}, {sT1}, {S1_OFF}')
A('v_lshlrev_b32 v10, 8, v1')
A('v_cmp_gt_u32 vcc, 2, v1')
A('v_cndmask_b32 v10, v8, v10, vcc')
A(f'buffer_store_dwordx2 v[12:13], v10, {sWS}, {sT1} offen sc1')
A(f's_cmp_lg_u32 {sROLE}, 1')
A('s_cbranch_scc1 L_noclr2')
A(f's_mul_i32 {sT1}, {sJ}, 1792')
A(f's_lshl_b32 {sT2}, {sN}, 8')
A(f's_add_u32 {sT1}, {sT1}, {sT2}')
A(f's_add_u32 {sT1}, {sT1}, {P2_OFF}')
A('v_cmp_gt_u32 vcc, 16, v1')
A('v_cndmask_b32 v10, v8, v3, vcc')
A(f'buffer_store_dwordx4 v[12:15], v10, {sWS}, {sT1} offen sc1')
A.label('L_noclr2')
A(f's_cmp_lg_u32 {sROLE}, 2')
A('s_cbranch_scc1 L_noclear')
A(f's_mul_i32 {sT1}, {sF}, 1792')
A(f's_add_u32 {sT1}, {sT1}, {P3_OFF}')
A('v_cmp_gt_u32 vcc, 48, v1')
A('v_cndmask_b32 v10, v8, v3, vcc')
A(f'buffer_store_dwordx4 v[12:15], v3, {sWS}, {sT1} offen sc1')
A(f'buffer_store_dwordx4 v[12:15], v10, {sWS}, {sT1} offen offset:1024 sc1')
A.label('L_noclear')
def rolewait(extra, tag):
    A(f's_cmp_lg_u32 {sROLE}, 1')
    A(f's_cbranch_scc1 L_rw{tag}a')
    A(f's_waitcnt vmcnt({36+extra})')
    A(f's_branch L_rw{tag}z')
    A.label(f'L_rw{tag}a')
    A(f's_cmp_lg_u32 {sROLE}, 2')
    A(f's_cbranch_scc1 L_rw{tag}b')
    A(f's_waitcnt vmcnt({5+extra})')
    A(f's_branch L_rw{tag}z')
    A.label(f'L_rw{tag}b')
    A(f's_waitcnt vmcnt({3+extra})')
    A.label(f'L_rw{tag}z')
rolewait(14,'x')
for k in range(4): unpack(f'v{60+k}', 16+2*k)
A('v_add_f32 v9, v16, v17')
for k in range(2,8): A(f'v_add_f32 v9, v9, v{16+k}')
allreduce('add',9,10)
A(f'v_mul_f32 v9, {hex(f2u(1.0/448))}, v9')
A('v_mov_b32 v11, 0')
for k in range(8):
    A(f'v_sub_f32 v10, v{16+k}, v9')
    A(f'v_fmac_f32 v11, v10, v10')
A('v_cmp_gt_u32 vcc, 56, v1')
A('v_cndmask_b32 v11, 0, v11, vcc')
allreduce('add',11,10)
A(f'v_mul_f32 v11, {hex(f2u(1.0/448))}, v11')
layernorm_consts(9,11,10)
for k in range(8):
    A(f'v_sub_f32 v{16+k}, v{16+k}, v9')
    bf16round(16+k)
    fdiv(24+k,16+k,11,10,12)
    bf16round(24+k)
A('v_lshlrev_b32 v12, 5, v1')
A('v_cmp_gt_u32 vcc, 56, v1')
A('s_and_saveexec_b64 s[98:99], vcc')
A(f'ds_write_b128 v12, v[24:27] offset:{L_XN}')
A(f'ds_write_b128 v12, v[28:31] offset:{L_XN+16}')
A('s_mov_b64 exec, s[98:99]')
A('v_lshrrev_b32 v12, 1, v1')
A('v_lshlrev_b32 v12, 2, v12')
A('s_waitcnt lgkmcnt(0)')
for i in range(14): A(f'ds_read_b32 v{32+2*i}, v12 offset:{L_XN+128*i}')
for k in range(8): A(f'v_mov_b32 v{16+k}, 0')
A('s_waitcnt lgkmcnt(0)')
rolewait(0,'w')
stamp(1)
for i in range(14): fma8(16, 64+4*i, 32+2*i, 24)
for m in ('quad_perm:[2,3,0,1]','row_ror:4','row_ror:8'):
    for k in range(8):
        A(f'v_add_f32_dpp v{16+k}, v{16+k}, v{16+k} {m} row_mask:0xf bank_mask:0xf')
for k in range(8): allreduce('add',16+k,24+k,lo=False)
for k in range(4): A(f'v_cvt_pk_bf16_f32 v{16+k}, v{16+2*k}, v{17+2*k}')
A('v_cmp_gt_u32 vcc, 2, v1')
A('v_cndmask_b32 v12, v8, v3, vcc')
A(f's_add_u32 {sT0}, {sC0}, {Q_OFF}')
A(f'buffer_store_dwordx4 v[16:19], v12, {sWS}, {sT0} offen sc1')
A('s_waitcnt vmcnt(0)')
A('v_mov_b32 v12, 1')
A('v_cmp_eq_u32 vcc, 0, v1')
A('v_cndmask_b32 v13, v8, v1, vcc')
A(f's_lshl_b32 {sT0}, {sH}, 5')
A(f's_add_u32 {sT1}, {sT0}, {sS}')
A(f'buffer_store_byte v12, v13, {sDB}, {sT1} offen sc1')
stamp(2)
A('s_barrier')
A('s_barrier')
stamp(6)
A('v_and_b32 v13, 7, v1')
A('v_lshlrev_b32 v13, 2, v13')
A.label('L_fpoll')
A(f'buffer_load_dword v12, v13, {sDB}, {sT0} offen sc1')
A('s_waitcnt vmcnt(0)')
A('v_cmp_ne_u32 vcc, 0x01010101, v12')
A('s_nop 1')
A('s_cbranch_vccz L_fok')
guard('L_fok')
A('s_sleep 2')
A('s_branch L_fpoll')
A.label('L_fok')
stamp(3)
A(f's_lshl_b32 {sT0}, {sH}, 10')
A(f's_add_u32 {sT0}, {sT0}, {Q_OFF}')
A(f'buffer_load_dwordx4 v[16:19], v3, {sWS}, {sT0} offen sc1')
A('s_waitcnt vmcnt(0)')
A(f'ds_write_b128 v3, v[16:19] offset:{L_Q}')
A('v_mov_b32 v12, 0')
A('v_mov_b32 v13, 0')
A(f'ds_write_b64 v12, v[12:13] offset:{L_CNT}')
A('s_waitcnt lgkmcnt(0)')
stamp(4)
A('s_barrier')
A(f's_cmp_eq_u32 {sROLE}, 0')
A('s_cbranch_scc1 L_end')
A('v_mov_b32 v13, 0')
A(f's_cmp_eq_u32 {sROLE}, 2')
A(f's_cselect_b32 {sT2}, 6, 4')
A.label('L_hcnt')
A(f'ds_read_b32 v14, v13 offset:{L_CNT}')
A('s_waitcnt lgkmcnt(0)')
A(f'v_cmp_gt_u32 vcc, {sT2}, v14')
A('s_nop 1')
A('s_cbranch_vccz L_hcntok')
guard('L_hcntok')
A('s_sleep 1')
A('s_branch L_hcnt')
A.label('L_hcntok')
A(f's_cmp_lg_u32 {sROLE}, 1')
A('s_cbranch_scc1 L_hnowo2')
A('s_waitcnt vmcnt(0)')
A(f'v_add_u32 v9, {L_W}, v3')
for i in range(32):
    A(f'ds_write_b128 v9, a[{4*i}:{4*i+3}] offset:{1024*i}')
A.label('L_hnowo2')
A(f's_cmp_lg_u32 {sROLE}, 2')
A('s_cbranch_scc1 L_hnoffn')
A('v_lshrrev_b32 v10, 1, v1')
A('v_mul_u32_u24 v10, 3584, v10')
A('v_and_b32 v11, 1, v1')
A('v_lshl_add_u32 v10, v11, 4, v10')
A(f's_lshl_b32 {sT0}, {sF}, 5')
for i in range(14):
    A(f's_mov_b32 m0, {L_W+1024*i}')
    A('s_nop 0')
    A(f'buffer_load_dwordx4 v10, {sWG}, {sT0} offen nt lds')
    A(f's_mov_b32 m0, {L_W+1024*(14+i)}')
    A('s_nop 0')
    A(f'buffer_load_dwordx4 v10, {sWU}, {sT0} offen nt lds')
    if i<13: A(f's_add_u32 {sT0}, {sT0}, {32*3584}')
A(f's_mul_i32 {sC1}, {sF}, 14336')
for i in range(14):
    A(f's_mov_b32 m0, {L_W+1024*(28+i)}')
    A('s_nop 0')
    A(f'buffer_load_dwordx4 v3, {sWD}, {sC1} offen nt lds')
    if i<13: A(f's_add_u32 {sC1}, {sC1}, 1024')
A.label('L_hnoffn')
A('v_lshlrev_b32 v13, 2, v1')
A.label('L_afpoll')
A(f'buffer_load_dword v12, v13, {sDB}, 0 offen sc1')
A('s_waitcnt vmcnt(0)')
A('v_cmp_ne_u32 vcc, 0x01010101, v12')
A('s_nop 1')
A('s_cbranch_vccz L_afok')
guard('L_afok')
A('s_sleep 8')
A('s_branch L_afpoll')
A.label('L_afok')
stamp(5)
A('v_mov_b32 v12, 0')
A('v_mov_b32 v13, 1')
A('s_waitcnt lgkmcnt(0)')
A(f'ds_write_b32 v12, v13 offset:{L_FLAG}')
A('s_waitcnt lgkmcnt(0)')
A.label('L_end')
if STAMP:
    stamp(10)
    A('s_cmp_ge_u32 s2, 256')
    A('s_cbranch_scc1 L_end2')
    A('v_mov_b32 v5, 0')
    A('s_mul_i32 s3, s2, 5')
    A(f's_add_u32 s3, s3, {sW}')
    A('s_lshl_b32 s3, s3, 6')
    A(f's_add_u32 s3, s3, {STAMP_OFF}')
    A('s_mov_b64 exec, 1')
    for i in range(16):
        A(f'v_mov_b32 v6, s{48+i}')
        A(f'buffer_store_dword v6, v5, {sWS}, s3 offen offset:{4*i}')
    A.label('L_end2')
A('s_endpgm')

hdr=open('cdna_kernels/'+NAME+'.s.ref').read().split('; @launch')[0]
out=hdr+f'; @launch grid=(256,1,1) block=(320,1,1) lds={LDS_SIZE}\n'
out+='.amdgcn_target "amdgcn-amd-amdhsa--gfx950"\n.text\n'
out+=f'.globl {NAME}_kernel\n.p2align 8\n.type {NAME}_kernel,@function\n'
out+=A.text()
out+=f'''.section .rodata,"a"
.p2align 6
.amdhsa_kernel {NAME}_kernel
  .amdhsa_next_free_vgpr 256
  .amdhsa_next_free_sgpr 102
  .amdhsa_accum_offset 128
  .amdhsa_group_segment_fixed_size 0
  .amdhsa_kernarg_size 96
  .amdhsa_user_sgpr_count 2
  .amdhsa_user_sgpr_kernarg_segment_ptr 1
  .amdhsa_system_sgpr_workgroup_id_x 1
.end_amdhsa_kernel
'''
open(sys.argv[1],'w').write(out)
print('lines',len(A.lines))
```

```python
import sys, os, struct
from asmlib import Asm

NAME='sequential_preLN__gqa_block_cached__geglu_ffn__decode'
D = int(sys.argv[2]) if len(sys.argv)>2 else 12
STAMP=int(os.environ.get('STAMP','0'))
P1=[int(x) for x in os.environ.get('P1','0,8,16,24').split(',')]
PZ=[int(x) for x in os.environ.get('PZ','16,24,32,40,48,56').split(',')]
SPIN=100000
SLF=int(os.environ.get('SLF','8'))
SLZ=int(os.environ.get('SLZ','8'))

Q_OFF=0x0; S1_OFF=0x2000; O1_OFF=0x4000; P2_OFF=0x84000; P3_OFF=0x8C000; WS_SIZE=0xBD000
STAMP_OFF=0x100000
if STAMP: WS_SIZE=0x200000
OOB=0x80000000
L_XN=0; L_Q=2048; L_P=4096; L_OW=6144; L_ST=14336; L_OV=14400; L_RED2=15424; L_ST3=19520; L_HN=19584
L_CNT=19552; L_FLAG=19556; L_GU=21376; L_RED3=21376; L_RED4=25472; L_W=32768; L_V=32768; LDS_SIZE=163840
LOG2E=1.4426950408889634
def f2u(x): return struct.unpack('<I',struct.pack('<f',x))[0]

A=Asm()
sK='s[4:7]'; sV='s[8:11]'; sWS='s[12:15]'; sDB='s[16:19]'; sX='s[20:23]'; sWQ='s[24:27]'; sWO='s[28:31]'
sWG='s[32:35]'; sWU='s[36:39]'; sWD='s[40:43]'; sOUT='s[44:47]'
sH='s72'; sS='s73'; sW='s74'; sT0='s75'; sT1='s76'; sT2='s77'; sT3='s78'; sKB='s79'; sVB='s80'; sJ='s81'; sN='s82'; sF='s83'
sOOB='s84'; sC0='s85'; sC1='s86'; sROLE='s87'; sC3='s88'
sA0=90

def srd(base, p, size):
    A(f's_mov_b32 s{base}, s{p}')
    A(f's_and_b32 s{base+1}, s{p+1}, 0xffff')
    A(f's_mov_b32 s{base+2}, {size}')
    A(f's_mov_b32 s{base+3}, 0x00020000')
def stamp(i):
    if not STAMP: return
    A('s_memrealtime s[100:101]')
    A('s_waitcnt lgkmcnt(0)')
    A(f's_mov_b32 s{48+i}, s100')
def guard(go):
    A('s_add_u32 s89, s89, 1')
    A(f's_cmp_gt_u32 s89, {SPIN}')
    A(f's_cbranch_scc1 {go}')
def allreduce(op, v, t, lo=True, x16=True, x32=True):
    ins = 'v_add_f32' if op=='add' else 'v_max_f32'
    if lo:
        for m in ('quad_perm:[1,0,3,2]','quad_perm:[2,3,0,1]','row_half_mirror','row_mirror'):
            A(f'{ins}_dpp v{v}, v{v}, v{v} {m} row_mask:0xf bank_mask:0xf')
    if x16:
        A(f'v_mov_b32 v{t}, v{v}'); A(f'v_permlane16_swap_b32 v{v}, v{t}'); A(f'{ins} v{v}, v{v}, v{t}')
    if x32:
        A(f'v_mov_b32 v{t}, v{v}'); A(f'v_permlane32_swap_b32 v{v}, v{t}'); A(f'{ins} v{v}, v{v}, v{t}')
def bf16round(v):
    A(f'v_cvt_pk_bf16_f32 v{v}, v{v}, v{v}')
    A(f'v_and_b32 v{v}, 0xffff0000, v{v}')
def unpack(src, dst):
    A(f'v_lshlrev_b32 v{dst}, 16, {src}')
    A(f'v_and_b32 v{dst+1}, 0xffff0000, {src}')
def fdiv(d, num, den, r, t):
    A(f'v_mul_f32 v{d}, v{num}, v{r}')
    A(f'v_fma_f32 v{t}, -v{d}, v{den}, v{num}')
    A(f'v_fma_f32 v{d}, v{t}, v{r}, v{d}')
def sentinel_check(regs, t, fail_label):
    regs=list(regs)
    A(f'v_max_u32 v{t}, v{regs[0]}, v{regs[1]}')
    i=2
    while i<len(regs):
        if i+1<len(regs):
            A(f'v_max3_u32 v{t}, v{t}, v{regs[i]}, v{regs[i+1]}'); i+=2
        else:
            A(f'v_max_u32 v{t}, v{t}, v{regs[i]}'); i+=1
    A(f'v_cmp_eq_u32 vcc, -1, v{t}')
    A('s_nop 1')
    A(f's_cbranch_vccnz {fail_label}')
def layernorm_consts(mean, var, t0):
    bf16round(mean); bf16round(var)
    A(f'v_add_f32 v{var}, {hex(f2u(1e-5))}, v{var}')
    bf16round(var)
    A(f'v_sqrt_f32 v{var}, v{var}')
    bf16round(var)
    A(f'v_rcp_f32 v{t0}, v{var}')
def fma8(acc, raw, mul, tmp):
    for k in range(4): unpack(f'v{raw+k}', tmp+2*k)
    for k in range(4):
        A(f'v_pk_fma_f32 v[{acc+2*k}:{acc+2*k+1}], v[{tmp+2*k}:{tmp+2*k+1}], v[{mul}:{mul+1}], v[{acc+2*k}:{acc+2*k+1}] op_sel_hi:[1,0,1]')

A.raw(f'{NAME}_kernel:')
A('s_cmp_ge_u32 s2, 256')
A('s_cbranch_scc1 L_end')
A('s_load_dwordx16 s[48:63], s[0:1], 0')
A('s_load_dwordx8 s[64:71], s[0:1], 64')
A('v_and_b32 v1, 63, v0')
A('v_lshrrev_b32 v6, 6, v0')
A(f'v_readfirstlane_b32 {sW}, v6')
A(f's_and_b32 {sH}, s2, 7')
A(f's_lshr_b32 {sS}, s2, 3')
A(f's_mov_b32 {sOOB}, {hex(OOB)}')
A('s_mov_b32 s89, 0')
A('v_and_b32 v6, 15, v1')
A('v_lshrrev_b32 v7, 4, v1')
A('v_lshlrev_b32 v2, 9, v6')
A('v_lshl_add_u32 v2, v7, 4, v2')
A('v_lshlrev_b32 v3, 4, v1')
A(f'v_mov_b32 v8, {sOOB}')
A('s_waitcnt lgkmcnt(0)')
srd(4,50,33554432); srd(8,52,33554432); srd(12,70,WS_SIZE); srd(16,68,256); srd(20,48,896)
srd(24,54,3670016); srd(28,56,3670016); srd(32,60,1605632); srd(36,62,1605632); srd(40,64,1605632); srd(44,66,896)
if STAMP:
    for i in range(1,16): A(f's_mov_b32 s{48+i}, 0')
stamp(0)
A(f's_mov_b32 {sROLE}, 0')
A(f's_cmp_lt_u32 {sS}, 14')
A(f's_cselect_b32 {sROLE}, 1, {sROLE}')
A(f's_sub_u32 {sT0}, {sS}, 16')
A(f's_cmp_lt_u32 {sT0}, 14')
A(f's_cselect_b32 {sROLE}, 2, {sROLE}')
A(f's_sub_u32 {sT0}, {sS}, 14')
A(f's_cmp_lt_u32 {sT0}, 2')
A(f's_cselect_b32 {sT1}, 1, 0')
A(f's_cmp_lt_u32 {sH}, 7')
A(f's_cselect_b32 {sT1}, {sT1}, 0')
A(f's_cmp_eq_u32 {sT1}, 1')
A(f's_cselect_b32 {sROLE}, 3, {sROLE}')
A(f's_cmp_ge_u32 {sS}, 7')
A(f's_cselect_b32 {sT0}, 1, 0')
A(f's_lshl_b32 {sJ}, {sH}, 1')
A(f's_add_u32 {sJ}, {sJ}, {sT0}')
A(f's_mul_i32 {sT0}, {sT0}, 7')
A(f's_sub_u32 {sN}, {sS}, {sT0}')
A(f's_mul_i32 {sF}, {sH}, 14')
A(f's_add_u32 {sF}, {sF}, {sS}')
A(f's_sub_u32 {sF}, {sF}, 16')
A(f's_cmp_eq_u32 {sW}, 4')
A('s_cbranch_scc1 L_helper')

A(f's_lshl_b32 {sKB}, {sH}, 22')
A(f's_lshl_b32 {sT0}, {sS}, 17')
A(f's_add_u32 {sKB}, {sKB}, {sT0}')
A(f's_lshl_b32 {sT0}, {sW}, 15')
A(f's_add_u32 {sKB}, {sKB}, {sT0}')
A(f's_mov_b32 {sVB}, {sKB}')
A(f's_mov_b32 {sC3}, {PZ[0]}')
for i in range(32):
    if PZ[i%len(PZ)]!=PZ[0]:
        A(f's_cmp_eq_u32 {sS}, {i}')
        A(f's_cselect_b32 {sC3}, {PZ[i%len(PZ)]}, {sC3}')
A(f's_mov_b32 s3, {P1[0]}')
for i in range(32):
    if P1[i%len(P1)]!=P1[0]:
        A(f's_cmp_eq_u32 {sS}, {i}')
        A(f's_cselect_b32 s3, {P1[i%len(P1)]}, s3')
def pausept(k):
    if k in P1:
        A(f's_cmp_lg_u32 s3, {k}')
        A(f's_cbranch_scc1 L_p1{k}')
        A('s_waitcnt vmcnt(0)')
        A('s_barrier')
        A('s_barrier')
        A.label(f'L_p1{k}')
    if k in PZ:
        A(f's_cmp_lg_u32 {sC3}, {k}')
        A(f's_cbranch_scc1 L_pz{k}')
        A('s_waitcnt vmcnt(0)')
        A('s_barrier')
        A('s_barrier')
        A.label(f'L_pz{k}')
def kload(n):
    blk,c=divmod(n,8)
    if c==0 and blk>0: A(f's_add_u32 {sKB}, {sKB}, 8192')
    A(f'buffer_load_dwordx4 a[{4*n}:{4*n+3}], v2, {sK}, {sKB} offen offset:{c*64}')
def pace(): A(f's_waitcnt vmcnt({D-1})')
cnt=0
for n in range(8):
    pausept(n)
    kload(n); cnt+=1
A('v_lshrrev_b32 v9, 5, v1')
A('v_and_b32 v10, 31, v1')
for m4 in range(4):
    A(f'v_add_u32 v11, {2*m4}, v9')
    A('v_lshlrev_b32 v11, 1, v11')
    A('v_xor_b32 v11, v11, v10')
    A('v_lshlrev_b32 v11, 4, v11')
    A(f'v_lshl_add_u32 v{120+m4}, v9, 9, v11')
A(f's_lshl_b32 {sT3}, {sW}, 15')
A(f's_add_u32 {sT3}, {sT3}, {L_V}')
def vload(n):
    A(f's_mov_b32 m0, {sT3}')
    A(f's_add_u32 {sT3}, {sT3}, 1024')
    A(f'buffer_load_dwordx4 v{120+n%4}, {sV}, {sVB} offen lds')
    A(f's_add_u32 {sVB}, {sVB}, 1024')
for n in range(8,32):
    pausept(n)
    if cnt>=D: pace()
    kload(n); cnt+=1
for n in range(32):
    pausept(32+n)
    pace(); vload(n)
for k in range(32): A(f'v_mov_b32 v{32+k}, 0')
A('v_and_b32 v9, 15, v1')
A('v_lshrrev_b32 v10, 2, v9')
A('v_lshl_add_u32 v10, v7, 2, v10')
A('v_and_b32 v11, 7, v10')
A('v_and_b32 v9, 3, v9')
A('v_lshlrev_b32 v10, 9, v10')
A('v_lshl_add_u32 v10, v9, 3, v10')
A(f's_lshl_b32 {sT0}, {sW}, 15')
A(f's_add_u32 {sT0}, {sT0}, {L_V}')
A(f'v_add_u32 v10, {sT0}, v10')
for b in range(8):
    A(f'v_xor_b32 v9, {b}, v11')
    A(f'v_lshl_add_u32 v{112+b}, v9, 5, v10')
A('v_and_b32 v6, 15, v1')
A('v_cmp_gt_u32 vcc, 2, v6')
stamp(1)
A('s_and_saveexec_b64 s[98:99], vcc')
for c in range(8): A(f'ds_read_b128 v[{32+4*c}:{35+4*c}], v2 offset:{L_Q+64*c}')
A('s_mov_b64 exec, s[98:99]')
A('s_waitcnt vmcnt(32) lgkmcnt(0)')
stamp(3)
for blk in range(4):
    for c in range(8):
        n=blk*8+c
        cin = '0' if c==0 else f'v[{16+4*blk}:{19+4*blk}]'
        A(f'v_mfma_f32_16x16x32_bf16 v[{16+4*blk}:{19+4*blk}], a[{4*n}:{4*n+3}], v[{32+4*c}:{35+4*c}], {cin}')
for k in range(0,16,2):
    A(f'v_cvt_pk_bf16_f32 v9, v{16+k}, v{17+k}')
    A(f'v_lshlrev_b32 v{16+k}, 16, v9')
    A(f'v_and_b32 v{17+k}, 0xffff0000, v9')
for k in range(16): A(f'v_mul_f32 v{16+k}, {hex(f2u(0.0625*LOG2E))}, v{16+k}')
A('v_max_f32 v9, v16, v17')
for k in range(2,16,2): A(f'v_max3_f32 v9, v9, v{16+k}, v{17+k}')
allreduce('max',9,10,lo=False)
for k in range(16): A(f'v_sub_f32 v{16+k}, v{16+k}, v9')
for k in range(16): A(f'v_exp_f32 v{16+k}, v{16+k}')
for k in range(8): A(f'v_cvt_pk_bf16_f32 v{104+k}, v{16+2*k}, v{17+2*k}')
stamp(4)
ACC=40
def pv_half(kb, first):
    def rd(t, buf):
        a,b=divmod(t,8)
        for u in range(2):
            A(f'ds_read_b64_tr_b16 v[{buf+2*u}:{buf+2*u+1}], v{112+b} offset:{a*256+kb*16384+u*8192}')
    rd(0,32)
    for t in range(16):
        buf=32+4*(t%2)
        if t<15: rd(t+1, 32+4*((t+1)%2))
        A(f's_waitcnt lgkmcnt({2 if t<15 else 0})')
        cin = '0' if first else f'v[{ACC+4*t}:{ACC+4*t+3}]'
        A(f'v_mfma_f32_16x16x32_bf16 v[{ACC+4*t}:{ACC+4*t+3}], v[{buf}:{buf+3}], v[{104+4*kb}:{107+4*kb}], {cin}')
A('v_lshlrev_b32 v11, 16, v104')
A('v_and_b32 v12, 0xffff0000, v104')
A('v_add_f32 v11, v11, v12')
for k in range(1,8):
    A(f'v_lshlrev_b32 v12, 16, v{104+k}')
    A('v_add_f32 v11, v11, v12')
    A(f'v_and_b32 v12, 0xffff0000, v{104+k}')
    A('v_add_f32 v11, v11, v12')
allreduce('add',11,10,lo=False)
A('v_and_b32 v12, 15, v1')
A('v_lshlrev_b32 v12, 2, v12')
A(f's_lshl_b32 {sT1}, {sW}, 4')
A(f'v_add_u32 v12, {sT1}, v12')
A('s_and_saveexec_b64 s[98:99], vcc')
A(f'ds_write_b32 v12, v9 offset:{L_ST}')
A(f'ds_write_b32 v12, v11 offset:{L_ST+8}')
A('s_mov_b64 exec, s[98:99]')
A('s_waitcnt vmcnt(16) lgkmcnt(0)')
pv_half(0, True)
A('s_waitcnt vmcnt(0)')
pv_half(1, False)
stamp(5)
A('v_and_b32 v12, 15, v1')
A('v_lshlrev_b32 v12, 10, v12')
A('v_lshl_add_u32 v12, v7, 4, v12')
A(f's_lshl_b32 {sT0}, {sW}, 11')
A(f'v_add_u32 v12, {sT0}, v12')
A('s_and_saveexec_b64 s[98:99], vcc')
for t in range(16):
    A(f'ds_write_b128 v12, v[{ACC+4*t}:{ACC+4*t+3}] offset:{L_OW+64*t}')
A('s_mov_b64 exec, s[98:99]')
A('v_mov_b32 v13, 0')
A('v_mov_b32 v14, 1')
A('s_waitcnt lgkmcnt(0)')
A('s_mov_b64 exec, 1')
A(f'ds_add_u32 v13, v14 offset:{L_CNT}')
A('s_mov_b64 exec, -1')
A(f's_cmp_ge_u32 {sW}, 2')
A('s_cbranch_scc1 L_nopub')
A.label('L_b3spin')
A(f'ds_read_b32 v14, v13 offset:{L_CNT}')
A('s_waitcnt lgkmcnt(0)')
A('v_cmp_gt_u32 vcc, 4, v14')
A('s_nop 1')
A('s_cbranch_vccz L_b3ok')
guard('L_b3ok')
A('s_branch L_b3spin')
A.label('L_b3ok')
A(f's_lshl_b32 {sT0}, {sW}, 2')
A(f'v_mov_b32 v12, {sT0}')
for w in range(4):
    A(f'ds_read_b32 v{16+w}, v12 offset:{L_ST+16*w}')
    A(f'ds_read_b32 v{20+w}, v12 offset:{L_ST+16*w+8}')
A(f's_lshl_b32 {sT0}, {sW}, 10')
A(f'v_add_u32 v13, {sT0}, v3')
for w in range(4): A(f'ds_read_b128 v[{32+4*w}:{35+4*w}], v13 offset:{L_OW+2048*w}')
A('s_waitcnt lgkmcnt(4)')
A('v_max_f32 v10, v16, v17')
A('v_max3_f32 v10, v10, v18, v19')
for w in range(4): A(f'v_sub_f32 v{16+w}, v{16+w}, v10')
for w in range(4): A(f'v_exp_f32 v{16+w}, v{16+w}')
A('v_mul_f32 v11, v16, v20')
for w in range(1,4): A(f'v_fmac_f32 v11, v{16+w}, v{20+w}')
A('s_waitcnt lgkmcnt(0)')
for e in range(4): A(f'v_mul_f32 v{24+e}, v{32+e}, v16')
for w in range(1,4):
    for e in range(4): A(f'v_fmac_f32 v{24+e}, v{32+4*w+e}, v{16+w}')
for e in range(4): A(f'v_min_u32 v{24+e}, 0xfffffffe, v{24+e}')
A('v_min_u32 v10, 0xfffffffe, v10')
A('v_min_u32 v11, 0xfffffffe, v11')
A(f's_lshl_b32 {sT0}, {sH}, 1')
A(f's_add_u32 {sT0}, {sT0}, {sW}')
A(f's_lshl_b32 {sT0}, {sT0}, 5')
A(f's_add_u32 {sT0}, {sT0}, {sS}')
A(f's_lshl_b32 {sT1}, {sT0}, 10')
A(f's_add_u32 {sT1}, {sT1}, {O1_OFF}')
A(f'buffer_store_dwordx4 v[24:27], v3, {sWS}, {sT1} offen sc1')
A(f's_lshl_b32 {sT1}, {sT0}, 3')
A(f's_add_u32 {sT1}, {sT1}, {S1_OFF}')
A('v_cmp_eq_u32 vcc, 0, v1')
A('v_cndmask_b32 v13, v8, v1, vcc')
A(f'buffer_store_dwordx2 v[10:11], v13, {sWS}, {sT1} offen sc1')
A('v_mov_b32 v13, 0')
A('v_mov_b32 v14, 1')
A('s_waitcnt vmcnt(0)')
A('s_mov_b64 exec, 1')
A(f'ds_add_u32 v13, v14 offset:{L_CNT}')
A('s_mov_b64 exec, -1')
A.label('L_nopub')
stamp(6)
A(f's_cmp_eq_u32 {sROLE}, 0')
A('s_cbranch_scc1 L_end')
A('v_mov_b32 v13, 0')
A.label('L_b4spin')
A(f'ds_read_b32 v14, v13 offset:{L_FLAG}')
A('s_waitcnt lgkmcnt(0)')
A('v_cmp_ne_u32 vcc, 1, v14')
A('s_nop 1')
A('s_cbranch_vccz L_b4ok')
guard('L_b4ok')
A('s_sleep 1')
A('s_branch L_b4spin')
A.label('L_b4ok')
A(f's_cmp_eq_u32 {sROLE}, 2')
A('s_cbranch_scc1 L_ffn')
A(f's_cmp_eq_u32 {sROLE}, 3')
A('s_cbranch_scc1 L_fin')

A('v_lshlrev_b32 v9, 3, v7')
A('v_and_b32 v10, 15, v1')
A('v_lshlrev_b32 v10, 4, v10')
A('v_lshl_add_u32 v10, v7, 10, v10')
A(f's_lshl_b32 {sC0}, {sJ}, 8')
A(f's_add_u32 {sC0}, {sC0}, {S1_OFF}')
A(f's_lshl_b32 {sC1}, {sJ}, 15')
A(f's_lshl_b32 {sT0}, {sW}, 8')
A(f's_add_u32 {sC1}, {sC1}, {sT0}')
A(f's_add_u32 {sC1}, {sC1}, {O1_OFF}')
SR=16; OR_=32; WR=64
def wo_poll_issue():
    for i in range(8):
        A(f'buffer_load_dwordx2 v[{SR+2*i}:{SR+1+2*i}], v9, {sWS}, {sC0} offen offset:{32*i} sc1')
    A(f's_mov_b32 {sT0}, {sC1}')
    for i in range(8):
        A(f'buffer_load_dwordx4 v[{OR_+4*i}:{OR_+3+4*i}], v10, {sWS}, {sT0} offen sc1')
        if i<7: A(f's_add_u32 {sT0}, {sT0}, 4096')
A(f's_lshl_b32 {sT0}, {sW}, 13')
A(f'v_add_u32 v12, {sT0}, v3')
for i in range(8): A(f'ds_read_b128 v[{WR+4*i}:{WR+3+4*i}], v12 offset:{L_W+1024*i}')
A('v_and_b32 v12, 31, v1')
A('v_lshlrev_b32 v12, 3, v12')
A.label('L_wopre')
A(f'buffer_load_dwordx2 v[{SR}:{SR+1}], v12, {sWS}, {sC0} offen sc1')
A('s_waitcnt vmcnt(0)')
sentinel_check([SR,SR+1], 11, 'L_wopre2')
A('s_branch L_wore3')
A.label('L_wopre2')
guard('L_wore3')
A('s_sleep 1')
A('s_branch L_wopre')
A.label('L_wore3')
wo_poll_issue()
A.label('L_wopoll')
A('s_waitcnt vmcnt(0)')
sentinel_check(range(16,64), 11, 'L_wore')
A('s_branch L_wogo')
A.label('L_wore')
guard('L_wogo')
A('s_sleep 1')
wo_poll_issue()
A('s_branch L_wopoll')
A.label('L_wogo')
stamp(8)
A(f'v_max_f32 v11, v{SR}, v{SR+2}')
for i in range(2,8,2): A(f'v_max3_f32 v11, v11, v{SR+2*i}, v{SR+2+2*i}')
allreduce('max',11,12,lo=False)
for i in range(8): A(f'v_sub_f32 v{SR+2*i}, v{SR+2*i}, v11')
for i in range(8): A(f'v_exp_f32 v{SR+2*i}, v{SR+2*i}')
A(f'v_mul_f32 v11, v{SR}, v{SR+1}')
for i in range(1,8): A(f'v_fmac_f32 v11, v{SR+2*i}, v{SR+1+2*i}')
allreduce('add',11,12,lo=False)
A('v_rcp_f32 v12, v11')
for e in range(4): A(f'v_mul_f32 v{96+e}, v{OR_+e}, v{SR}')
for i in range(1,8):
    for e in range(4): A(f'v_fmac_f32 v{96+e}, v{OR_+4*i+e}, v{SR+2*i}')
for e in range(4): allreduce('add',96+e,100+e,lo=False)
for e in range(4):
    fdiv(104+e,96+e,11,12,100+e)
    bf16round(104+e)
A('v_and_b32 v13, 15, v1')
A('v_lshlrev_b32 v13, 4, v13')
A(f's_lshl_b32 {sT0}, {sW}, 8')
A(f'v_add_u32 v13, {sT0}, v13')
A(f'ds_write_b128 v13, v[104:107] offset:{L_OV}')
A('v_lshrrev_b32 v13, 3, v1')
A('v_lshlrev_b32 v13, 2, v13')
A(f'v_add_u32 v13, {sT0}, v13')
A('s_waitcnt lgkmcnt(0)')
for i in range(8): A(f'ds_read_b32 v{32+2*i}, v13 offset:{L_OV+32*i}')
for k in range(8): A(f'v_mov_b32 v{16+k}, 0')
for i in range(8):
    for k in range(4): unpack(f'v{WR+4*i+k}', 96+2*k)
    A(f's_waitcnt lgkmcnt({7-i})')
    for k in range(4):
        A(f'v_pk_fma_f32 v[{16+2*k}:{17+2*k}], v[{96+2*k}:{97+2*k}], v[{32+2*i}:{33+2*i}], v[{16+2*k}:{17+2*k}] op_sel_hi:[1,0,1]')
for k in range(8):
    A(f'v_add_f32_dpp v{16+k}, v{16+k}, v{16+k} row_ror:8 row_mask:0xf bank_mask:0xf')
A('v_and_b32 v13, 7, v1')
A('v_lshlrev_b32 v13, 5, v13')
A('v_lshl_add_u32 v13, v7, 8, v13')
A(f's_lshl_b32 {sT0}, {sW}, 10')
A(f'v_add_u32 v13, {sT0}, v13')
A(f'ds_write_b128 v13, v[16:19] offset:{L_RED2}')
A(f'ds_write_b128 v13, v[20:23] offset:{L_RED2+16}')
A('s_waitcnt lgkmcnt(0)')
A('s_barrier')
A(f's_cmp_lg_u32 {sW}, 0')
A('s_cbranch_scc1 L_end')
A('v_lshlrev_b32 v13, 2, v1')
for k in range(16): A(f'ds_read_b32 v{16+k}, v13 offset:{L_RED2+256*k}')
A('s_waitcnt lgkmcnt(0)')
for st in (8,4,2,1):
    for k in range(st): A(f'v_add_f32 v{16+k}, v{16+k}, v{16+k+st}')
A('v_min_u32 v16, 0xfffffffe, v16')
A(f's_mul_i32 {sT1}, {sJ}, 1792')
A(f's_lshl_b32 {sT2}, {sN}, 8')
A(f's_add_u32 {sT1}, {sT1}, {sT2}')
A(f's_add_u32 {sT1}, {sT1}, {P2_OFF}')
A(f'buffer_store_dword v16, v13, {sWS}, {sT1} offen sc1')
stamp(9)
A('s_branch L_end')

A.label('L_ffn')
A('v_and_b32 v11, 31, v1')
A('v_cmp_gt_u32 vcc, 28, v11')
A('v_lshlrev_b32 v12, 3, v11')
A('v_cndmask_b32 v12, v8, v12, vcc')
A(f's_mul_i32 {sT0}, {sW}, 224')
A(f'buffer_load_dwordx2 v[4:5], v12, {sX}, {sT0} offen')
A('v_lshlrev_b32 v14, 4, v11')
A('v_lshrrev_b32 v12, 5, v1')
A('v_mul_u32_u24 v12, 1792, v12')
A('v_add_u32 v14, v14, v12')
A('v_cndmask_b32 v14, v8, v14, vcc')
A('v_and_b32 v9, 15, v1')
A('v_lshrrev_b32 v10, 2, v9')
A('v_and_b32 v9, 3, v9')
A('v_lshl_add_u32 v12, v7, 2, v10')
A('v_mul_u32_u24 v12, 896, v12')
A('v_lshl_add_u32 v12, v9, 3, v12')
A(f's_mul_i32 {sT0}, {sW}, 224')
A(f's_add_u32 {sT0}, {sT0}, {L_W+28672}')
A(f'v_add_u32 v12, {sT0}, v12')
for t in range(7): A(f'ds_read_b64_tr_b16 v[{48+2*t}:{49+2*t}], v12 offset:{32*t}')
A(f's_cmp_ge_u32 {sW}, 2')
A('s_cbranch_scc1 L_ffnogu')
A('v_lshl_add_u32 v12, v7, 3, v10')
A('v_lshlrev_b32 v12, 5, v12')
A('v_lshl_add_u32 v12, v9, 3, v12')
A(f's_mul_i32 {sT0}, {sW}, 14336')
A(f's_add_u32 {sT0}, {sT0}, {L_W}')
A(f'v_add_u32 v12, {sT0}, v12')
for ks in range(14):
    for u in range(2):
        A(f'ds_read_b64_tr_b16 v[{64+4*ks+2*u}:{65+4*ks+2*u}], v12 offset:{1024*ks+128*u}')
A.label('L_ffnogu')
stamp(7)
A(f's_mul_i32 {sC0}, {sW}, 448')
A(f's_add_u32 {sC0}, {sC0}, {P2_OFF}')
A(f's_add_u32 {sT1}, {sC0}, {7*3584}')
A.label('L_ffpre')
A(f'buffer_load_dwordx4 v[16:19], v14, {sWS}, {sT1} offen sc1')
A('s_waitcnt vmcnt(0)')
sentinel_check(range(16,20), 9, 'L_ffpre2')
A('s_branch L_ffpoll')
A.label('L_ffpre2')
guard('L_ffpoll')
A(f's_sleep {SLF}')
A('s_branch L_ffpre')
A.label('L_ffpoll')
A(f's_mov_b32 {sT0}, {sC0}')
for i in range(8):
    A(f'buffer_load_dwordx4 v[{16+4*i}:{19+4*i}], v14, {sWS}, {sT0} offen sc1')
    if i<7: A(f's_add_u32 {sT0}, {sT0}, 3584')
A('s_waitcnt vmcnt(0)')
sentinel_check(range(16,48), 9, 'L_ffre')
A('s_branch L_ffgo')
A.label('L_ffre')
guard('L_ffgo')
A('s_sleep 1')
A('s_branch L_ffpoll')
A.label('L_ffgo')
stamp(8)
for st in (16,8,4):
    for k in range(st): A(f'v_add_f32 v{16+k}, v{16+k}, v{16+k+st}')
unpack('v4',24); unpack('v5',26)
for e in range(4): allreduce('add',16+e,20+e,lo=False,x16=False)
for e in range(4):
    bf16round(16+e)
    A(f'v_add_f32 v{16+e}, v{16+e}, v{24+e}')
    bf16round(16+e)
A('v_add_f32 v9, v16, v17')
A('v_add_f32 v10, v18, v19')
A('v_add_f32 v9, v9, v10')
allreduce('add',9,10)
A(f'v_mul_f32 v9, {hex(f2u(1.0/224))}, v9')
A('v_mov_b32 v11, 0')
for e in range(4):
    A(f'v_sub_f32 v10, v{16+e}, v9')
    A('v_fmac_f32 v11, v10, v10')
A('v_and_b32 v12, 31, v1')
A('v_cmp_gt_u32 vcc, 28, v12')
A('v_cndmask_b32 v11, 0, v11, vcc')
allreduce('add',11,10)
A('v_mul_f32 v11, 0.5, v11')
A('v_mov_b32 v10, v9')
A(f's_lshl_b32 {sT0}, {sW}, 3')
A(f'v_mov_b32 v12, {sT0}')
A(f'ds_write_b64 v12, v[10:11] offset:{L_ST3}')
A('s_waitcnt lgkmcnt(0)')
A('s_barrier')
A('v_mov_b32 v12, 0')
A(f'ds_read_b128 v[20:23], v12 offset:{L_ST3}')
A(f'ds_read_b128 v[24:27], v12 offset:{L_ST3+16}')
A('s_waitcnt lgkmcnt(0)')
A('v_add_f32 v9, v20, v22')
A('v_add_f32 v10, v24, v26')
A('v_add_f32 v9, v9, v10')
A('v_mul_f32 v9, 0.25, v9')
A('v_add_f32 v11, v21, v23')
A('v_add_f32 v10, v25, v27')
A('v_add_f32 v11, v11, v10')
A('v_mov_b32 v13, 0')
for r in (20,22,24,26):
    A(f'v_sub_f32 v10, v{r}, v9')
    A('v_fmac_f32 v13, v10, v10')
A(f'v_mov_b32 v10, {hex(f2u(112.0))}')
A('v_fmac_f32 v11, v13, v10')
A(f'v_mul_f32 v11, {hex(f2u(1.0/448))}, v11')
layernorm_consts(9,11,10)
for e in range(4):
    A(f'v_sub_f32 v{20+e}, v{16+e}, v9')
    bf16round(20+e)
    fdiv(24+e,20+e,11,10,12)
A('v_cvt_pk_bf16_f32 v24, v24, v25')
A('v_cvt_pk_bf16_f32 v25, v26, v27')
A('v_and_b32 v12, 31, v1')
A('v_cmp_gt_u32 vcc, 28, v12')
A('v_lshlrev_b32 v12, 3, v12')
A(f's_mul_i32 {sT0}, {sW}, 224')
A(f'v_add_u32 v12, {sT0}, v12')
A('s_and_saveexec_b64 s[98:99], vcc')
A(f'ds_write_b64 v12, v[24:25] offset:{L_HN}')
A('s_mov_b64 exec, s[98:99]')
for k in range(28): A(f'v_mov_b32 v{16+k}, 0')
A('v_and_b32 v9, 15, v1')
A('v_cmp_eq_u32 vcc, 0, v9')
A('v_lshlrev_b32 v12, 4, v7')
A('s_waitcnt lgkmcnt(0)')
A('s_barrier')
A(f's_cmp_ge_u32 {sW}, 2')
A('s_cbranch_scc1 L_ffnomm')
for hb in range(2):
    A('s_and_saveexec_b64 s[98:99], vcc')
    for k in range(7): A(f'ds_read_b128 v[{16+4*k}:{19+4*k}], v12 offset:{L_HN+64*(7*hb+k)}')
    A('s_mov_b64 exec, s[98:99]')
    for k in range(7):
        ks=7*hb+k
        A(f's_waitcnt lgkmcnt({6-k})')
        cin='0' if ks==0 else 'v[44:47]'
        A(f'v_mfma_f32_16x16x32_bf16 v[44:47], v[{64+4*ks}:{67+4*ks}], v[{16+4*k}:{19+4*k}], {cin}')
for e in range(4): bf16round(44+e)
A(f's_lshl_b32 {sT0}, {sW}, 6')
A(f'v_add_u32 v13, {sT0}, v12')
A('s_and_saveexec_b64 s[98:99], vcc')
A(f'ds_write_b128 v13, v[44:47] offset:{L_GU}')
A('s_mov_b64 exec, s[98:99]')
A.label('L_ffnomm')
A('s_waitcnt lgkmcnt(0)')
A('s_barrier')
A(f'ds_read_b128 v[16:19], v12 offset:{L_GU}')
A(f'ds_read_b128 v[20:23], v12 offset:{L_GU+64}')
A(f'v_mov_b32 v28, {hex(f2u(0.044715))}')
A('s_waitcnt lgkmcnt(0)')
for e in range(4): A(f'v_mul_f32 v{24+e}, v{16+e}, v{16+e}')
for e in range(4): A(f'v_fma_f32 v{24+e}, v{24+e}, v28, 1.0')
for e in range(4): A(f'v_mul_f32 v{24+e}, v{24+e}, v{16+e}')
for e in range(4): A(f'v_mul_f32 v{24+e}, {hex(f2u(2.0*0.7978845608028654*LOG2E))}, v{24+e}')
for e in range(4): A(f'v_exp_f32 v{24+e}, v{24+e}')
for e in range(4): A(f'v_add_f32 v{24+e}, 1.0, v{24+e}')
for e in range(4): A(f'v_rcp_f32 v{24+e}, v{24+e}')
for e in range(4): A(f'v_fma_f32 v{24+e}, v{24+e}, -2.0, 2.0')
for e in range(4): A(f'v_mul_f32 v{24+e}, v{24+e}, v{16+e}')
for e in range(4): A(f'v_mul_f32 v{24+e}, 0.5, v{24+e}')
for e in range(4): bf16round(24+e)
for e in range(4): A(f'v_mul_f32 v{24+e}, v{24+e}, v{20+e}')
A('v_cvt_pk_bf16_f32 v24, v24, v25')
A('v_cvt_pk_bf16_f32 v25, v26, v27')
A('v_cndmask_b32 v24, 0, v24, vcc')
A('v_cndmask_b32 v25, 0, v25, vcc')
for t in range(7):
    A(f'v_mfma_f32_16x16x16_bf16 v[{64+4*t}:{67+4*t}], v[{48+2*t}:{49+2*t}], v[24:25], 0')
A('v_cndmask_b32 v13, v8, v12, vcc')
A(f's_mul_i32 {sT1}, {sF}, 1792')
A(f's_mul_i32 {sT0}, {sW}, 448')
A(f's_add_u32 {sT1}, {sT1}, {sT0}')
A(f's_add_u32 {sT1}, {sT1}, {P3_OFF}')
for t in range(7):
    for e in range(4): A(f'v_min_u32 v{64+4*t+e}, 0xfffffffe, v{64+4*t+e}')
    A(f'buffer_store_dwordx4 v[{64+4*t}:{67+4*t}], v13, {sWS}, {sT1} offen offset:{64*t} sc1')
stamp(9)
A('s_branch L_end')

A.label('L_fin')
A(f's_cmp_lg_u32 {sW}, 0')
A('s_cbranch_scc1 L_end')
A(f's_sub_u32 {sN}, {sS}, 14')
A(f's_mul_i32 {sN}, {sN}, 7')
A(f's_add_u32 {sN}, {sN}, {sH}')
A('v_and_b32 v11, 7, v1')
A('v_lshlrev_b32 v12, 3, v11')
A(f's_lshl_b32 {sT0}, {sN}, 6')
A(f'buffer_load_dwordx2 v[48:49], v12, {sX}, {sT0} offen')
A('v_lshlrev_b32 v14, 4, v11')
A('v_lshrrev_b32 v10, 3, v1')
A('v_mul_u32_u24 v10, 1792, v10')
A('v_add_u32 v14, v14, v10')
A(f's_lshl_b32 {sC0}, {sN}, 7')
A(f's_add_u32 {sC1}, {sC0}, {P3_OFF}')
A(f's_add_u32 {sC0}, {sC0}, {P2_OFF}')
A(f's_add_u32 {sT1}, {sC0}, 14336')
def red8(v,t):
    A(f'v_add_f32_dpp v{v}, v{v}, v{v} row_ror:8 row_mask:0xf bank_mask:0xf')
    allreduce('add',v,t,lo=False)
A.label('L_f2poll')
A(f'buffer_load_dwordx4 v[16:19], v14, {sWS}, {sC0} offen sc1')
A(f'buffer_load_dwordx4 v[20:23], v14, {sWS}, {sT1} offen sc1')
A('s_waitcnt vmcnt(0)')
sentinel_check(range(16,24), 9, 'L_f2re')
A('s_branch L_f2go')
A.label('L_f2re')
guard('L_f2go')
A(f's_sleep {SLZ}')
A('s_branch L_f2poll')
A.label('L_f2go')
stamp(7)
unpack('v48',50); unpack('v49',52)
for k in range(4): A(f'v_add_f32 v{16+k}, v{16+k}, v{20+k}')
for e in range(4): red8(16+e,20+e)
for e in range(4):
    bf16round(16+e)
    A(f'v_add_f32 v{16+e}, v{16+e}, v{50+e}')
    bf16round(16+e)
A(f's_add_u32 {sT1}, {sC1}, {13*14336}')
A.label('L_f3pre')
A(f'buffer_load_dwordx4 v[64:67], v14, {sWS}, {sT1} offen sc1')
A('s_waitcnt vmcnt(0)')
sentinel_check(range(64,68), 9, 'L_f3pre2')
A('s_branch L_f3poll')
A.label('L_f3pre2')
guard('L_f3poll')
A('s_sleep 2')
A('s_branch L_f3pre')
A.label('L_f3poll')
A(f's_mov_b32 {sT0}, {sC1}')
for i in range(14):
    A(f'buffer_load_dwordx4 v[{64+4*i}:{67+4*i}], v14, {sWS}, {sT0} offen sc1')
    if i<13: A(f's_add_u32 {sT0}, {sT0}, 14336')
A('s_waitcnt vmcnt(0)')
sentinel_check(range(64,120), 9, 'L_f3re')
A('s_branch L_f3go')
A.label('L_f3re')
guard('L_f3go')
A('s_branch L_f3poll')
A.label('L_f3go')
stamp(8)
for i in range(7):
    for e in range(4): A(f'v_add_f32 v{64+4*i+e}, v{64+4*i+e}, v{92+4*i+e}')
for i in range(3):
    for e in range(4): A(f'v_add_f32 v{64+4*i+e}, v{64+4*i+e}, v{80+4*i+e}')
for e in range(4): A(f'v_add_f32 v{64+e}, v{64+e}, v{68+e}')
for e in range(4): A(f'v_add_f32 v{72+e}, v{72+e}, v{76+e}')
for e in range(4): A(f'v_add_f32 v{64+e}, v{64+e}, v{72+e}')
for e in range(4): red8(64+e,20+e)
for e in range(4):
    bf16round(64+e)
    A(f'v_add_f32 v{64+e}, v{64+e}, v{16+e}')
A('v_cvt_pk_bf16_f32 v64, v64, v65')
A('v_cvt_pk_bf16_f32 v65, v66, v67')
A('v_cmp_gt_u32 vcc, 8, v1')
A('v_cndmask_b32 v12, v8, v12, vcc')
A(f's_lshl_b32 {sT0}, {sN}, 6')
A(f'buffer_store_dwordx2 v[64:65], v12, {sOUT}, {sT0} offen')
A('s_branch L_end')

A.label('L_helper')
A('s_barrier')
stamp(7)
A(f'buffer_load_dwordx4 v[60:63], v3, {sX}, 0 offen')
A('v_lshrrev_b32 v9, 1, v1')
A('v_lshlrev_b32 v9, 13, v9')
A('v_and_b32 v10, 1, v1')
A('v_lshl_add_u32 v9, v10, 4, v9')
A(f's_lshl_b32 {sC0}, {sH}, 10')
A(f's_lshl_b32 {sT1}, {sS}, 5')
A(f's_add_u32 {sC0}, {sC0}, {sT1}')
A(f's_mov_b32 {sT0}, {sC0}')
for i in range(14):
    A(f'buffer_load_dwordx4 v[{64+4*i}:{67+4*i}], v9, {sWQ}, {sT0} offen')
    if i<13: A(f's_add_u32 {sT0}, {sT0}, 262144')
A(f's_cmp_lg_u32 {sROLE}, 1')
A('s_cbranch_scc1 L_hnowo')
A('v_lshrrev_b32 v10, 3, v1')
A('v_mul_u32_u24 v10, 896, v10')
A('v_and_b32 v11, 7, v1')
A('v_lshl_add_u32 v10, v11, 4, v10')
A(f's_lshl_b32 {sT0}, {sJ}, 8')
A(f's_mul_i32 {sT0}, {sT0}, 896')
A(f's_lshl_b32 {sT1}, {sN}, 7')
A(f's_add_u32 {sT0}, {sT0}, {sT1}')
for i in range(32):
    A(f'buffer_load_dwordx4 a[{4*i}:{4*i+3}], v10, {sWO}, {sT0} offen')
    if i<31: A(f's_add_u32 {sT0}, {sT0}, {8*896}')
A.label('L_hnowo')
for i in range(4): A(f'v_mov_b32 v{12+i}, -1')
A(f's_lshl_b32 {sT0}, {sH}, 6')
A(f's_add_u32 {sT0}, {sT0}, {sS}')
A(f's_lshl_b32 {sT1}, {sT0}, 10')
A(f's_add_u32 {sT1}, {sT1}, {O1_OFF}')
A(f's_add_u32 {sT2}, {sT1}, 32768')
A(f'buffer_store_dwordx4 v[12:15], v3, {sWS}, {sT1} offen sc1')
A(f'buffer_store_dwordx4 v[12:15], v3, {sWS}, {sT2} offen sc1')
A(f's_lshl_b32 {sT1}, {sT0}, 3')
A(f's_add_u32 {sT1}, {sT1}, {S1_OFF}')
A('v_lshlrev_b32 v10, 8, v1')
A('v_cmp_gt_u32 vcc, 2, v1')
A('v_cndmask_b32 v10, v8, v10, vcc')
A(f'buffer_store_dwordx2 v[12:13], v10, {sWS}, {sT1} offen sc1')
A(f's_cmp_lg_u32 {sROLE}, 1')
A('s_cbranch_scc1 L_noclr2')
A(f's_mul_i32 {sT1}, {sJ}, 1792')
A(f's_lshl_b32 {sT2}, {sN}, 8')
A(f's_add_u32 {sT1}, {sT1}, {sT2}')
A(f's_add_u32 {sT1}, {sT1}, {P2_OFF}')
A('v_cmp_gt_u32 vcc, 16, v1')
A('v_cndmask_b32 v10, v8, v3, vcc')
A(f'buffer_store_dwordx4 v[12:15], v10, {sWS}, {sT1} offen sc1')
A.label('L_noclr2')
A(f's_cmp_lg_u32 {sROLE}, 2')
A('s_cbranch_scc1 L_noclear')
A(f's_mul_i32 {sT1}, {sF}, 1792')
A(f's_add_u32 {sT1}, {sT1}, {P3_OFF}')
A('v_cmp_gt_u32 vcc, 48, v1')
A('v_cndmask_b32 v10, v8, v3, vcc')
A(f'buffer_store_dwordx4 v[12:15], v3, {sWS}, {sT1} offen sc1')
A(f'buffer_store_dwordx4 v[12:15], v10, {sWS}, {sT1} offen offset:1024 sc1')
A.label('L_noclear')
def rolewait(extra, tag):
    A(f's_cmp_lg_u32 {sROLE}, 1')
    A(f's_cbranch_scc1 L_rw{tag}a')
    A(f's_waitcnt vmcnt({36+extra})')
    A(f's_branch L_rw{tag}z')
    A.label(f'L_rw{tag}a')
    A(f's_cmp_lg_u32 {sROLE}, 2')
    A(f's_cbranch_scc1 L_rw{tag}b')
    A(f's_waitcnt vmcnt({5+extra})')
    A(f's_branch L_rw{tag}z')
    A.label(f'L_rw{tag}b')
    A(f's_waitcnt vmcnt({3+extra})')
    A.label(f'L_rw{tag}z')
rolewait(14,'x')
for k in range(4): unpack(f'v{60+k}', 16+2*k)
A('v_add_f32 v9, v16, v17')
for k in range(2,8): A(f'v_add_f32 v9, v9, v{16+k}')
allreduce('add',9,10)
A(f'v_mul_f32 v9, {hex(f2u(1.0/448))}, v9')
A('v_mov_b32 v11, 0')
for k in range(8):
    A(f'v_sub_f32 v10, v{16+k}, v9')
    A(f'v_fmac_f32 v11, v10, v10')
A('v_cmp_gt_u32 vcc, 56, v1')
A('v_cndmask_b32 v11, 0, v11, vcc')
allreduce('add',11,10)
A(f'v_mul_f32 v11, {hex(f2u(1.0/448))}, v11')
layernorm_consts(9,11,10)
for k in range(8):
    A(f'v_sub_f32 v{16+k}, v{16+k}, v9')
    bf16round(16+k)
    fdiv(24+k,16+k,11,10,12)
    bf16round(24+k)
A('v_lshlrev_b32 v12, 5, v1')
A('v_cmp_gt_u32 vcc, 56, v1')
A('s_and_saveexec_b64 s[98:99], vcc')
A(f'ds_write_b128 v12, v[24:27] offset:{L_XN}')
A(f'ds_write_b128 v12, v[28:31] offset:{L_XN+16}')
A('s_mov_b64 exec, s[98:99]')
A('v_lshrrev_b32 v12, 1, v1')
A('v_lshlrev_b32 v12, 2, v12')
A('s_waitcnt lgkmcnt(0)')
for i in range(14): A(f'ds_read_b32 v{32+2*i}, v12 offset:{L_XN+128*i}')
for k in range(8): A(f'v_mov_b32 v{16+k}, 0')
A('s_waitcnt lgkmcnt(0)')
rolewait(0,'w')
stamp(1)
for i in range(14): fma8(16, 64+4*i, 32+2*i, 24)
for m in ('quad_perm:[2,3,0,1]','row_ror:4','row_ror:8'):
    for k in range(8):
        A(f'v_add_f32_dpp v{16+k}, v{16+k}, v{16+k} {m} row_mask:0xf bank_mask:0xf')
for k in range(8): allreduce('add',16+k,24+k,lo=False)
for k in range(4): A(f'v_cvt_pk_bf16_f32 v{16+k}, v{16+2*k}, v{17+2*k}')
A('v_cmp_gt_u32 vcc, 2, v1')
A('v_cndmask_b32 v12, v8, v3, vcc')
A(f's_add_u32 {sT0}, {sC0}, {Q_OFF}')
A(f'buffer_store_dwordx4 v[16:19], v12, {sWS}, {sT0} offen sc1')
A('s_waitcnt vmcnt(0)')
A('v_mov_b32 v12, 1')
A('v_cmp_eq_u32 vcc, 0, v1')
A('v_cndmask_b32 v13, v8, v1, vcc')
A(f's_lshl_b32 {sT0}, {sH}, 5')
A(f's_add_u32 {sT1}, {sT0}, {sS}')
A(f'buffer_store_byte v12, v13, {sDB}, {sT1} offen sc1')
stamp(2)
A('s_barrier')
A('s_barrier')
stamp(6)
A('v_and_b32 v13, 7, v1')
A('v_lshlrev_b32 v13, 2, v13')
A.label('L_fpoll')
A(f'buffer_load_dword v12, v13, {sDB}, {sT0} offen sc1')
A('s_waitcnt vmcnt(0)')
A('v_cmp_ne_u32 vcc, 0x01010101, v12')
A('s_nop 1')
A('s_cbranch_vccz L_fok')
guard('L_fok')
A('s_sleep 2')
A('s_branch L_fpoll')
A.label('L_fok')
stamp(3)
A(f's_lshl_b32 {sT0}, {sH}, 10')
A(f's_add_u32 {sT0}, {sT0}, {Q_OFF}')
A(f'buffer_load_dwordx4 v[16:19], v3, {sWS}, {sT0} offen sc1')
A('s_waitcnt vmcnt(0)')
A(f'ds_write_b128 v3, v[16:19] offset:{L_Q}')
A('v_mov_b32 v12, 0')
A('v_mov_b32 v13, 0')
A(f'ds_write_b64 v12, v[12:13] offset:{L_CNT}')
A('s_waitcnt lgkmcnt(0)')
stamp(4)
A('s_barrier')
A(f's_cmp_eq_u32 {sROLE}, 0')
A('s_cbranch_scc1 L_end')
A('v_mov_b32 v13, 0')
A(f's_cmp_eq_u32 {sROLE}, 2')
A(f's_cselect_b32 {sT2}, 6, 4')
A.label('L_hcnt')
A(f'ds_read_b32 v14, v13 offset:{L_CNT}')
A('s_waitcnt lgkmcnt(0)')
A(f'v_cmp_gt_u32 vcc, {sT2}, v14')
A('s_nop 1')
A('s_cbranch_vccz L_hcntok')
guard('L_hcntok')
A('s_sleep 1')
A('s_branch L_hcnt')
A.label('L_hcntok')
A(f's_cmp_lg_u32 {sROLE}, 1')
A('s_cbranch_scc1 L_hnowo2')
A('s_waitcnt vmcnt(0)')
A(f'v_add_u32 v9, {L_W}, v3')
for i in range(32):
    A(f'ds_write_b128 v9, a[{4*i}:{4*i+3}] offset:{1024*i}')
A.label('L_hnowo2')
A(f's_cmp_lg_u32 {sROLE}, 2')
A('s_cbranch_scc1 L_hnoffn')
A('v_lshrrev_b32 v10, 1, v1')
A('v_mul_u32_u24 v10, 3584, v10')
A('v_and_b32 v11, 1, v1')
A('v_lshl_add_u32 v10, v11, 4, v10')
A(f's_lshl_b32 {sT0}, {sF}, 5')
for i in range(14):
    A(f's_mov_b32 m0, {L_W+1024*i}')
    A('s_nop 0')
    A(f'buffer_load_dwordx4 v10, {sWG}, {sT0} offen lds')
    A(f's_mov_b32 m0, {L_W+1024*(14+i)}')
    A('s_nop 0')
    A(f'buffer_load_dwordx4 v10, {sWU}, {sT0} offen lds')
    if i<13: A(f's_add_u32 {sT0}, {sT0}, {32*3584}')
A(f's_mul_i32 {sC1}, {sF}, 14336')
for i in range(14):
    A(f's_mov_b32 m0, {L_W+1024*(28+i)}')
    A('s_nop 0')
    A(f'buffer_load_dwordx4 v3, {sWD}, {sC1} offen lds')
    if i<13: A(f's_add_u32 {sC1}, {sC1}, 1024')
A.label('L_hnoffn')
A('v_lshlrev_b32 v13, 2, v1')
A.label('L_afpoll')
A(f'buffer_load_dword v12, v13, {sDB}, 0 offen sc1')
A('s_waitcnt vmcnt(0)')
A('v_cmp_ne_u32 vcc, 0x01010101, v12')
A('s_nop 1')
A('s_cbranch_vccz L_afok')
guard('L_afok')
A('s_sleep 8')
A('s_branch L_afpoll')
A.label('L_afok')
stamp(5)
A('v_mov_b32 v12, 0')
A('v_mov_b32 v13, 1')
A('s_waitcnt lgkmcnt(0)')
A(f'ds_write_b32 v12, v13 offset:{L_FLAG}')
A('s_waitcnt lgkmcnt(0)')
A.label('L_end')
if STAMP:
    stamp(10)
    A('s_cmp_ge_u32 s2, 256')
    A('s_cbranch_scc1 L_end2')
    A('v_mov_b32 v5, 0')
    A('s_mul_i32 s3, s2, 5')
    A(f's_add_u32 s3, s3, {sW}')
    A('s_lshl_b32 s3, s3, 6')
    A(f's_add_u32 s3, s3, {STAMP_OFF}')
    A('s_mov_b64 exec, 1')
    for i in range(16):
        A(f'v_mov_b32 v6, s{48+i}')
        A(f'buffer_store_dword v6, v5, {sWS}, s3 offen offset:{4*i}')
    A.label('L_end2')
A('s_endpgm')

hdr=open('cdna_kernels/'+NAME+'.s.ref').read().split('; @launch')[0]
out=hdr+f'; @launch grid=(256,1,1) block=(320,1,1) lds={LDS_SIZE}\n'
out+='.amdgcn_target "amdgcn-amd-amdhsa--gfx950"\n.text\n'
out+=f'.globl {NAME}_kernel\n.p2align 8\n.type {NAME}_kernel,@function\n'
out+=A.text()
out+=f'''.section .rodata,"a"
.p2align 6
.amdhsa_kernel {NAME}_kernel
  .amdhsa_next_free_vgpr 256
  .amdhsa_next_free_sgpr 102
  .amdhsa_accum_offset 128
  .amdhsa_group_segment_fixed_size 0
  .amdhsa_kernarg_size 96
  .amdhsa_user_sgpr_count 2
  .amdhsa_user_sgpr_kernarg_segment_ptr 1
  .amdhsa_system_sgpr_workgroup_id_x 1
.end_amdhsa_kernel
'''
open(sys.argv[1],'w').write(out)
print('lines',len(A.lines))
```
